```python
import torch

def _softmax(x, axis=-1):
    return torch.softmax(x, dim=axis)
def _gelu(x):
    return torch.nn.functional.gelu(x, approximate="tanh")
def _silu(x):
    return torch.nn.functional.silu(x)
def _sigmoid(x):
    return torch.sigmoid(x)
def _layernorm(x, axis=-1, eps=1e-5):
    m = x.mean(dim=axis, keepdim=True)
    v = x.var(dim=axis, keepdim=True, unbiased=False)
    return (x - m) / torch.sqrt(v + eps)
def _scatter_add(tgt, idx, src, axis=0):
    return tgt.clone().index_add_(axis, idx, src)
def _segment_sum(src, seg, n):
    out = torch.zeros((n,) + src.shape[1:], dtype=src.dtype)
    return out.index_add_(0, seg, src)
def _pad(x, pw):
    flat = tuple(v for pair in reversed(pw) for v in pair)
    return torch.nn.functional.pad(x, flat)

kernel_name = 'concat_heads__mha_block_cached__gqa_block_cached__near_ridge'

def setup_inputs():

    _w = (lambda a: (lambda t: t.to(torch.bfloat16) if t.is_floating_point() else t)(torch.as_tensor(a)))
    def _A_setup():
        B, Sq, D = 32, 32, 512
        H, Sk, Dh = 32, 32, 128
        return {
            "x": _w((lambda *s: torch.randn(*s, dtype=torch.bfloat16) * 0.8)(B, Sq, D)),
            "k_cache": _w((lambda *s: torch.randn(*s, dtype=torch.bfloat16) * 0.8)(B, H, Sk, Dh)),
            "v_cache": _w((lambda *s: torch.randn(*s, dtype=torch.bfloat16) * 0.05)(B, H, Sk, Dh)),
            "wq": _w((lambda *s: torch.randn(*s, dtype=torch.bfloat16) * 0.8)(D, H * Dh) * (D ** -0.5)),
            "wo": _w((lambda *s: torch.randn(*s, dtype=torch.bfloat16) * 0.05)(H * Dh, D) * ((H * Dh) ** -0.5)),
        }
    _A_in = _A_setup()

    def _B_setup():
        B, Sq, D = 32, 32, 512
        Hq, Hkv, Sk, Dh = 32, 32, 32, 128
        assert Hq % Hkv == 0, (Hq, Hkv)
        return {
            "x": _w((lambda *s: torch.randn(*s, dtype=torch.bfloat16) * 0.8)(B, Sq, D)),
            "k_cache": _w((lambda *s: torch.randn(*s, dtype=torch.bfloat16) * 0.8)(B, Hkv, Sk, Dh)),
            "v_cache": _w((lambda *s: torch.randn(*s, dtype=torch.bfloat16) * 0.05)(B, Hkv, Sk, Dh)),
            "wq": _w((lambda *s: torch.randn(*s, dtype=torch.bfloat16) * 0.8)(D, Hq * Dh) * (D ** -0.5)),
            "wo": _w((lambda *s: torch.randn(*s, dtype=torch.bfloat16) * 0.05)(Hq * Dh, D) * ((Hq * Dh) ** -0.5)),
        }
    _B_in = _B_setup()

    return {
        "A_x": _A_in["x"],
        "A_k_cache": _A_in["k_cache"],
        "A_v_cache": _A_in["v_cache"],
        "A_wq": _A_in["wq"],
        "A_wo": _A_in["wo"],
        "B_x": _B_in["x"],
        "B_k_cache": _B_in["k_cache"],
        "B_v_cache": _B_in["v_cache"],
        "B_wq": _B_in["wq"],
        "B_wo": _B_in["wo"],
    }

def reference(A_x, A_k_cache, A_v_cache, A_wq, A_wo, B_x, B_k_cache, B_v_cache, B_wq, B_wo):
    def _A_ref(x, k_cache, v_cache, wq, wo):
        B, Sq, D = x.shape
        H, Dh = 32, 128
        q = (lambda x, *d: x.permute(*d))((x @ wq).reshape(B, Sq, H, Dh), 0, 2, 1, 3)
        scores = torch.einsum("bhqd,bhkd->bhqk", q, k_cache) * (Dh ** -0.5)
        p = _softmax(scores, axis=-1)
        o = torch.einsum("bhqk,bhkd->bhqd", p, v_cache)
        return (lambda x, *d: x.permute(*d))(o, 0, 2, 1, 3).reshape(B, Sq, H * Dh) @ wo

    def _B_ref(x, k_cache, v_cache, wq, wo):
        B, Sq, D = x.shape
        Hq, Dh = 32, 128
        Hkv = k_cache.shape[1]
        rep = Hq // Hkv
        q = (lambda x, *d: x.permute(*d))((x @ wq).reshape(B, Sq, Hq, Dh), 0, 2, 1, 3)
        k = (lambda x, n, axis: torch.repeat_interleave(x, n, dim=axis))(k_cache, rep, axis=1)
        v = (lambda x, n, axis: torch.repeat_interleave(x, n, dim=axis))(v_cache, rep, axis=1)
        scores = torch.einsum("bhqd,bhkd->bhqk", q, k) * (Dh ** -0.5)
        p = _softmax(scores, axis=-1)
        o = torch.einsum("bhqk,bhkd->bhqd", p, v)
        return (lambda x, *d: x.permute(*d))(o, 0, 2, 1, 3).reshape(B, Sq, Hq * Dh) @ wo

    a = _A_ref(A_x, A_k_cache, A_v_cache, A_wq, A_wo)
    b = _B_ref(B_x, B_k_cache, B_v_cache, B_wq, B_wo)
    return torch.concatenate([a, b], axis=-1)
```

```python
import re

def _expand(r):
    m = re.fullmatch(r"([vsa])\[(\d+):(\d+)\]", r)
    if m:
        return [f"{m.group(1)}{i}" for i in range(int(m.group(2)), int(m.group(3)) + 1)]
    return [r]

def regs(*rs):
    out = []
    for r in rs:
        if r is None: continue
        if isinstance(r, (list, tuple, set)):
            out += regs(*r)
        elif isinstance(r, str):
            if re.fullmatch(r"[vsa]\d+|[vsa]\[\d+:\d+\]|vcc|m0|exec|scc", r):
                if r == "vcc": out += ["vcc"]
                else: out += _expand(r)
    return out

def v(a, n=1):
    return f"v{a}" if n == 1 else f"v[{a}:{a+n-1}]"
def s(a, n=1):
    return f"s{a}" if n == 1 else f"s[{a}:{a+n-1}]"

TRANS = ("v_exp_f32", "v_log_f32", "v_rcp_f32", "v_rsq_f32", "v_sqrt_f32", "v_sin_f32", "v_cos_f32")

class Inst:
    __slots__ = ("text", "kind", "rd", "wr", "tok", "passes", "srcc", "note", "ab")
    def __init__(self, text, kind, rd=(), wr=(), tok=None, passes=0, srcc=(), ab=()):
        self.text = text; self.kind = kind
        self.rd = set(rd); self.wr = set(wr); self.tok = tok
        self.passes = passes; self.srcc = set(srcc); self.ab = set(ab)

class Stream:
    def __init__(self, name=""):
        self.name = name
        self.ins = []
    def add(self, i):
        self.ins.append(i); return i
    def raw(self, text):
        return self.add(Inst(text, "raw"))
    def label(self, l):
        return self.add(Inst(l + ":", "label"))
    def comment(self, c):
        return self.add(Inst("; " + c, "comment"))
    def salu(self, op, dst, *srcs, extra=""):
        wr = regs(dst)
        rd = regs(*srcs)
        txt = f"{op} " + ", ".join([str(dst)] + [str(x) for x in srcs]) + extra
        if op.startswith("s_cmp"):
            rd = regs(dst, *srcs); wr = ["scc"]
        return self.add(Inst(txt, "salu", rd, wr))
    def smem(self, dst, base, off):
        n = len(regs(dst))
        op = {1: "s_load_dword", 2: "s_load_dwordx2", 4: "s_load_dwordx4", 8: "s_load_dwordx8", 16: "s_load_dwordx16"}[n]
        return self.add(Inst(f"{op} {dst}, {base}, {off}", "smem", regs(base), regs(dst)))
    def valu(self, op, dst, *srcs, extra=""):
        wr = regs(dst)
        rd = regs(*[str(x).lstrip("-").replace("abs(", "").rstrip(")") for x in srcs])
        kind = "valu"
        base = op.replace("_e32", "").replace("_e64", "")
        if base in TRANS: kind = "trans"
        if base.startswith("v_fmac") or base.startswith("v_pk_fmac"): rd += wr
        if base.startswith("v_cndmask") and len(srcs) == 2: rd += ["vcc"]
        if base.startswith("v_readfirstlane") or base.startswith("v_readlane"): kind = "readlane"
        if base.startswith("v_permlane"):
            kind = "permlane"; rd += wr; wr += regs(*srcs)
        if base.startswith("v_cmp") and dst == "vcc": wr = ["vcc"]
        txt = f"{op} " + ", ".join([str(dst)] + [str(x) for x in srcs]) + extra
        return self.add(Inst(txt, kind, rd, wr))
    def mfma(self, d, a, b, c, shape="32x32x16"):
        passes = 8 if shape == "32x32x16" else 4
        txt = f"v_mfma_f32_{shape}_bf16 {d}, {a}, {b}, {c}"
        rc = regs(c) if isinstance(c, str) else []
        return self.add(Inst(txt, "mfma", regs(a, b) + rc, regs(d), passes=passes, srcc=rc, ab=regs(a, b)))
    def ds_read(self, op, dst, addr, offset=0, tok=None):
        assert 0 <= offset < 65536, offset
        o = f" offset:{offset}" if offset else ""
        return self.add(Inst(f"{op} {dst}, {addr}{o}", "ds_read", regs(addr), regs(dst), tok=tok))
    def ds_write(self, op, addr, data, offset=0, tok=None):
        assert 0 <= offset < 65536, offset
        o = f" offset:{offset}" if offset else ""
        return self.add(Inst(f"{op} {addr}, {data}{o}", "ds_write", regs(addr, data), [], tok=tok))
    def buf_load(self, op, dst, voff, srd, soff="0", offset=0, flags="", tok=None):
        assert 0 <= offset < 4096
        o = f" offset:{offset}" if offset else ""
        return self.add(Inst(f"{op} {dst}, {voff}, {srd}, {soff} offen{o}{flags}", "vm_load",
                             regs(voff, srd, soff), regs(dst), tok=tok))
    def buf_dma(self, voff, srd, soff="0", offset=0, flags="", tok=None, op="buffer_load_dwordx4"):
        assert 0 <= offset < 4096
        o = f" offset:{offset}" if offset else ""
        return self.add(Inst(f"{op} {voff}, {srd}, {soff} offen{o}{flags} lds", "dma",
                             regs(voff, srd, soff) + ["m0"], [], tok=tok))
    def buf_store(self, op, data, voff, srd, soff="0", offset=0, flags="", tok=None):
        assert 0 <= offset < 4096
        o = f" offset:{offset}" if offset else ""
        return self.add(Inst(f"{op} {data}, {voff}, {srd}, {soff} offen{o}{flags}", "vm_store",
                             regs(data, voff, srd, soff), [], tok=tok, ab=regs(data)))
    def barrier(self):
        return self.add(Inst("s_barrier", "barrier"))
    def nop(self, n):
        return self.add(Inst(f"s_nop {n}", "nop", passes=n + 1))
    def wait_vm_tok(self, tok):
        return self.add(Inst("", "wait_vm_tok", tok=tok))
    def wait_lgkm_tok(self, tok):
        return self.add(Inst("", "wait_lgkm_tok", tok=tok))
    def wait(self, vm=None, lgkm=None):
        t = []
        if vm is not None: t.append(f"vmcnt({vm})")
        if lgkm is not None: t.append(f"lgkmcnt({lgkm})")
        i = Inst("s_waitcnt " + " ".join(t), "wait"); i.ab = (vm, lgkm)
        return self.add(i)
    def branch(self, op, target):
        return self.add(Inst(f"{op} {target}", "branch", ["scc"] if "scc" in op else []))
    def endpgm(self):
        return self.add(Inst("s_endpgm", "end"))
    def setprio(self, p):
        return self.add(Inst(f"s_setprio {p}", "salu"))

    def finalize(self, auto_wait=True):
        out = self._insert_waits(self.ins) if auto_wait else list(self.ins)
        out = self._insert_nops(out)
        return out

    def _insert_waits(self, ins):
        out = []
        lg = []
        vm = []
        def do_wait(nv, nl):
            nonlocal lg, vm
            t = []
            if nv is not None:
                nv = min(nv, 63)
                if nv < len(vm): t.append(f"vmcnt({nv})"); vm = vm[len(vm) - nv:] if nv > 0 else []
            if nl is not None:
                nl = min(nl, 15)
                if nl < len(lg): t.append(f"lgkmcnt({nl})"); lg = lg[len(lg) - nl:] if nl > 0 else []
            if t:
                out.append(Inst("s_waitcnt " + " ".join(t), "wait"))
        for i in ins:
            if i.kind == "wait_vm_tok":
                idx = [k for k, (w, tok) in enumerate(vm) if tok == i.tok]
                if idx: do_wait(len(vm) - 1 - idx[-1], None)
                continue
            if i.kind == "wait_lgkm_tok":
                idx = [k for k, (w, tok) in enumerate(lg) if tok == i.tok]
                if idx: do_wait(None, len(lg) - 1 - idx[-1])
                continue
            if i.kind == "wait":
                nv, nl = i.ab
                if nv is not None: vm = vm[len(vm) - nv:] if 0 < nv < len(vm) else ([] if nv == 0 else vm)
                if nl is not None: lg = lg[len(lg) - nl:] if 0 < nl < len(lg) else ([] if nl == 0 else lg)
                out.append(i); continue
            if i.kind in ("label", "branch"):
                out.append(i); continue
            touched = i.rd | i.wr
            nl = nv = None
            for k, (w, tok) in enumerate(lg):
                if w & touched: nl = len(lg) - 1 - k
            for k, (w, tok) in enumerate(vm):
                if w & touched: nv = len(vm) - 1 - k
            if any(tok == "SMEM" for (w, tok) in lg) and nl is not None:
                nl = 0
            if nl is not None or nv is not None:
                do_wait(nv, nl)
            out.append(i)
            if i.kind in ("ds_read", "ds_write"):
                lg.append((set(i.wr), i.tok))
            elif i.kind == "smem":
                lg.append((set(i.wr), "SMEM"))
            elif i.kind in ("vm_load", "vm_store", "dma"):
                vm.append((set(i.wr), i.tok))
        return out

    def _insert_nops(self, ins):
        out = []
        def states(i):
            if i.kind in ("comment", "label"): return 0
            if i.kind == "nop": return i.passes
            return 1
        VALUISH = ("valu", "trans", "readlane", "permlane")
        for i in ins:
            if i.kind in ("comment", "label", "raw", "nop", "wait", "barrier", "branch", "end"):
                out.append(i); continue
            need = 0
            d = 0
            for p in reversed(out):
                if d > 24: break
                req = 0
                if p.kind == "mfma":
                    P = p.passes
                    big = {4: 8, 8: 12}[P]; mid = {4: 6, 8: 10}[P]; war = {4: 3, 8: 7}[P]
                    if i.kind == "mfma":
                        if p.wr & i.ab: req = max(req, big)
                        if p.wr & i.srcc:
                            if not (p.wr == i.srcc and p.passes == i.passes): req = max(req, mid)
                        if (p.wr & i.wr) and not (p.wr & i.srcc): req = max(req, mid)
                    else:
                        if p.wr & (i.rd | i.wr): req = max(req, big)
                        if i.kind in VALUISH and (p.srcc & i.wr): req = max(req, war)
                        if i.kind in ("ds_read", "vm_load") and (p.srcc & i.wr): req = max(req, war)
                elif p.kind in VALUISH:
                    vw = {r for r in p.wr if r[0] == "v" and r != "vcc"}
                    sw = {r for r in p.wr if r[0] == "s" or r == "vcc"}
                    if i.kind == "mfma" and (vw & i.rd): req = max(req, 2)
                    if i.kind == "permlane" and (vw & i.rd): req = max(req, 2)
                    if i.kind == "readlane" and (vw & i.rd): req = max(req, 1)
                    if p.kind == "trans" and i.kind in VALUISH and i.kind != "trans" and (vw & i.rd): req = max(req, 1)
                    if p.kind == "trans" and i.kind == "trans" and (vw & i.rd): req = max(req, 1)
                    if i.kind in ("vm_load", "vm_store", "dma") and (sw & i.rd): req = max(req, 5)
                    if i.kind in VALUISH and (sw & i.rd): req = max(req, 2)
                    if i.kind in ("salu", "smem") and (sw & i.rd): req = max(req, 4)
                    if "dpp" in i.text and (vw & i.rd): req = max(req, 2)
                elif p.kind == "salu":
                    if "m0" in p.wr and i.kind == "dma": req = max(req, 1)
                elif p.kind == "vm_store":
                    if len(p.ab) >= 3 and (p.ab & i.wr): req = max(req, 2)
                need = max(need, req - d)
                d += states(p)
            while need > 0:
                n = min(need, 16)
                out.append(Inst(f"s_nop {n-1}", "nop", passes=n)); need -= n
            out.append(i)
        return out

def render(insts):
    lines = []
    for i in insts:
        if i.kind in ("label",): lines.append(i.text)
        else: lines.append("    " + i.text)
    return "\n".join(lines)
```

```python
import sys, argparse
from asmlib import *

NAME = "concat_heads__mha_block_cached__gqa_block_cached__near_ridge"

def interleave(S, mf, fill, per_gap, lead=0):
    fi = 0
    for _ in range(min(lead, len(fill))):
        fill[fi](); fi += 1
    for k, m in enumerate(mf):
        m()
        n = per_gap[k] if isinstance(per_gap, (list, tuple)) else per_gap
        for _ in range(n):
            if fi < len(fill):
                fill[fi](); fi += 1
    while fi < len(fill):
        fill[fi](); fi += 1

def load_ptrs(S, sel_sgpr_p):
    S.smem("s[16:31]", "s[0:1]", 0)
    S.smem("s[32:35]", "s[0:1]", 64)
    S.smem("s[36:37]", "s[0:1]", 80)
    S.smem("s[38:39]", "s[0:1]", 96)

def make_srd(S, srd, ptr_lo, ptr_hi, off_sgpr, total, off_hi=None):
    if isinstance(off_sgpr, int):
        S.salu("s_add_u32", s(srd), s(ptr_lo), off_sgpr)
        S.salu("s_addc_u32", s(srd + 1), s(ptr_hi), 0)
        S.salu("s_mov_b32", s(srd + 2), total - off_sgpr)
    else:
        S.salu("s_add_u32", s(srd), s(ptr_lo), off_sgpr)
        S.salu("s_addc_u32", s(srd + 1), s(ptr_hi), 0)
        S.salu("s_sub_u32", s(srd + 2), total, off_sgpr)
    S.salu("s_mov_b32", s(srd + 3), "0x20000")

NW = 6
NX = 4
XBASE = NW * 16384
KSLOT = [XBASE + 0 * 16384, 4 * 16384, XBASE + 1 * 16384, 5 * 16384]
VSLOT = [0 * 16384, XBASE + 2 * 16384, 1 * 16384, 2 * 16384]

def k1_prologue(S, cfg):
    S.salu("s_cmp_ge_u32", "s2", 256)
    S.branch("s_cbranch_scc1", "K1_DONE")
    load_ptrs(S, None)
    S.salu("s_and_b32", "s44", "s2", 7)
    S.salu("s_lshr_b32", "s45", "s2", 3)
    S.salu("s_lshr_b32", "s40", "s44", 2)
    S.salu("s_and_b32", "s44", "s44", 3)
    S.salu("s_lshl_b32", "s44", "s44", 2)
    S.salu("s_and_b32", "s41", "s45", 3)
    S.salu("s_add_u32", "s41", "s41", "s44")
    S.salu("s_lshr_b32", "s42", "s45", 2)
    S.valu("v_lshrrev_b32", "v1", 6, "v0")
    S.valu("v_readfirstlane_b32", "s43", "v1")
    S.valu("v_and_b32", "v1", 63, "v0")
    S.salu("s_cmp_eq_u32", "s40", 0)
    S.salu("s_cselect_b64", "s[16:17]", "s[16:17]", "s[26:27]")
    S.salu("s_cselect_b64", "s[18:19]", "s[18:19]", "s[28:29]")
    S.salu("s_cselect_b64", "s[20:21]", "s[20:21]", "s[30:31]")
    S.salu("s_cselect_b64", "s[22:23]", "s[22:23]", "s[32:33]")
    S.salu("s_lshl_b32", "s44", "s41", 9)
    make_srd(S, 48, 22, 23, "s44", 512 * 8192)
    S.salu("s_lshl_b32", "s44", "s42", 17)
    make_srd(S, 52, 16, 17, "s44", 1024 * 1024)
    S.salu("s_lshl_b32", "s44", "s42", 20)
    S.salu("s_lshl_b32", "s45", "s41", 14)
    S.salu("s_add_u32", "s44", "s44", "s45")
    make_srd(S, 56, 18, 19, "s44", 32 * 262144)
    make_srd(S, 60, 20, 21, "s44", 32 * 262144)
    S.salu("s_lshl_b32", "s45", "s40", 23)
    S.salu("s_add_u32", "s44", "s44", "s45")
    make_srd(S, 64, 38, 39, "s44", 2 * 32 * 262144)

def k1_loader(S, cfg):
    S.salu("s_sub_u32", "s44", "s43", 4)
    L = "v1"
    t0, t1, t2 = "v2", "v3", "v4"
    S.valu("v_lshrrev_b32", t0, 5, L)
    S.valu("v_and_b32", t1, 31, L)
    S.valu("v_lshlrev_b32", t2, 2, t0)
    S.valu("v_xor_b32", "v10", t1, t2)
    S.valu("v_lshlrev_b32", "v10", 4, "v10")
    S.valu("v_xor_b32", "v11", 128, "v10")
    S.valu("v_lshlrev_b32", t2, 13, t0)
    S.salu("s_lshl_b32", "s45", "s44", 16)
    S.valu("v_add_u32", t2, "s45", t2)
    S.valu("v_add_u32", "v10", "v10", t2)
    S.valu("v_add_u32", "v11", "v11", t2)
    S.valu("v_lshrrev_b32", t0, 3, L)
    S.valu("v_and_b32", t1, 7, L)
    S.valu("v_lshrrev_b32", t2, 4, L)
    S.valu("v_xor_b32", "v12", t1, t2)
    S.valu("v_lshlrev_b32", "v12", 4, "v12")
    S.valu("v_xor_b32", "v13", 64, "v12")
    S.valu("v_lshlrev_b32", t0, 10, t0)
    S.salu("s_lshl_b32", "s45", "s44", 15)
    S.valu("v_add_u32", t0, "s45", t0)
    S.valu("v_add_u32", "v12", "v12", t0)
    S.valu("v_add_u32", "v13", "v13", t0)
    S.valu("v_lshrrev_b32", t2, 4, L)
    S.valu("v_and_b32", t1, 15, L)
    S.valu("v_lshlrev_b32", t0, 8, t2)
    S.salu("s_and_b32", "s45", "s44", 1)
    S.salu("s_lshl_b32", "s45", "s45", 12)
    S.salu("s_lshr_b32", "s46", "s44", 1)
    S.salu("s_lshl_b32", "s46", "s46", 18)
    S.salu("s_add_u32", "s45", "s45", "s46")
    S.valu("v_add_u32", t0, "s45", t0)
    S.valu("v_xor_b32", "v5", t1, t2)
    for ii in range(4):
        S.valu("v_xor_b32", v(14 + ii), 4 * ii, "v5")
        S.valu("v_lshlrev_b32", v(14 + ii), 4, v(14 + ii))
        S.valu("v_add_u32", v(14 + ii), v(14 + ii), t0)
        if ii: S.valu("v_add_u32", v(14 + ii), ii * 1024, v(14 + ii))
    S.valu("v_lshlrev_b32", "v5", 2, t2)
    S.valu("v_xor_b32", "v18", t1, "v5")
    S.valu("v_lshlrev_b32", "v18", 4, "v18")
    S.valu("v_add_u32", "v18", "v18", t0)
    S.salu("s_lshl_b32", "s47", "s44", 12)

    ldflags = cfg.get("ldflags", "")
    kvflags = cfg.get("kvflags", "")
    def dma(voff, srd, soff, ldsbase, tok, flags=""):
        S.salu("s_add_u32", "m0", "s47", ldsbase)
        S.salu("s_mov_b32", "s46", soff)
        S.buf_dma(voff, srd, "s46", tok=tok, flags=flags)
    def issue_w(st):
        for ii in range(4):
            dma("v10" if ii % 2 == 0 else "v11", "s[48:51]", st * 262144 + ii * 16384,
                (st % NW) * 16384 + ii * 1024, f"w{st}", ldflags)
    def issue_x(j):
        for ii in range(4):
            dma("v12" if ii % 2 == 0 else "v13", "s[52:55]", j * 128 + ii * 8192,
                XBASE + (j % NX) * 16384 + ii * 1024, f"x{j}", ldflags)
    def issue_k(cw):
        for ii in range(4):
            dma(v(14 + ii), "s[56:59]", 2 * (cw % 2) * 262144 + (cw // 2) * 8192,
                KSLOT[cw] + ii * 1024, f"k{cw}", kvflags)
    def issue_v(cw):
        for ii in range(4):
            dma("v18", "s[60:63]", 2 * (cw % 2) * 262144 + (cw // 2) * 8192 + ii * 1024,
                VSLOT[cw] + ii * 1024, f"v{cw}", kvflags)
    issue_w(0); issue_x(0); issue_w(1); issue_w(2); issue_x(1); issue_w(3); issue_w(4); issue_x(2); issue_w(5); issue_x(3)
    S.wait_vm_tok("w0"); S.wait_vm_tok("x0")
    S.barrier()
    for st in range(16):
        if st + 1 < 16:
            S.wait_vm_tok(f"w{st+1}")
            S.wait_vm_tok(f"x{(st+1)//2}")
        else:
            for cw in range(4): S.wait_vm_tok(f"k{cw}")
        S.barrier()
        if st >= 1 and st + 5 < 16: issue_w(st + 5)
        if st >= 2 and st % 2 == 0 and (st - 2) // 2 + 4 < 8: issue_x((st - 2) // 2 + 4)
        if st == 10: issue_k(0)
        if st == 11: issue_k(1)
        if st == 12: issue_k(2); issue_k(3)
        if st == 13: issue_v(0)
        if st == 14: issue_v(1); issue_v(2)
        if st == 15: issue_v(3)
    S.wait(vm=0)
    S.barrier()
    S.endpgm()

def k1_consumer(S, cfg):
    cw = "s43"
    l = "v1"
    T = [f"v{n}" for n in range(16, 32)]
    i_, hh, gb, kx, c4, t0, t1, t2 = T[:8]
    S.valu("v_and_b32", i_, 15, l)
    S.valu("v_lshrrev_b32", hh, 5, l)
    S.valu("v_bfe_u32", gb, l, 4, 1)
    S.valu("v_lshrrev_b32", kx, 2, i_)
    S.valu("v_and_b32", c4, 3, l)
    S.valu("v_and_b32", t0, 1, c4)
    S.valu("v_lshlrev_b32", t0, 4, t0)
    S.valu("v_lshrrev_b32", t1, 1, c4)
    S.valu("v_lshlrev_b32", t1, 3, t1)
    S.valu("v_or_b32", t0, t0, t1)
    S.valu("v_lshlrev_b32", t1, 5, gb)
    S.valu("v_or_b32", t0, t0, t1)
    S.valu("v_lshlrev_b32", t1, 3, hh)
    S.valu("v_add_u32", t1, t1, kx)
    S.valu("v_lshlrev_b32", t1, 9, t1)
    S.valu("v_add_u32", t0, t0, t1)
    S.salu("s_lshr_b32", "s44", cw, 1)
    S.salu("s_lshl_b32", "s44", "s44", 8)
    S.valu("v_add_u32", t0, "s44", t0)
    for t in range(4):
        S.valu("v_xor_b32", t1, t, kx)
        S.valu("v_lshlrev_b32", t1, 6, t1)
        S.valu("v_add_u32", v(2 + t), t0, t1)
        S.valu("v_add_u32", v(6 + t), 65536, v(2 + t))
    S.valu("v_and_b32", t0, 31, l)
    S.valu("v_bfe_u32", t1, l, 1, 3)
    S.valu("v_xor_b32", t1, t1, hh)
    S.valu("v_lshlrev_b32", t0, 7, t0)
    S.salu("s_and_b32", "s44", cw, 1)
    S.salu("s_lshl_b32", "s44", "s44", 13)
    S.salu("s_add_u32", "s44", "s44", XBASE)
    S.valu("v_add_u32", t0, "s44", t0)
    for s4 in range(4):
        S.valu("v_xor_b32", t2, 2 * s4, t1)
        S.valu("v_lshlrev_b32", t2, 4, t2)
        S.valu("v_add_u32", v(10 + s4), t0, t2)
    pf_gran = cfg.get("pf_gran", 128)
    S.valu("v_lshlrev_b32", "v14", 7 if pf_gran == 128 else 6, l)
    S.salu("s_and_b32", "s44", cw, 1)
    S.salu("s_lshl_b32", "s44", "s44", 19)
    S.salu("s_lshr_b32", "s45", cw, 1)
    S.salu("s_lshl_b32", "s45", "s45", 13)
    S.salu("s_add_u32", "s70", "s44", "s45")
    S.salu("s_add_u32", "s71", "s70", 262144)
    S.salu("s_add_u32", "s72", "s70", 4096)
    S.salu("s_add_u32", "s73", "s71", 4096)
    def sel4(dst, vals):
        S.salu("s_mov_b32", dst, vals[0])
        for c in range(1, 4):
            S.salu("s_cmp_eq_u32", cw, c)
            S.salu("s_cselect_b32", dst, vals[c], dst)
    sel4("s74", KSLOT); sel4("s75", VSLOT)
    import math, struct
    c = (128 ** -0.5) * math.log2(math.e)
    S.salu("s_mov_b32", "s76", hex(struct.unpack("<I", struct.pack("<f", c))[0]))

    ABUF = [16, 32]; BBUF = [48, 56]
    ACC = lambda ib, t: 128 + 64 * ib + 16 * t
    def reads(ks):
        st, sub = ks // 2, ks % 2
        j, s4 = ks // 4, ks % 4
        slot = st % NW
        buf = ks % 2
        r = []
        def rb(ib):
            return lambda: S.ds_read("ds_read_b128", v(BBUF[buf] + 4 * ib, 4), v(10 + s4), (j % NX) * 16384 + ib * 4096)
        def ra(t, jj):
            base = (2 + t) if slot < 4 else (6 + t)
            return lambda: S.ds_read("ds_read_b64_tr_b16", v(ABUF[buf] + 4 * t + 2 * jj, 2), v(base),
                                     (slot % 4) * 16384 + sub * 8192 + jj * 2048)
        r += [rb(0), ra(0, 0), ra(0, 1), rb(1), ra(1, 0), ra(1, 1), ra(2, 0), ra(2, 1), ra(3, 0), ra(3, 1)]
        return r
    def mfmas(ks, order):
        buf = ks % 2
        m = []
        for (t, ib) in order:
            first = (ks == 0)
            def f(t=t, ib=ib, first=first):
                S.mfma(v(ACC(ib, t), 16), v(ABUF[buf] + 4 * t, 4), v(BBUF[buf] + 4 * ib, 4), 0 if first else v(ACC(ib, t), 16))
            m.append(f)
        return m
    pf = []
    if cfg.get("prefetch", True):
        def mk(srd, so, off=0):
            return lambda: S.buf_load("buffer_load_dword", "v15", "v14", srd, so)
        if pf_gran == 128:
            pf = [mk("s[56:59]", "s70"), mk("s[56:59]", "s71"), mk("s[60:63]", "s70"), mk("s[60:63]", "s71")]
        else:
            pf = [mk("s[56:59]", "s70"), mk("s[56:59]", "s72"), mk("s[56:59]", "s71"), mk("s[56:59]", "s73"),
                  mk("s[60:63]", "s70"), mk("s[60:63]", "s72"), mk("s[60:63]", "s71"), mk("s[60:63]", "s73")]
    pf_at = cfg.get("pf_at", [0, 2, 4, 6, 8, 10, 12, 14])

    S.barrier()
    for f in reads(0): f()
    std = [(0, 0), (0, 1), (1, 0), (1, 1), (2, 0), (2, 1), (3, 0), (3, 1)]
    last = [(0, 0), (1, 0), (2, 0), (3, 0), (0, 1), (1, 1), (2, 1), (3, 1)]
    def kv_addr_code():
        c = []
        a = lambda *x, **k: c.append(lambda: S.valu(*x, **k))
        a("v_and_b32", "v0", 15, l)
        a("v_lshrrev_b32", "v14", 5, l)
        a("v_xor_b32", "v0", "v0", "v14")
        a("v_lshlrev_b32", "v0", 4, "v0")
        a("v_and_b32", "v2", 31, l)
        a("v_lshlrev_b32", "v2", 8, "v2")
        a("v_add_u32", "v2", "s74", "v2")
        a("v_or_b32", "v2", "v2", "v0")
        for cidx in range(1, 8):
            a("v_xor_b32", v(2 + cidx), (2 * cidx) << 4, "v2")
        return c
    def v_addr_code():
        c = []
        a = lambda *x, **k: c.append(lambda: S.valu(*x, **k))
        a("v_bfe_u32", "v0", l, 2, 2)
        a("v_lshrrev_b32", "v14", 5, l)
        a("v_lshlrev_b32", "v14", 2, "v14")
        a("v_add_u32", "v14", "v14", "v0")
        a("v_lshlrev_b32", "v14", 8, "v14")
        a("v_add_u32", "v14", "s75", "v14")
        a("v_bfe_u32", "v10", l, 4, 1)
        a("v_lshlrev_b32", "v10", 5, "v10")
        a("v_add_u32", "v14", "v14", "v10")
        a("v_and_b32", "v10", 3, l)
        a("v_lshlrev_b32", "v10", 3, "v10")
        a("v_add_u32", "v14", "v14", "v10")
        a("v_lshlrev_b32", "v0", 6, "v0")
        for tp in range(4):
            a("v_xor_b32", v(10 + tp), tp << 6, "v0")
            a("v_add_u32", v(10 + tp), v(10 + tp), "v14")
        return c

    K0, QB0, QB1, K1 = 96, 64, 16, 144
    S0, S1 = 128, 176
    P0, P1 = 48, 56
    V0, V1 = 96, 144
    def kreads(ib, base):
        r = []
        for t in range(4):
            for u in range(2):
                cidx = 2 * t + u
                r.append(lambda cidx=cidx: S.ds_read("ds_read_b128", v(base + 4 * cidx, 4), v(2 + cidx), ib * 8192))
        return r
    def vreads(ib, base):
        r = []
        for u in range(2):
            for tp in range(4):
                for jj in range(2):
                    r.append(lambda tp=tp, u=u, jj=jj: S.ds_read("ds_read_b64_tr_b16", v(base + 4 * (2 * tp + u) + 2 * jj, 2),
                                                                v(10 + tp), ib * 8192 + u * 4096 + jj * 2048))
        return r

    pfi = 0
    for ks in range(32):
        sub = ks % 2
        if sub == 1:
            S.barrier()
        fill = []
        if ks + 1 < 32:
            fill += reads(ks + 1)
            if pfi < len(pf) and ks in pf_at:
                fill.append(pf[pfi]); pfi += 1
            interleave(S, mfmas(ks, std), fill, 2)
        else:
            fill += kv_addr_code() + kreads(0, K0) + v_addr_code()
            interleave(S, mfmas(ks, last), fill, [8, 8, 4, 4, 6, 6, 6, 6])

    def cvt(dst, src, n):
        return [lambda i=i: S.valu("v_cvt_pk_bf16_f32", v(dst + i), v(src + 2 * i), v(src + 2 * i + 1)) for i in range(n)]
    def smf(acc, kb, qb):
        m = []
        for cidx in range(8):
            m.append(lambda cidx=cidx: S.mfma(v(acc, 16), v(kb + 4 * cidx, 4), v(qb + 4 * cidx, 4), 0 if cidx == 0 else v(acc, 16)))
        return m
    def softmax(acc, pdst, tm):
        c = []
        a = lambda *x, **k: c.append(lambda: S.valu(*x, **k))
        m, m2, t, t2 = [v(tm + i) for i in range(4)]
        a("v_max3_f32", m, v(acc), v(acc + 1), v(acc + 2))
        a("v_max3_f32", m2, v(acc + 3), v(acc + 4), v(acc + 5))
        a("v_max3_f32", m, m, v(acc + 6), v(acc + 7))
        a("v_max3_f32", m2, m2, v(acc + 8), v(acc + 9))
        a("v_max3_f32", m, m, v(acc + 10), v(acc + 11))
        a("v_max3_f32", m2, m2, v(acc + 12), v(acc + 13))
        a("v_max3_f32", m, m, v(acc + 14), v(acc + 15))
        a("v_max_f32", m, m, m2)
        a("v_mov_b32", m2, m)
        a("v_permlane32_swap_b32", m2, m)
        a("v_max_f32", m, m, m2)
        a("v_mul_f32", m, "s76", m)
        for r in range(16):
            a("v_fma_f32", v(acc + r), v(acc + r), "s76", "-" + m)
        for r in range(16):
            a("v_exp_f32", v(acc + r), v(acc + r))
        a("v_add_f32", t, v(acc), v(acc + 1))
        a("v_add_f32", t2, v(acc + 2), v(acc + 3))
        for r in range(4, 16, 2):
            a("v_add_f32", t, t, v(acc + r))
            a("v_add_f32", t2, t2, v(acc + r + 1))
        a("v_add_f32", t, t, t2)
        a("v_mov_b32", t2, t)
        a("v_permlane32_swap_b32", t2, t)
        a("v_add_f32", t, t, t2)
        a("v_rcp_f32", t, t)
        for r in range(16):
            a("v_mul_f32", v(acc + r), v(acc + r), t)
        for r in range(8):
            a("v_cvt_pk_bf16_f32", v(pdst + r), v(acc + 2 * r), v(acc + 2 * r + 1))
        return c
    def pvmf(otiles, vb, pb):
        m = []
        for u in range(2):
            for tp in range(4):
                m.append(lambda tp=tp, u=u: S.mfma(v(otiles[tp], 16), v(vb + 4 * (2 * tp + u), 4), v(pb + 4 * u, 4),
                                                   0 if u == 0 else v(otiles[tp], 16)))
        return m
    stflags = cfg.get("stflags", "")
    def ostore(otiles, tmp, so_lo, so_hi):
        c = []
        for tp in range(4):
            for r2 in range(2):
                f = 2 * tp + r2
                d = tmp + 4 * f
                for i in range(4):
                    c.append(lambda d=d, i=i, tp=tp, r2=r2: S.valu("v_cvt_pk_bf16_f32", v(d + i), v(otiles[tp] + 8 * r2 + 2 * i),
                                                                 v(otiles[tp] + 8 * r2 + 2 * i + 1)))
                c.append(lambda d=d, f=f: S.buf_store("buffer_store_dwordx4", v(d, 4), "v0", "s[64:67]",
                                                      so_lo if f < 4 else so_hi, (f % 4) * 1024, flags=stflags))
        return c
    for f in cvt(QB0, ACC(0, 0), 32): f()
    interleave(S, smf(S0, K0, QB0), kreads(1, K1) + cvt(QB1, ACC(1, 0), 32), 5)
    S.barrier()
    sm0 = softmax(S0, P0, 2)
    interleave(S, smf(S1, K1, QB1), vreads(0, V0) + sm0[:40], [2, 2, 2, 2, 2, 2, 2, 2])
    for f in sm0[40:]: f()
    O0 = [192, 208, 224, 240]
    O1 = [64, 80, 16, 32]
    sm1 = softmax(S1, P1, 6)
    interleave(S, pvmf(O0, V0, P0), vreads(1, V1) + sm1, 8)
    S.valu("v_lshlrev_b32", "v0", 4, l)
    interleave(S, pvmf(O1, V1, P1), ostore(O0, 96, "s70", "s72"), 5)
    for f in ostore(O1, 128, "s71", "s73"): f()
    S.endpgm()

def gen_k1(cfg):
    P = Stream("k1pro"); k1_prologue(P, cfg)
    P.salu("s_cmp_ge_u32", "s43", 4)
    P.branch("s_cbranch_scc1", "K1_LOADER")
    C = Stream("k1cons"); k1_consumer(C, cfg)
    L = Stream("k1load"); k1_loader(L, cfg)
    PC = Stream(); PC.ins = P.ins + C.ins
    pc = PC.finalize()
    PL = Stream(); PL.ins = [i for i in P.ins] + [Inst("K1_LOADER:", "label")] + L.ins
    pl = PL.finalize()
    idx = [k for k, i in enumerate(pl) if i.kind == "label" and i.text == "K1_LOADER:"][0]
    txt = render(pc) + "\n" + render(pl[idx:]) + "\nK1_DONE:\n    s_endpgm\n"
    return txt

def gen_k2(cfg):
    S = Stream("k2")
    D = cfg.get("k2_depth", 4)
    R = D + 1
    S.salu("s_cmp_ge_u32", "s2", 256)
    S.branch("s_cbranch_scc1", "K2_DONE")
    S.smem("s[16:17]", "s[0:1]", 32)
    S.smem("s[18:19]", "s[0:1]", 72)
    S.smem("s[36:37]", "s[0:1]", 80)
    S.smem("s[38:39]", "s[0:1]", 96)
    S.salu("s_and_b32", "s44", "s2", 7)
    S.salu("s_lshr_b32", "s45", "s2", 3)
    S.salu("s_lshr_b32", "s40", "s44", 2)
    S.salu("s_and_b32", "s44", "s44", 3)
    S.salu("s_lshl_b32", "s44", "s44", 2)
    S.salu("s_lshr_b32", "s41", "s45", 3)
    S.salu("s_add_u32", "s41", "s41", "s44")
    S.salu("s_and_b32", "s42", "s45", 7)
    S.valu("v_lshrrev_b32", "v1", 6, "v0")
    S.valu("v_readfirstlane_b32", "s43", "v1")
    S.valu("v_and_b32", "v1", 63, "v0")
    S.salu("s_cmp_eq_u32", "s40", 0)
    S.salu("s_cselect_b64", "s[16:17]", "s[16:17]", "s[18:19]")
    S.salu("s_lshl_b32", "s44", "s42", 7)
    S.salu("s_lshl_b32", "s45", "s43", 19)
    S.salu("s_add_u32", "s44", "s44", "s45")
    make_srd(S, 48, 16, 17, "s44", 4096 * 1024)
    S.salu("s_lshl_b32", "s44", "s40", 23)
    S.salu("s_lshl_b32", "s45", "s41", 19)
    S.salu("s_add_u32", "s44", "s44", "s45")
    S.salu("s_lshl_b32", "s45", "s43", 15)
    S.salu("s_add_u32", "s44", "s44", "s45")
    make_srd(S, 52, 38, 39, "s44", 2 * 32 * 262144)
    S.salu("s_lshl_b32", "s44", "s41", 17)
    S.salu("s_lshl_b32", "s45", "s40", 10)
    S.salu("s_add_u32", "s44", "s44", "s45")
    S.salu("s_lshl_b32", "s45", "s42", 7)
    S.salu("s_add_u32", "s44", "s44", "s45")
    make_srd(S, 56, 36, 37, "s44", 1024 * 2048)
    l = "v1"
    S.valu("v_lshrrev_b32", "v3", 3, l)
    S.valu("v_bfe_u32", "v4", l, 4, 1)
    S.valu("v_lshlrev_b32", "v4", 2, "v4")
    S.valu("v_and_b32", "v5", 7, l)
    S.valu("v_xor_b32", "v4", "v4", "v5")
    S.valu("v_lshlrev_b32", "v4", 4, "v4")
    S.valu("v_lshlrev_b32", "v3", 10, "v3")
    S.valu("v_add_u32", "v2", "v3", "v4")
    S.valu("v_lshlrev_b32", "v3", 4, l)
    S.salu("s_mul_i32", "s46", "s43", R * 2048)
    S.valu("v_bfe_u32", "v6", l, 2, 2)
    S.valu("v_lshrrev_b32", "v7", 5, l)
    S.valu("v_lshlrev_b32", "v7", 2, "v7")
    S.valu("v_add_u32", "v7", "v7", "v6")
    S.valu("v_lshlrev_b32", "v7", 7, "v7")
    S.valu("v_add_u32", "v7", "s46", "v7")
    S.valu("v_bfe_u32", "v8", l, 4, 1)
    S.valu("v_lshlrev_b32", "v8", 5, "v8")
    S.valu("v_add_u32", "v7", "v7", "v8")
    S.valu("v_and_b32", "v8", 3, l)
    S.valu("v_lshlrev_b32", "v8", 3, "v8")
    S.valu("v_add_u32", "v7", "v7", "v8")
    S.valu("v_bfe_u32", "v6", l, 3, 1)
    S.valu("v_lshlrev_b32", "v6", 6, "v6")
    S.valu("v_add_u32", "v4", "v7", "v6")
    S.valu("v_xor_b32", "v6", 64, "v6")
    S.valu("v_add_u32", "v5", "v7", "v6")
    OB = 16
    NOB = D + 1
    AB = OB + 8 * NOB
    ACC = 128
    assert AB + 16 <= ACC
    ldflags = cfg.get("k2_ldflags", "")
    def issue(n):
        slot = n % R
        for e in range(2):
            S.salu("s_add_u32", "m0", "s46", slot * 2048 + e * 1024)
            S.salu("s_mov_b32", "s47", (16 * n + 8 * e) * 1024)
            S.buf_dma("v2", "s[48:51]", "s47", tok=f"w{n}", flags=ldflags)
        ob = OB + 8 * (n % NOB)
        for ib in range(2):
            S.salu("s_mov_b32", "s47", n * 1024 + ib * 262144)
            S.buf_load("buffer_load_dwordx4", v(ob + 4 * ib, 4), "v3", "s[52:55]", "s47", tok=f"o{n}", flags=ldflags)
    def areads(n):
        slot = n % R
        ab = AB + 8 * (n % 2)
        S.wait_vm_tok(f"w{n}")
        for nt2 in range(2):
            for jj in range(2):
                S.ds_read("ds_read_b64_tr_b16", v(ab + 4 * nt2 + 2 * jj, 2), v(4 + nt2), slot * 2048 + jj * 1024)
    NS = 32
    for n in range(D): issue(n)
    areads(0)
    for n in range(NS):
        ab = AB + 8 * (n % 2); ob = OB + 8 * (n % NOB)
        def mf(nt2, ib):
            S.mfma(v(ACC + 32 * nt2 + 16 * ib, 16), v(ab + 4 * nt2, 4), v(ob + 4 * ib, 4),
                   0 if n == 0 else v(ACC + 32 * nt2 + 16 * ib, 16))
        mf(0, 0)
        if n + D < NS: issue(n + D)
        mf(0, 1)
        if n + 1 < NS: areads(n + 1)
        mf(1, 0)
        mf(1, 1)
    S.barrier()
    S.salu("s_mul_i32", "s46", "s43", 17408)
    S.valu("v_and_b32", "v6", 31, l)
    S.valu("v_mul_u32_u24", "v6", 272, "v6")
    S.valu("v_lshrrev_b32", "v7", 5, l)
    S.valu("v_lshlrev_b32", "v7", 4, "v7")
    S.valu("v_add_u32", "v6", "v6", "v7")
    S.valu("v_add_u32", "v6", "s46", "v6")
    for nt2 in range(2):
        for ib in range(2):
            for q in range(4):
                S.ds_write("ds_write_b128", "v6", v(ACC + 32 * nt2 + 16 * ib + 4 * q, 4), ib * 32 * 272 + (32 * nt2 + 8 * q) * 4)
    S.wait(lgkm=0)
    S.barrier()
    S.valu("v_lshrrev_b32", "v6", 3, "v0")
    S.valu("v_and_b32", "v7", 7, "v0")
    S.valu("v_mul_u32_u24", "v8", 272, "v6")
    S.valu("v_lshlrev_b32", "v9", 5, "v7")
    S.valu("v_add_u32", "v8", "v8", "v9")
    S.valu("v_add_u32", "v9", 69632, "v8")
    for w in range(8):
        base = "v8" if w < 4 else "v9"
        S.ds_read("ds_read_b128", v(16 + 8 * w, 4), base, (w % 4) * 17408)
        S.ds_read("ds_read_b128", v(16 + 8 * w + 4, 4), base, (w % 4) * 17408 + 16)
    for w in range(1, 8):
        for i in range(8):
            S.valu("v_add_f32", v(16 + i), v(16 + i), v(16 + 8 * w + i))
    for i in range(4):
        S.valu("v_cvt_pk_bf16_f32", v(12 + i), v(16 + 2 * i), v(16 + 2 * i + 1))
    S.valu("v_lshlrev_b32", "v6", 11, "v6")
    S.valu("v_lshlrev_b32", "v7", 4, "v7")
    S.valu("v_add_u32", "v6", "v6", "v7")
    S.buf_store("buffer_store_dwordx4", "v[12:15]", "v6", "s[56:59]")
    S.endpgm()
    txt = render(S.finalize()) + "\nK2_DONE:\n    s_endpgm\n"
    lds = max(8 * R * 2048, 8 * 17408)
    return txt, lds

def kernel_wrap(label, body):
    return f""".globl {label}
.p2align 8
.type {label},@function
{label}:
{body}
"""
def desc(label, vgpr, sgpr):
    return f""".p2align 6
.amdhsa_kernel {label}
  .amdhsa_next_free_vgpr {vgpr}
  .amdhsa_next_free_sgpr {sgpr}
  .amdhsa_accum_offset {vgpr}
  .amdhsa_group_segment_fixed_size 0
  .amdhsa_kernarg_size 104
  .amdhsa_user_sgpr_count 2
  .amdhsa_user_sgpr_kernarg_segment_ptr 1
  .amdhsa_system_sgpr_workgroup_id_x 1
.end_amdhsa_kernel
"""

def generate(cfg):
    k1 = gen_k1(cfg)
    k2, lds2 = gen_k2(cfg)
    hdr = []
    order = cfg.get("launches", ["k1", "k2"])
    for k in order:
        if k == "k1": hdr.append(f"; @launch kernel=attn_k1_kernel grid=(256,1,1) block=(512,1,1) lds=163840")
        if k == "k2": hdr.append(f"; @launch kernel=attn_k2_kernel grid=(256,1,1) block=(512,1,1) lds={lds2}")
    txt = "\n".join(hdr) + "\n"
    txt += '.amdgcn_target "amdgcn-amd-amdhsa--gfx950"\n.text\n'
    txt += kernel_wrap("attn_k1_kernel", k1)
    txt += kernel_wrap("attn_k2_kernel", k2)
    txt += '.section .rodata,"a"\n'
    txt += desc("attn_k1_kernel", 256, 96)
    txt += desc("attn_k2_kernel", 192, 96)
    return txt

if __name__ == "__main__":
    import json
    cfg = {}
    out = f"cdna_kernels/{NAME}.s"
    for a in sys.argv[1:]:
        if a.startswith("-o"): out = a[2:]
        else:
            k, val = a.split("=", 1)
            try: val = json.loads(val)
            except Exception: pass
            cfg[k] = val
    open(out, "w").write(generate(cfg))
    print("wrote", out)
```

```python
from asmlib import *

NS2 = 4
PB_OFF = 32 << 20
FL_OFF = 56 << 20

def interleave(S, mf, fill, per_gap, lead=0):
    fi = 0
    for _ in range(min(lead, len(fill))):
        fill[fi](); fi += 1
    for k, m in enumerate(mf):
        m()
        n = per_gap[k] if isinstance(per_gap, (list, tuple)) else per_gap
        for _ in range(n):
            if fi < len(fill):
                fill[fi](); fi += 1
    while fi < len(fill):
        fill[fi](); fi += 1

def add64(S, dlo, plo, phi, off):
    S.salu("s_add_u32", s(dlo), s(plo), off)
    S.salu("s_addc_u32", s(dlo + 1), s(phi), 0)

def srd(S, r, plo, phi, off, total):
    add64(S, r, plo, phi, off)
    if isinstance(off, int): S.salu("s_mov_b32", s(r + 2), total - off)
    else: S.salu("s_sub_u32", s(r + 2), total, off)
    S.salu("s_mov_b32", s(r + 3), "0x20000")

def p2_srds(S):
    S.salu("s_lshr_b32", "s80", "s41", 2)
    S.salu("s_and_b32", "s81", "s41", 3)
    S.salu("s_lshl_b32", "s44", "s80", 20)
    S.salu("s_lshl_b32", "s45", "s81", 8)
    S.salu("s_add_u32", "s44", "s44", "s45")
    srd(S, 48, 24, 25, "s44", 4096 * 1024)
    S.salu("s_lshl_b32", "s44", "s40", 23)
    S.salu("s_lshl_b32", "s45", "s42", 20)
    S.salu("s_add_u32", "s44", "s44", "s45")
    S.salu("s_lshl_b32", "s45", "s80", 16)
    S.salu("s_add_u32", "s44", "s44", "s45")
    srd(S, 52, 38, 39, "s44", 16 << 20)
    S.salu("s_lshl_b32", "s82", "s40", 3)
    S.salu("s_add_u32", "s82", "s82", "s42")
    S.salu("s_lshl_b32", "s82", "s82", 2)
    S.salu("s_add_u32", "s82", "s82", "s81")
    S.salu("s_lshl_b32", "s44", "s82", 18)
    S.salu("s_add_u32", "s44", "s44", PB_OFF)
    srd(S, 56, 38, 39, "s44", PB_OFF + (16 << 20))
    S.salu("s_lshl_b32", "s44", "s82", 11)
    S.salu("s_add_u32", "s44", "s44", FL_OFF)
    srd(S, 60, 38, 39, "s44", FL_OFF + (128 << 10))
    S.salu("s_lshl_b32", "s44", "s42", 18)
    S.salu("s_lshl_b32", "s45", "s40", 10)
    S.salu("s_add_u32", "s44", "s44", "s45")
    S.salu("s_lshl_b32", "s45", "s81", 8)
    S.salu("s_add_u32", "s44", "s44", "s45")
    srd(S, 64, 36, 37, "s44", 1024 * 2048)

def p2_loader(S, cfg, ST, rot_sgpr="s79"):
    L = "v1"; t0, t1, t2 = "v2", "v3", "v4"
    S.salu("s_sub_u32", "s44", "s43", 4)
    S.valu("v_lshrrev_b32", t2, 4, L)
    S.valu("v_and_b32", t1, 15, L)
    S.valu("v_lshlrev_b32", t0, 2, t2)
    S.valu("v_xor_b32", t1, t1, t0)
    S.valu("v_lshlrev_b32", t1, 4, t1)
    S.valu("v_lshlrev_b32", t0, 10, t2)
    S.valu("v_add_u32", "v10", t0, t1)
    S.salu("s_lshl_b32", "s45", "s44", 14)
    S.valu("v_add_u32", "v10", "s45", "v10")
    S.valu("v_lshlrev_b32", "v11", 4, L)
    S.salu("s_lshl_b32", "s45", "s44", 18)
    S.valu("v_add_u32", "v11", "s45", "v11")
    S.salu("s_lshl_b32", "s47", "s44", 12)
    fw0 = cfg.get("p2_wfl0", " nt"); fw = cfg.get("p2_wfl", "")
    fo0 = cfg.get("p2_ofl0", ""); fo = cfg.get("p2_ofl", "")
    def issue(st):
        j, half = st // 2, st % 2
        S.salu("s_add_u32", "s13", rot_sgpr, j)
        S.salu("s_and_b32", "s13", "s13", 7)
        S.salu("s_lshl_b32", "s14", "s13", 17)
        slot = st % NS2
        for ii in range(4):
            S.salu("s_add_u32", "m0", "s47", slot * 32768 + ii * 1024)
            S.salu("s_add_u32", "s46", "s14", half * 65536 + ii * 4096)
            S.buf_dma("v10", "s[48:51]", "s46", tok=f"s{st}", flags=fw0 if st < 2 else fw)
        S.salu("s_lshl_b32", "s14", "s13", 13)
        for ii in range(4):
            S.salu("s_add_u32", "m0", "s47", slot * 32768 + 16384 + ii * 1024)
            S.salu("s_add_u32", "s46", "s14", half * 4096 + ii * 1024)
            S.buf_dma("v11", "s[52:55]", "s46", tok=f"s{st}", flags=fo0 if st < 4 else fo)
    issue(0); issue(1)
    S.wait_vm_tok("s0")
    ST.stamp()
    S.barrier()
    issue(2); issue(3)
    for st in range(16):
        if st + 1 < 16: S.wait_vm_tok(f"s{st+1}")
        ST.stamp()
        S.barrier()
        if st + NS2 < 16: issue(st + NS2)

def p2_compute(S, cfg, ST):
    cw = "s43"; l = "v1"
    T = [f"v{n}" for n in range(16, 24)]
    hh, gb, kx, c4, t0, t1, t2, t3 = T
    S.valu("v_lshrrev_b32", hh, 5, l)
    S.valu("v_bfe_u32", gb, l, 4, 1)
    S.valu("v_bfe_u32", kx, l, 2, 2)
    S.valu("v_and_b32", c4, 3, l)
    S.valu("v_and_b32", t0, 1, c4)
    S.valu("v_lshlrev_b32", t0, 4, t0)
    S.valu("v_lshrrev_b32", t1, 1, c4)
    S.valu("v_lshlrev_b32", t1, 3, t1)
    S.valu("v_or_b32", t0, t0, t1)
    S.valu("v_lshlrev_b32", t1, 5, gb)
    S.valu("v_or_b32", t0, t0, t1)
    S.valu("v_lshlrev_b32", t1, 2, hh)
    S.valu("v_add_u32", t1, t1, kx)
    S.valu("v_lshlrev_b32", t1, 8, t1)
    S.valu("v_add_u32", t0, t0, t1)
    S.salu("s_lshr_b32", "s44", cw, 1)
    S.salu("s_lshl_b32", "s44", "s44", 1)
    for a in range(2):
        S.valu("v_add_u32", t1, "s44", kx) if False else None
        S.salu("s_add_u32", "s45", "s44", a)
        S.valu("v_xor_b32", t1, "s45", kx)
        S.valu("v_lshlrev_b32", t1, 6, t1)
        S.valu("v_add_u32", v(2 + a), t0, t1)
        S.valu("v_add_u32", v(4 + a), 65536, v(2 + a))
    S.valu("v_lshlrev_b32", t0, 4, l)
    S.salu("s_and_b32", "s44", cw, 1)
    S.salu("s_lshl_b32", "s44", "s44", 13)
    S.salu("s_add_u32", "s44", "s44", 16384)
    S.valu("v_add_u32", "v6", "s44", t0)
    S.valu("v_add_u32", "v7", 65536, "v6")
    AB = [16, 24]; BB = [32, 40]; ACC = lambda a, b: 64 + 16 * (2 * a + b)
    def reads(ks):
        st, sk = ks // 4, ks % 4
        slot = st % NS2; hi = slot // 2; lo = (slot % 2) * 32768
        buf = ks % 2
        r = []
        def rb(b): return lambda: S.ds_read("ds_read_b128", v(BB[buf] + 4 * b, 4), v(6 + hi), lo + b * 4096 + sk * 1024)
        def ra(a, jj): return lambda: S.ds_read("ds_read_b64_tr_b16", v(AB[buf] + 4 * a + 2 * jj, 2), v(2 + a + 2 * hi), lo + sk * 4096 + jj * 2048)
        return [rb(0), ra(0, 0), ra(0, 1), rb(1), ra(1, 0), ra(1, 1)]
    def mf(ks):
        buf = ks % 2
        return [lambda a=a, b=b: S.mfma(v(ACC(a, b), 16), v(AB[buf] + 4 * a, 4), v(BB[buf] + 4 * b, 4), 0 if ks == 0 else v(ACC(a, b), 16))
                for (a, b) in ((0, 0), (0, 1), (1, 0), (1, 1))]
    ST.stamp()
    S.barrier()
    ST.stamp()
    for f in reads(0): f()
    for ks in range(64):
        if ks % 4 == 3:
            S.wait(lgkm=0)
            S.barrier()
            ST.stamp()
        fill = reads(ks + 1) if ks + 1 < 64 else []
        interleave(S, mf(ks), fill, 2)
    ST.stamp()
    S.valu("v_mov_b32", "v10", 0)
    S.buf_load("buffer_load_dwordx2", "v[8:9]", "v10", "s[68:71]", flags=" sc1")
    S.valu("v_lshlrev_b32", "v11", 4, l)
    S.salu("s_lshl_b32", "s44", "s80", 2)
    S.salu("s_add_u32", "s44", "s44", cw)
    S.salu("s_lshl_b32", "s44", "s44", 12)
    stf = cfg.get("p2_stfl", " sc1")
    for q in range(4):
        S.salu("s_cmp_eq_u32", "s80", q)
        S.branch("s_cbranch_scc1", f"P2_OWN{q}")
        S.salu("s_add_u32", "s45", "s44", q * 65536)
        for i in range(4):
            S.buf_store("buffer_store_dwordx4", v(64 + 16 * q + 4 * i, 4), "v11", "s[56:59]", "s45", i * 1024, flags=stf)
        S.branch("s_branch", f"P2_N{q}")
        S.label(f"P2_OWN{q}")
        S.nop(15)
        for i in range(16):
            S.valu("v_mov_b32", v(48 + i), v(64 + 16 * q + i))
        S.label(f"P2_N{q}")
    S.wait(vm=0)
    ST.stamp()
    S.salu("s_mov_b32", "s83", 0)
    S.label("P2_NONCE")
    S.valu("v_readfirstlane_b32", "s84", "v8")
    S.valu("v_readfirstlane_b32", "s85", "v9")
    S.nop(3)
    S.salu("s_or_b32", "s86", "s84", "s85")
    S.salu("s_cmp_lg_u32", "s86", 0)
    S.branch("s_cbranch_scc1", "P2_NONCE_OK")
    S.salu("s_add_u32", "s83", "s83", 1)
    S.salu("s_cmp_gt_u32", "s83", 200000)
    S.branch("s_cbranch_scc1", "P2_NONCE_OK")
    S.raw("s_sleep 4")
    S.buf_load("buffer_load_dwordx2", "v[8:9]", "v10", "s[68:71]", flags=" sc1")
    S.wait(vm=0)
    S.branch("s_branch", "P2_NONCE")
    S.label("P2_NONCE_OK")
    S.salu("s_lshl_b32", "s45", "s80", 2)
    S.salu("s_add_u32", "s45", "s45", cw)
    S.salu("s_lshl_b32", "s45", "s45", 7)
    S.valu("v_mov_b32", "v12", "s84")
    S.valu("v_mov_b32", "v13", "s85")
    S.valu("v_cmp_eq_u32", "vcc", 0, l)
    S.salu("s_mov_b64", "s[86:87]", "exec")
    S.add(Inst("s_and_b64 exec, exec, vcc", "salu", ["vcc"], ["exec"]))
    S.buf_store("buffer_store_dwordx2", "v[12:13]", "v10", "s[60:63]", "s45", flags=" sc1")
    S.add(Inst("s_mov_b64 exec, s[86:87]", "salu", [], ["exec"]))
    S.valu("v_and_b32", "v14", 3, l)
    S.valu("v_lshlrev_b32", "v14", 9, "v14")
    S.salu("s_lshl_b32", "s45", cw, 7)
    S.salu("s_mov_b32", "s83", 0)
    S.label("P2_POLL")
    S.buf_load("buffer_load_dwordx2", "v[8:9]", "v14", "s[60:63]", "s45", flags=" sc1")
    S.wait(vm=0)
    S.valu("v_cmp_eq_u64", "vcc", "v[8:9]", "v[12:13]")
    S.nop(4)
    S.add(Inst("s_cmp_eq_u64 vcc, exec", "salu", ["vcc"], ["scc"]))
    S.branch("s_cbranch_scc1", "P2_POLL_OK")
    S.salu("s_add_u32", "s83", "s83", 1)
    S.salu("s_cmp_gt_u32", "s83", 200000)
    S.branch("s_cbranch_scc1", "P2_POLL_OK")
    S.raw("s_sleep 2")
    S.branch("s_branch", "P2_POLL")
    S.label("P2_POLL_OK")
    ST.stamp()
    ldf = cfg.get("p2_ldfl", " sc1")
    for i in range(3):
        S.salu("s_add_u32", "s45", "s80", i + 1)
        S.salu("s_and_b32", "s45", "s45", 3)
        S.salu("s_lshl_b32", "s46", "s80", 2)
        S.salu("s_add_u32", "s45", "s45", "s46")
        S.salu("s_lshl_b32", "s45", "s45", 2)
        S.salu("s_add_u32", "s45", "s45", cw)
        S.salu("s_lshl_b32", "s45", "s45", 12)
        for k in range(4):
            S.buf_load("buffer_load_dwordx4", v(128 + 16 * i + 4 * k, 4), "v11", "s[56:59]", "s45", k * 1024, flags=ldf)
    for i in range(3):
        for k in range(16):
            S.valu("v_add_f32", v(48 + k), v(48 + k), v(128 + 16 * i + k))
    for k in range(8):
        S.valu("v_cvt_pk_bf16_f32", v(16 + k), v(48 + 2 * k), v(48 + 2 * k + 1))
    S.valu("v_and_b32", "v10", 31, l)
    S.valu("v_lshlrev_b32", "v10", 11, "v10")
    S.valu("v_lshrrev_b32", "v12", 5, l)
    S.valu("v_lshlrev_b32", "v12", 4, "v12")
    S.valu("v_add_u32", "v10", "v10", "v12")
    S.salu("s_and_b32", "s44", cw, 1)
    S.salu("s_lshl_b32", "s44", "s44", 1)
    S.salu("s_and_b32", "s45", "s80", 1)
    S.salu("s_add_u32", "s44", "s44", "s45")
    S.salu("s_lshl_b32", "s44", "s44", 16)
    S.salu("s_lshr_b32", "s45", cw, 1)
    S.salu("s_lshl_b32", "s45", "s45", 7)
    S.salu("s_add_u32", "s44", "s44", "s45")
    S.salu("s_lshr_b32", "s45", "s80", 1)
    S.salu("s_lshl_b32", "s45", "s45", 6)
    S.salu("s_add_u32", "s44", "s44", "s45")
    S.buf_store("buffer_store_dwordx4", "v[16:19]", "v10", "s[64:67]", "s44", 0)
    S.buf_store("buffer_store_dwordx4", "v[20:23]", "v10", "s[64:67]", "s44", 32)
    ST.stamp()
```

```python
import sys, argparse
from asmlib import *

NAME = "concat_heads__mha_block_cached__gqa_block_cached__near_ridge"

def interleave(S, mf, fill, per_gap, lead=0):
    fi = 0
    for _ in range(min(lead, len(fill))):
        fill[fi](); fi += 1
    for k, m in enumerate(mf):
        m()
        n = per_gap[k] if isinstance(per_gap, (list, tuple)) else per_gap
        for _ in range(n):
            if fi < len(fill):
                fill[fi](); fi += 1
    while fi < len(fill):
        fill[fi](); fi += 1

STAMP_BASE = 80
class Stamper:
    def __init__(self, S, on, vreg=None):
        self.S = S; self.on = on; self.n = 1; self.vreg = vreg
        if on:
            S.wait(lgkm=0)
            S.add(Inst(f"v_writelane_b32 v{vreg}, s98, 0", "valu", ["s98"], [f"v{vreg}"]))
    def stamp(self, real=False):
        if not self.on: return
        S = self.S
        op = "s_memrealtime" if real else "s_memtime"
        S.add(Inst(f"{op} s[100:101]", "smem", [], ["s100", "s101"]))
        S.wait(lgkm=0)
        S.add(Inst(f"v_writelane_b32 v{self.vreg}, s100, {self.n}", "valu", ["s100"], [f"v{self.vreg}"]))
        self.n += 1
    def flush(self, region, vtmp=250):
        if not self.on: return
        S = self.S
        S.wait(vm=0, lgkm=0)
        S.smem("s[78:79]", "s[0:1]", 96)
        S.wait(lgkm=0)
        S.salu("s_add_u32", "s76", "s78", (64 << 20) + region * (1 << 20))
        S.salu("s_addc_u32", "s77", "s79", 0)
        S.salu("s_mov_b32", "s78", 1 << 20)
        S.salu("s_mov_b32", "s79", "0x20000")
        S.salu("s_lshl_b32", "s74", "s2", 11)
        S.salu("s_lshl_b32", "s75", "s43", 8)
        S.salu("s_add_u32", "s74", "s74", "s75")
        a = f"v{vtmp}"
        S.valu("v_mbcnt_lo_u32_b32", a, -1, 0)
        S.valu("v_mbcnt_hi_u32_b32", a, -1, a)
        S.valu("v_lshlrev_b32", a, 2, a)
        S.buf_store("buffer_store_dword", f"v{self.vreg}", a, "s[76:79]", "s74")
        S.wait(vm=0)

def load_ptrs(S, sel_sgpr_p):
    S.smem("s[16:31]", "s[0:1]", 0)
    S.smem("s[32:35]", "s[0:1]", 64)
    S.smem("s[36:37]", "s[0:1]", 80)
    S.smem("s[38:39]", "s[0:1]", 96)

def make_srd(S, srd, ptr_lo, ptr_hi, off_sgpr, total, off_hi=None):
    if isinstance(off_sgpr, int):
        S.salu("s_add_u32", s(srd), s(ptr_lo), off_sgpr)
        S.salu("s_addc_u32", s(srd + 1), s(ptr_hi), 0)
        S.salu("s_mov_b32", s(srd + 2), total - off_sgpr)
    else:
        S.salu("s_add_u32", s(srd), s(ptr_lo), off_sgpr)
        S.salu("s_addc_u32", s(srd + 1), s(ptr_hi), 0)
        S.salu("s_sub_u32", s(srd + 2), total, off_sgpr)
    S.salu("s_mov_b32", s(srd + 3), "0x20000")

NW = 4
NX = 2
WBASE = 65536
XBASE = WBASE + NW * 16384
KSLOT = [0, 16384, 32768, 49152]
VSLOT = [WBASE + 0 * 16384, WBASE + 1 * 16384, XBASE + 0 * 16384, WBASE + 2 * 16384]

def k1_prologue(S, cfg):
    S.salu("s_cmp_ge_u32", "s2", 256)
    S.branch("s_cbranch_scc1", "K1_DONE")
    if cfg.get("stamps", False):
        S.add(Inst("s_memtime s[98:99]", "smem", [], ["s98", "s99"]))
    load_ptrs(S, None)
    S.salu("s_and_b32", "s44", "s2", 7)
    S.salu("s_lshr_b32", "s45", "s2", 3)
    S.salu("s_lshr_b32", "s40", "s44", 2)
    S.salu("s_and_b32", "s44", "s44", 3)
    S.salu("s_lshl_b32", "s44", "s44", 2)
    S.salu("s_and_b32", "s41", "s45", 3)
    S.salu("s_add_u32", "s41", "s41", "s44")
    S.salu("s_lshr_b32", "s42", "s45", 2)
    S.valu("v_lshrrev_b32", "v1", 6, "v0")
    S.valu("v_readfirstlane_b32", "s43", "v1")
    S.valu("v_and_b32", "v1", 63, "v0")
    S.salu("s_cmp_eq_u32", "s40", 0)
    S.salu("s_cselect_b64", "s[16:17]", "s[16:17]", "s[26:27]")
    S.salu("s_cselect_b64", "s[18:19]", "s[18:19]", "s[28:29]")
    S.salu("s_cselect_b64", "s[20:21]", "s[20:21]", "s[30:31]")
    S.salu("s_cselect_b64", "s[22:23]", "s[22:23]", "s[32:33]")
    S.salu("s_lshl_b32", "s44", "s41", 9)
    make_srd(S, 48, 22, 23, "s44", 512 * 8192)
    S.salu("s_lshr_b32", "s44", "s41", 2)
    S.salu("s_lshl_b32", "s44", "s44", 11)
    make_srd(S, 8, 22, 23, "s44", 512 * 8192)
    S.salu("s_lshr_b32", "s12", "s2", 3)
    S.salu("s_lshl_b32", "s44", "s42", 17)
    make_srd(S, 52, 16, 17, "s44", 1024 * 1024)
    S.salu("s_lshl_b32", "s44", "s42", 20)
    S.salu("s_lshl_b32", "s45", "s41", 14)
    S.salu("s_add_u32", "s44", "s44", "s45")
    make_srd(S, 56, 18, 19, "s44", 32 * 262144)
    make_srd(S, 60, 20, 21, "s44", 32 * 262144)
    S.salu("s_lshl_b32", "s45", "s40", 23)
    S.salu("s_add_u32", "s44", "s44", "s45")
    make_srd(S, 64, 38, 39, "s44", 2 * 32 * 262144)

def k1_fast(S, cfg):
    S.salu("s_sub_u32", "s44", "s43", 4)
    L = "v1"
    t0, t1, t2 = "v2", "v3", "v4"
    S.valu("v_lshrrev_b32", t0, 5, L)
    S.valu("v_and_b32", t1, 31, L)
    S.valu("v_lshlrev_b32", t2, 2, t0)
    S.valu("v_xor_b32", "v10", t1, t2)
    S.valu("v_lshlrev_b32", "v10", 4, "v10")
    S.valu("v_xor_b32", "v11", 128, "v10")
    S.valu("v_lshlrev_b32", t2, 13, t0)
    S.salu("s_lshl_b32", "s45", "s44", 16)
    S.valu("v_add_u32", t2, "s45", t2)
    S.valu("v_add_u32", "v10", "v10", t2)
    S.valu("v_add_u32", "v11", "v11", t2)
    S.valu("v_lshrrev_b32", t0, 3, L)
    S.valu("v_and_b32", t1, 7, L)
    S.valu("v_lshrrev_b32", t2, 4, L)
    S.valu("v_xor_b32", "v12", t1, t2)
    S.valu("v_lshlrev_b32", "v12", 4, "v12")
    S.valu("v_xor_b32", "v13", 64, "v12")
    S.valu("v_lshlrev_b32", t0, 10, t0)
    S.salu("s_lshl_b32", "s45", "s44", 15)
    S.valu("v_add_u32", t0, "s45", t0)
    S.valu("v_add_u32", "v12", "v12", t0)
    S.valu("v_add_u32", "v13", "v13", t0)
    S.salu("s_lshl_b32", "s47", "s44", 12)
    if cfg.get("rot", True):
        S.salu("s_and_b32", "s79", "s41", 3)
        S.salu("s_lshl_b32", "s79", "s79", 1)
        S.salu("s_add_u32", "s79", "s79", "s42")
        S.salu("s_and_b32", "s79", "s79", 7)
    else:
        S.salu("s_mov_b32", "s79", 0)
    ldflags = cfg.get("ldflags", " nt")
    kvflags = cfg.get("kvflags", " nt")
    skip = cfg.get("skip", "")
    def dma(voff, srd, base, off, ldsbase, tok, flags):
        S.salu("s_add_u32", "m0", "s47", ldsbase)
        S.salu("s_add_u32", "s46", base, off)
        S.buf_dma(voff, srd, "s46", tok=tok, flags=flags)
    def issue_w(st):
        S.salu("s_add_u32", "s13", "s79", st // 2)
        S.salu("s_and_b32", "s13", "s13", 7)
        S.salu("s_lshl_b32", "s13", "s13", 19)
        for ii in range(4):
            dma("v10" if ii % 2 == 0 else "v11", "s[48:51]", "s13", (st % 2) * 262144 + ii * 16384,
                WBASE + (st % NW) * 16384 + ii * 1024, f"w{st}", cfg.get("ldflags0", ldflags) if st < 2 else ldflags)
    def issue_x(j):
        S.salu("s_add_u32", "s13", "s79", j)
        S.salu("s_and_b32", "s13", "s13", 7)
        S.salu("s_lshl_b32", "s13", "s13", 7)
        for ii in range(4):
            dma("v12" if ii % 2 == 0 else "v13", "s[52:55]", "s13", ii * 8192,
                XBASE + (j % NX) * 16384 + ii * 1024, f"x{j}", cfg.get("ldflags0", ldflags) if j < 2 else ldflags)
    S.valu("v_lshrrev_b32", t2, 4, L)
    S.valu("v_and_b32", t1, 15, L)
    S.valu("v_lshlrev_b32", t0, 8, t2)
    S.salu("s_and_b32", "s45", "s44", 1)
    S.salu("s_lshl_b32", "s45", "s45", 12)
    S.salu("s_lshr_b32", "s46", "s44", 1)
    S.salu("s_lshl_b32", "s46", "s46", 18)
    S.salu("s_add_u32", "s45", "s45", "s46")
    S.valu("v_add_u32", t0, "s45", t0)
    S.valu("v_xor_b32", "v5", t1, t2)
    for ii in range(4):
        S.valu("v_xor_b32", v(14 + ii), 4 * ii, "v5")
        S.valu("v_lshlrev_b32", v(14 + ii), 4, v(14 + ii))
        S.valu("v_add_u32", v(14 + ii), v(14 + ii), t0)
        if ii: S.valu("v_add_u32", v(14 + ii), ii * 1024, v(14 + ii))
    S.valu("v_lshlrev_b32", "v5", 2, t2)
    S.valu("v_xor_b32", "v18", t1, "v5")
    S.valu("v_lshlrev_b32", "v18", 4, "v18")
    S.valu("v_add_u32", "v18", "v18", t0)
    S.salu("s_mov_b32", "s14", 0)
    def issue_k(cw):
        for ii in range(4):
            dma(v(14 + ii), "s[56:59]", "s14", 2 * (cw % 2) * 262144 + (cw // 2) * 8192, KSLOT[cw] + ii * 1024, "k", kvflags)
    VR = 32
    def issue_v(cw):
        for ii in range(4):
            S.salu("s_mov_b32", "s46", 2 * (cw % 2) * 262144 + (cw // 2) * 8192 + ii * 1024)
            S.buf_load("buffer_load_dwordx4", v(VR + 16 * cw + 4 * ii, 4), "v18", "s[60:63]", "s46", tok="v", flags=kvflags)
    S.valu("v_lshlrev_b32", "v19", 4, L)
    S.valu("v_add_u32", "v19", "s47", "v19")
    S.valu("v_add_u32", "v20", 65536, "v19")
    S.valu("v_add_u32", "v21", 131072, "v19")
    def write_v(cw):
        sb = VSLOT[cw]; areg = 19 + sb // 65536
        for ii in range(4):
            S.ds_write("ds_write_b128", v(areg), v(VR + 16 * cw + 4 * ii, 4), sb % 65536 + ii * 1024)

    def body(S, phase, ST):
        def issue(items):
            for it in items:
                if it[0] in skip: continue
                {"w": issue_w, "x": issue_x, "k": issue_k, "v": issue_v}[it[0]](it[1])
        sched = {b: [] for b in range(-2, 17)}
        sched[-2] = [("w", 0), ("x", 0), ("w", 1)]
        sched[-1] = [("w", 2), ("x", 1), ("w", 3)]
        for st in range(0, 16):
            if st + NW < 16: sched[st].append(("w", st + NW))
            if st % 2 == 1 and (st - 1) // 2 + NX < 8: sched[st].append(("x", (st - 1) // 2 + NX))
        items = [[("k", 0), ("k", 1)], [("k", 2), ("k", 3)], [("v", 0), ("v", 1)], [("v", 2), ("v", 3)]]
        if "btab" in cfg:
            bursts = cfg["btab"][phase]
            for bt, its in zip(bursts, items):
                sched[bt] += its
        else:
            bursts = cfg.get("bursts", [0, 3, 6, 9])
            for bt, its in zip(bursts, items):
                sched[min(bt + phase, 11)] += its
        wr = {12: [0], 13: [1, 2], 14: [3]}
        lastv = max(bursts[2:]) if "btab" in cfg else 0
        if lastv >= 11:
            wr = {15: [0, 1, 2, 3]}
        issue(sched[-2])
        ST.stamp()
        S.wait_vm_tok("w0"); S.wait_vm_tok("x0")
        ST.stamp()
        S.barrier()
        issue(sched[-1])
        for st in range(16):
            if st + 1 < 16:
                S.wait_vm_tok(f"w{st+1}")
                S.wait_vm_tok(f"x{(st+1)//2}")
            else:
                S.wait_vm_tok("k")
            if st >= 13: S.wait(lgkm=0)
            ST.stamp()
            S.barrier()
            ST.stamp()
            issue(sched[st])
            for cw in wr.get(st, []):
                if "v" not in skip: write_v(cw)
        if cfg.get("b16", False):
            S.wait(lgkm=0)
            S.barrier()
        ST.stamp(real=True)
        ST.flush(0, 31)
        S.endpgm()
    return body

def k1_consumer(S, cfg):
    cw = "s43"
    l = "v1"
    T = [f"v{n}" for n in range(16, 32)]
    i_, hh, gb, kx, c4, t0, t1, t2 = T[:8]
    S.valu("v_and_b32", i_, 15, l)
    S.valu("v_lshrrev_b32", hh, 5, l)
    S.valu("v_bfe_u32", gb, l, 4, 1)
    S.valu("v_lshrrev_b32", kx, 2, i_)
    S.valu("v_and_b32", c4, 3, l)
    S.valu("v_and_b32", t0, 1, c4)
    S.valu("v_lshlrev_b32", t0, 4, t0)
    S.valu("v_lshrrev_b32", t1, 1, c4)
    S.valu("v_lshlrev_b32", t1, 3, t1)
    S.valu("v_or_b32", t0, t0, t1)
    S.valu("v_lshlrev_b32", t1, 5, gb)
    S.valu("v_or_b32", t0, t0, t1)
    S.valu("v_lshlrev_b32", t1, 3, hh)
    S.valu("v_add_u32", t1, t1, kx)
    S.valu("v_lshlrev_b32", t1, 9, t1)
    S.valu("v_add_u32", t0, t0, t1)
    S.salu("s_lshr_b32", "s44", cw, 1)
    S.salu("s_lshl_b32", "s44", "s44", 8)
    S.valu("v_add_u32", t0, "s44", t0)
    for t in range(4):
        S.valu("v_xor_b32", t1, t, kx)
        S.valu("v_lshlrev_b32", t1, 6, t1)
        S.valu("v_add_u32", v(2 + t), t0, t1)
        S.valu("v_add_u32", v(2 + t), WBASE, v(2 + t))
    S.valu("v_and_b32", t0, 31, l)
    S.valu("v_bfe_u32", t1, l, 1, 3)
    S.valu("v_xor_b32", t1, t1, hh)
    S.valu("v_lshlrev_b32", t0, 7, t0)
    S.salu("s_and_b32", "s44", cw, 1)
    S.salu("s_lshl_b32", "s44", "s44", 13)
    S.salu("s_add_u32", "s44", "s44", XBASE)
    S.valu("v_add_u32", t0, "s44", t0)
    for s4 in range(4):
        S.valu("v_xor_b32", t2, 2 * s4, t1)
        S.valu("v_lshlrev_b32", t2, 4, t2)
        S.valu("v_add_u32", v(10 + s4), t0, t2)
    S.salu("s_and_b32", "s44", cw, 1)
    S.salu("s_lshl_b32", "s44", "s44", 19)
    S.salu("s_lshr_b32", "s45", cw, 1)
    S.salu("s_lshl_b32", "s45", "s45", 13)
    S.salu("s_add_u32", "s70", "s44", "s45")
    S.salu("s_add_u32", "s71", "s70", 262144)
    S.salu("s_add_u32", "s72", "s70", 4096)
    S.salu("s_add_u32", "s73", "s71", 4096)
    def sel4(dst, vals):
        S.salu("s_mov_b32", dst, vals[0])
        for c in range(1, 4):
            S.salu("s_cmp_eq_u32", cw, c)
            S.salu("s_cselect_b32", dst, vals[c], dst)
    sel4("s74", KSLOT); sel4("s75", VSLOT)
    import math, struct
    c = (128 ** -0.5) * math.log2(math.e)
    S.salu("s_mov_b32", "s76", hex(struct.unpack("<I", struct.pack("<f", c))[0]))

    ABUF = [16, 32]; BBUF = [48, 56]
    ACC = lambda ib, t: 128 + 64 * ib + 16 * t
    def reads(ks):
        st, sub = ks // 2, ks % 2
        j, s4 = ks // 4, ks % 4
        slot = st % NW
        buf = ks % 2
        r = []
        def rb(ib):
            return lambda: S.ds_read("ds_read_b128", v(BBUF[buf] + 4 * ib, 4), v(10 + s4), (j % NX) * 16384 + ib * 4096)
        def ra(t, jj):
            base = 2 + t
            return lambda: S.ds_read("ds_read_b64_tr_b16", v(ABUF[buf] + 4 * t + 2 * jj, 2), v(base),
                                     (slot % 4) * 16384 + sub * 8192 + jj * 2048)
        r += [rb(0), ra(0, 0), ra(0, 1), rb(1), ra(1, 0), ra(1, 1), ra(2, 0), ra(2, 1), ra(3, 0), ra(3, 1)]
        return r
    def mfmas(ks, order):
        buf = ks % 2
        m = []
        for (t, ib) in order:
            first = (ks == 0)
            def f(t=t, ib=ib, first=first):
                S.mfma(v(ACC(ib, t), 16), v(ABUF[buf] + 4 * t, 4), v(BBUF[buf] + 4 * ib, 4), 0 if first else v(ACC(ib, t), 16))
            m.append(f)
        return m
    ST = Stamper(S, cfg.get("stamps", False), 15)
    ST.stamp()
    S.barrier()
    ST.stamp()
    for f in reads(0): f()
    std = [(0, 0), (0, 1), (1, 0), (1, 1), (2, 0), (2, 1), (3, 0), (3, 1)]
    last = [(0, 0), (1, 0), (2, 0), (3, 0), (0, 1), (1, 1), (2, 1), (3, 1)]
    def kv_addr_code():
        c = []
        a = lambda *x, **k: c.append(lambda: S.valu(*x, **k))
        a("v_and_b32", "v0", 15, l)
        a("v_lshrrev_b32", "v14", 5, l)
        a("v_xor_b32", "v0", "v0", "v14")
        a("v_lshlrev_b32", "v0", 4, "v0")
        a("v_and_b32", "v2", 31, l)
        a("v_lshlrev_b32", "v2", 8, "v2")
        a("v_add_u32", "v2", "s74", "v2")
        a("v_or_b32", "v2", "v2", "v0")
        for cidx in range(1, 8):
            a("v_xor_b32", v(2 + cidx), (2 * cidx) << 4, "v2")
        return c
    def v_addr_code():
        c = []
        a = lambda *x, **k: c.append(lambda: S.valu(*x, **k))
        a("v_bfe_u32", "v0", l, 2, 2)
        a("v_lshrrev_b32", "v14", 5, l)
        a("v_lshlrev_b32", "v14", 2, "v14")
        a("v_add_u32", "v14", "v14", "v0")
        a("v_lshlrev_b32", "v14", 8, "v14")
        a("v_add_u32", "v14", "s75", "v14")
        a("v_bfe_u32", "v10", l, 4, 1)
        a("v_lshlrev_b32", "v10", 5, "v10")
        a("v_add_u32", "v14", "v14", "v10")
        a("v_and_b32", "v10", 3, l)
        a("v_lshlrev_b32", "v10", 3, "v10")
        a("v_add_u32", "v14", "v14", "v10")
        a("v_lshlrev_b32", "v0", 6, "v0")
        for tp in range(4):
            a("v_xor_b32", v(10 + tp), tp << 6, "v0")
            a("v_add_u32", v(10 + tp), v(10 + tp), "v14")
        return c

    K0, QB0, QB1, K1 = 96, 64, 16, 144
    S0, S1 = 128, 176
    P0, P1 = 48, 56
    V0, V1 = 96, 144
    def kreads(ib, base):
        r = []
        for t in range(4):
            for u in range(2):
                cidx = 2 * t + u
                r.append(lambda cidx=cidx: S.ds_read("ds_read_b128", v(base + 4 * cidx, 4), v(2 + cidx), ib * 8192))
        return r
    def vreads(ib, base):
        r = []
        for u in range(2):
            for tp in range(4):
                for jj in range(2):
                    r.append(lambda tp=tp, u=u, jj=jj: S.ds_read("ds_read_b64_tr_b16", v(base + 4 * (2 * tp + u) + 2 * jj, 2),
                                                                v(10 + tp), ib * 8192 + u * 4096 + jj * 2048))
        return r

    for ks in range(32):
        sub = ks % 2
        if ks % 2 == 0: ST.stamp()
        if sub == 1:
            S.wait(lgkm=0)
            S.barrier()
        fill = []
        if cfg.get("nocompute", False) and ks + 1 < 32:
            continue
        if ks + 1 < 32:
            fill += reads(ks + 1)
            interleave(S, mfmas(ks, std), fill, 2)
        else:
            fill += kv_addr_code() + kreads(0, K0) + v_addr_code()
            interleave(S, mfmas(ks, last), fill, [8, 8, 4, 4, 6, 6, 6, 6])

    def cvt(dst, src, n):
        return [lambda i=i: S.valu("v_cvt_pk_bf16_f32", v(dst + i), v(src + 2 * i), v(src + 2 * i + 1)) for i in range(n)]
    def smf(acc, kb, qb):
        m = []
        for cidx in range(8):
            m.append(lambda cidx=cidx: S.mfma(v(acc, 16), v(kb + 4 * cidx, 4), v(qb + 4 * cidx, 4), 0 if cidx == 0 else v(acc, 16)))
        return m
    def softmax(acc, pdst, tm):
        c = []
        a = lambda *x, **k: c.append(lambda: S.valu(*x, **k))
        m, m2, t, t2 = [v(tm + i) for i in range(4)]
        a("v_max3_f32", m, v(acc), v(acc + 1), v(acc + 2))
        a("v_max3_f32", m2, v(acc + 3), v(acc + 4), v(acc + 5))
        a("v_max3_f32", m, m, v(acc + 6), v(acc + 7))
        a("v_max3_f32", m2, m2, v(acc + 8), v(acc + 9))
        a("v_max3_f32", m, m, v(acc + 10), v(acc + 11))
        a("v_max3_f32", m2, m2, v(acc + 12), v(acc + 13))
        a("v_max3_f32", m, m, v(acc + 14), v(acc + 15))
        a("v_max_f32", m, m, m2)
        a("v_mov_b32", m2, m)
        a("v_permlane32_swap_b32", m2, m)
        a("v_max_f32", m, m, m2)
        a("v_mul_f32", m, "s76", m)
        for r in range(16):
            a("v_fma_f32", v(acc + r), v(acc + r), "s76", "-" + m)
        for r in range(16):
            a("v_exp_f32", v(acc + r), v(acc + r))
        a("v_add_f32", t, v(acc), v(acc + 1))
        a("v_add_f32", t2, v(acc + 2), v(acc + 3))
        for r in range(4, 16, 2):
            a("v_add_f32", t, t, v(acc + r))
            a("v_add_f32", t2, t2, v(acc + r + 1))
        a("v_add_f32", t, t, t2)
        a("v_mov_b32", t2, t)
        a("v_permlane32_swap_b32", t2, t)
        a("v_add_f32", t, t, t2)
        a("v_rcp_f32", t, t)
        for r in range(16):
            a("v_mul_f32", v(acc + r), v(acc + r), t)
        for r in range(8):
            a("v_cvt_pk_bf16_f32", v(pdst + r), v(acc + 2 * r), v(acc + 2 * r + 1))
        return c
    def pvmf(otiles, vb, pb):
        m = []
        for u in range(2):
            for tp in range(4):
                m.append(lambda tp=tp, u=u: S.mfma(v(otiles[tp], 16), v(vb + 4 * (2 * tp + u), 4), v(pb + 4 * u, 4),
                                                   0 if u == 0 else v(otiles[tp], 16)))
        return m
    stflags = cfg.get("stflags", "")
    def ostore(otiles, tmp, so_lo, so_hi):
        c = []
        for tp in range(4):
            for r2 in range(2):
                f = 2 * tp + r2
                d = tmp + 4 * f
                for i in range(4):
                    c.append(lambda d=d, i=i, tp=tp, r2=r2: S.valu("v_cvt_pk_bf16_f32", v(d + i), v(otiles[tp] + 8 * r2 + 2 * i),
                                                                 v(otiles[tp] + 8 * r2 + 2 * i + 1)))
                c.append(lambda d=d, f=f: S.buf_store("buffer_store_dwordx4", v(d, 4), "v0", "s[64:67]",
                                                      so_lo if f < 4 else so_hi, (f % 4) * 1024, flags=stflags))
        return c
    ST.stamp()
    for f in cvt(QB0, ACC(0, 0), 32): f()
    interleave(S, smf(S0, K0, QB0), kreads(1, K1) + cvt(QB1, ACC(1, 0), 32), 5)
    if cfg.get("b16", False): S.barrier()
    ST.stamp()
    sm0 = softmax(S0, P0, 2)
    interleave(S, smf(S1, K1, QB1), vreads(0, V0) + sm0[:40], [2, 2, 2, 2, 2, 2, 2, 2])
    for f in sm0[40:]: f()
    O0 = [192, 208, 224, 240]
    O1 = [64, 80, 16, 32]
    sm1 = softmax(S1, P1, 6)
    interleave(S, pvmf(O0, V0, P0), vreads(1, V1) + sm1, 8)
    S.valu("v_lshlrev_b32", "v0", 4, l)
    interleave(S, pvmf(O1, V1, P1), ostore(O0, 96, "s70", "s72"), 5)
    for f in ostore(O1, 128, "s71", "s73"): f()
    ST.stamp()
    if cfg.get("stamps", False):
        S.wait(vm=0)
        ST.stamp()
    ST.flush(0, 14)
    S.endpgm()

def gen_k1(cfg):
    P = Stream("k1pro"); k1_prologue(P, cfg)
    P.salu("s_cmp_ge_u32", "s43", 4)
    P.branch("s_cbranch_scc1", "K1_FAST")
    parts = []
    X = Stream(); k1_consumer(X, cfg)
    A = Stream(); A.ins = list(P.ins) + X.ins
    parts.append(render(A.finalize()))
    nph = cfg.get("nphase", 1)
    Lc = Stream()
    body = k1_fast(Lc, cfg)
    setup = list(Lc.ins)
    if nph > 1:
        Lc.salu("s_lshr_b32", "s15", "s12", cfg.get("phase_shift", 0))
        Lc.salu("s_and_b32", "s15", "s15", nph - 1)
        for ph in range(1, nph):
            Lc.salu("s_cmp_eq_u32", "s15", ph)
            Lc.branch("s_cbranch_scc1", f"K1_PH{ph}")
    head = list(Lc.ins)
    for ph in range(nph):
        Lc.ins = []
        ST = Stamper(Lc, cfg.get("stamps", False), 30)
        ST.stamp(); ST.stamp(real=True)
        body(Lc, ph, ST)
        lab = f"K1_PH{ph}"
        A = Stream(); A.ins = list(P.ins) + [Inst("K1_FAST:", "label")] + head + [Inst(lab + ":", "label")] + list(Lc.ins)
        f = A.finalize()
        key = "K1_FAST:" if ph == 0 else lab + ":"
        idx = [k for k, i in enumerate(f) if i.kind == "label" and i.text == key][0]
        parts.append(render(f[idx:]))
    return "\n".join(parts) + "\nK1_DONE:\n    s_endpgm\n"

def gen_k2(cfg):
    S = Stream("k2")
    D = cfg.get("k2_depth", 4)
    R = D + 1
    S.salu("s_cmp_ge_u32", "s2", 256)
    S.branch("s_cbranch_scc1", "K2_DONE")
    if cfg.get("stamps", False):
        S.add(Inst("s_memtime s[98:99]", "smem", [], ["s98", "s99"]))
    S.smem("s[16:17]", "s[0:1]", 32)
    S.smem("s[18:19]", "s[0:1]", 72)
    S.smem("s[36:37]", "s[0:1]", 80)
    S.smem("s[38:39]", "s[0:1]", 96)
    S.salu("s_and_b32", "s44", "s2", 7)
    S.salu("s_lshr_b32", "s45", "s2", 3)
    S.salu("s_lshr_b32", "s40", "s44", 2)
    S.salu("s_and_b32", "s44", "s44", 3)
    S.salu("s_lshl_b32", "s44", "s44", 2)
    S.salu("s_lshr_b32", "s41", "s45", 3)
    S.salu("s_add_u32", "s41", "s41", "s44")
    S.salu("s_and_b32", "s42", "s45", 7)
    S.valu("v_lshrrev_b32", "v1", 6, "v0")
    S.valu("v_readfirstlane_b32", "s43", "v1")
    S.valu("v_and_b32", "v1", 63, "v0")
    S.salu("s_cmp_eq_u32", "s40", 0)
    S.salu("s_cselect_b64", "s[16:17]", "s[16:17]", "s[18:19]")
    S.salu("s_lshl_b32", "s44", "s42", 7)
    S.salu("s_lshl_b32", "s45", "s43", 19)
    S.salu("s_add_u32", "s44", "s44", "s45")
    make_srd(S, 48, 16, 17, "s44", 4096 * 1024)
    S.salu("s_lshl_b32", "s44", "s40", 23)
    S.salu("s_lshl_b32", "s45", "s41", 19)
    S.salu("s_add_u32", "s44", "s44", "s45")
    S.salu("s_lshl_b32", "s45", "s43", 15)
    S.salu("s_add_u32", "s44", "s44", "s45")
    make_srd(S, 52, 38, 39, "s44", 2 * 32 * 262144)
    S.salu("s_lshl_b32", "s44", "s41", 17)
    S.salu("s_lshl_b32", "s45", "s40", 10)
    S.salu("s_add_u32", "s44", "s44", "s45")
    S.salu("s_lshl_b32", "s45", "s42", 7)
    S.salu("s_add_u32", "s44", "s44", "s45")
    make_srd(S, 56, 36, 37, "s44", 1024 * 2048)
    l = "v1"
    S.valu("v_lshrrev_b32", "v3", 3, l)
    S.valu("v_bfe_u32", "v4", l, 4, 1)
    S.valu("v_lshlrev_b32", "v4", 2, "v4")
    S.valu("v_and_b32", "v5", 7, l)
    S.valu("v_xor_b32", "v4", "v4", "v5")
    S.valu("v_lshlrev_b32", "v4", 4, "v4")
    S.valu("v_lshlrev_b32", "v3", 10, "v3")
    S.valu("v_add_u32", "v2", "v3", "v4")
    S.valu("v_lshlrev_b32", "v3", 4, l)
    S.salu("s_mul_i32", "s46", "s43", R * 2048)
    S.valu("v_bfe_u32", "v6", l, 2, 2)
    S.valu("v_lshrrev_b32", "v7", 5, l)
    S.valu("v_lshlrev_b32", "v7", 2, "v7")
    S.valu("v_add_u32", "v7", "v7", "v6")
    S.valu("v_lshlrev_b32", "v7", 7, "v7")
    S.valu("v_add_u32", "v7", "s46", "v7")
    S.valu("v_bfe_u32", "v8", l, 4, 1)
    S.valu("v_lshlrev_b32", "v8", 5, "v8")
    S.valu("v_add_u32", "v7", "v7", "v8")
    S.valu("v_and_b32", "v8", 3, l)
    S.valu("v_lshlrev_b32", "v8", 3, "v8")
    S.valu("v_add_u32", "v7", "v7", "v8")
    S.valu("v_bfe_u32", "v6", l, 3, 1)
    S.valu("v_lshlrev_b32", "v6", 6, "v6")
    S.valu("v_add_u32", "v4", "v7", "v6")
    S.valu("v_xor_b32", "v6", 64, "v6")
    S.valu("v_add_u32", "v5", "v7", "v6")
    if cfg.get("k2_rot", True):
        S.salu("s_lshl_b32", "s60", "s42", 2)
        S.salu("s_and_b32", "s61", "s41", 3)
        S.salu("s_lshl_b32", "s61", "s61", 3)
        S.salu("s_add_u32", "s60", "s60", "s61")
    else:
        S.salu("s_mov_b32", "s60", 0)
    OB = 16
    NOB = D + 1
    AB = OB + 8 * NOB
    ACC = 128
    assert AB + 16 <= ACC
    ldflags = cfg.get("k2_ldflags", "")
    def issue(n):
        slot = n % R
        fw = cfg.get("k2_wfl0", " nt") if n < 8 else ldflags
        fo = cfg.get("k2_ofl0", "") if n < 4 else ldflags
        S.salu("s_add_u32", "s62", "s60", n)
        S.salu("s_and_b32", "s62", "s62", 31)
        S.salu("s_lshl_b32", "s63", "s62", 14)
        for e in range(2):
            S.salu("s_add_u32", "m0", "s46", slot * 2048 + e * 1024)
            S.salu("s_add_u32", "s47", "s63", e * 8192)
            S.buf_dma("v2", "s[48:51]", "s47", tok=f"w{n}", flags=fw)
        ob = OB + 8 * (n % NOB)
        S.salu("s_lshl_b32", "s63", "s62", 10)
        for ib in range(2):
            S.salu("s_add_u32", "s47", "s63", ib * 262144)
            S.buf_load("buffer_load_dwordx4", v(ob + 4 * ib, 4), "v3", "s[52:55]", "s47", tok=f"o{n}", flags=fo)
    def areads(n):
        slot = n % R
        ab = AB + 8 * (n % 2)
        S.wait_vm_tok(f"w{n}")
        for nt2 in range(2):
            for jj in range(2):
                S.ds_read("ds_read_b64_tr_b16", v(ab + 4 * nt2 + 2 * jj, 2), v(4 + nt2), slot * 2048 + jj * 1024)
    NS = 32
    ST = Stamper(S, cfg.get("stamps", False), 10)
    ST.stamp(); ST.stamp(real=True)
    for n in range(D): issue(n)
    areads(0)
    ST.stamp()
    for n in range(NS):
        ab = AB + 8 * (n % 2); ob = OB + 8 * (n % NOB)
        def mf(nt2, ib):
            S.mfma(v(ACC + 32 * nt2 + 16 * ib, 16), v(ab + 4 * nt2, 4), v(ob + 4 * ib, 4),
                   0 if n == 0 else v(ACC + 32 * nt2 + 16 * ib, 16))
        if n % 4 == 0: ST.stamp()
        mf(0, 0)
        if n + D < NS: issue(n + D)
        mf(0, 1)
        if n + 1 < NS: areads(n + 1)
        mf(1, 0)
        mf(1, 1)
    ST.stamp()
    S.barrier()
    ST.stamp()
    S.salu("s_mul_i32", "s46", "s43", 17408)
    S.valu("v_and_b32", "v6", 31, l)
    S.valu("v_mul_u32_u24", "v6", 272, "v6")
    S.valu("v_lshrrev_b32", "v7", 5, l)
    S.valu("v_lshlrev_b32", "v7", 4, "v7")
    S.valu("v_add_u32", "v6", "v6", "v7")
    S.valu("v_add_u32", "v6", "s46", "v6")
    for nt2 in range(2):
        for ib in range(2):
            for q in range(4):
                S.ds_write("ds_write_b128", "v6", v(ACC + 32 * nt2 + 16 * ib + 4 * q, 4), ib * 32 * 272 + (32 * nt2 + 8 * q) * 4)
    S.wait(lgkm=0)
    S.barrier()
    S.valu("v_lshrrev_b32", "v6", 3, "v0")
    S.valu("v_and_b32", "v7", 7, "v0")
    S.valu("v_mul_u32_u24", "v8", 272, "v6")
    S.valu("v_lshlrev_b32", "v9", 5, "v7")
    S.valu("v_add_u32", "v8", "v8", "v9")
    S.valu("v_add_u32", "v9", 69632, "v8")
    for w in range(8):
        base = "v8" if w < 4 else "v9"
        S.ds_read("ds_read_b128", v(16 + 8 * w, 4), base, (w % 4) * 17408)
        S.ds_read("ds_read_b128", v(16 + 8 * w + 4, 4), base, (w % 4) * 17408 + 16)
    for w in range(1, 8):
        for i in range(8):
            S.valu("v_add_f32", v(16 + i), v(16 + i), v(16 + 8 * w + i))
    for i in range(4):
        S.valu("v_cvt_pk_bf16_f32", v(12 + i), v(16 + 2 * i), v(16 + 2 * i + 1))
    S.valu("v_lshlrev_b32", "v6", 11, "v6")
    S.valu("v_lshlrev_b32", "v7", 4, "v7")
    S.valu("v_add_u32", "v6", "v6", "v7")
    S.buf_store("buffer_store_dwordx4", "v[12:15]", "v6", "s[56:59]")
    if cfg.get("stamps", False):
        S.wait(vm=0)
        ST.stamp(); ST.stamp(real=True)
    ST.flush(1, 11)
    S.endpgm()
    txt = render(S.finalize()) + "\nK2_DONE:\n    s_endpgm\n"
    lds = max(8 * R * 2048, 8 * 17408)
    return txt, lds

def gen_k2b(cfg):
    import k2b
    P = Stream("k2bpro")
    P.salu("s_cmp_ge_u32", "s2", 256)
    P.branch("s_cbranch_scc1", "K2B_DONE")
    if cfg.get("stamps", False):
        P.add(Inst("s_memtime s[98:99]", "smem", [], ["s98", "s99"]))
    P.smem("s[24:25]", "s[0:1]", 32)
    P.smem("s[26:27]", "s[0:1]", 72)
    P.smem("s[36:37]", "s[0:1]", 80)
    P.smem("s[68:69]", "s[0:1]", 88)
    P.smem("s[38:39]", "s[0:1]", 96)
    P.salu("s_and_b32", "s44", "s2", 7)
    P.salu("s_lshr_b32", "s12", "s2", 3)
    P.salu("s_lshr_b32", "s40", "s44", 2)
    P.salu("s_and_b32", "s44", "s44", 3)
    P.salu("s_lshl_b32", "s44", "s44", 2)
    P.salu("s_and_b32", "s41", "s12", 3)
    P.salu("s_add_u32", "s41", "s41", "s44")
    P.salu("s_lshr_b32", "s42", "s12", 2)
    P.valu("v_lshrrev_b32", "v1", 6, "v0")
    P.valu("v_readfirstlane_b32", "s43", "v1")
    P.valu("v_and_b32", "v1", 63, "v0")
    P.salu("s_cmp_eq_u32", "s40", 0)
    P.salu("s_cselect_b64", "s[24:25]", "s[24:25]", "s[26:27]")
    P.salu("s_mov_b32", "s70", 256)
    P.salu("s_mov_b32", "s71", "0x20000")
    k2b.p2_srds(P)
    P.salu("s_and_b32", "s79", "s41", 3)
    P.salu("s_lshl_b32", "s79", "s79", 1)
    P.salu("s_add_u32", "s79", "s79", "s42")
    P.salu("s_and_b32", "s79", "s79", 7)
    if not cfg.get("p2_rot", True): P.salu("s_mov_b32", "s79", 0)
    P.salu("s_or_b32", "s44", "s2", "s43")
    P.salu("s_cmp_lg_u32", "s44", 0)
    P.branch("s_cbranch_scc1", "K2B_NONONCE")
    P.add(Inst("s_memrealtime s[44:45]", "smem", [], ["s44", "s45"]))
    P.wait(lgkm=0)
    P.salu("s_or_b32", "s44", "s44", 1)
    P.valu("v_mov_b32", "v2", "s44")
    P.valu("v_mov_b32", "v3", "s45")
    P.valu("v_mov_b32", "v4", 0)
    P.buf_store("buffer_store_dwordx2", "v[2:3]", "v4", "s[68:71]", flags=" sc1")
    P.label("K2B_NONONCE")
    P.salu("s_cmp_ge_u32", "s43", 4)
    P.branch("s_cbranch_scc1", "K2B_LOAD")
    parts = []
    X = Stream(); ST = Stamper(X, cfg.get("stamps", False), 15)
    k2b.p2_compute(X, cfg, ST)
    ST.flush(1, 14); X.endpgm()
    A = Stream(); A.ins = list(P.ins) + X.ins
    parts.append(render(A.finalize()))
    X = Stream(); ST = Stamper(X, cfg.get("stamps", False), 30)
    k2b.p2_loader(X, cfg, ST)
    ST.flush(1, 31); X.endpgm()
    A = Stream(); A.ins = list(P.ins) + [Inst("K2B_LOAD:", "label")] + X.ins
    f = A.finalize()
    idx = [k for k, i in enumerate(f) if i.kind == "label" and i.text == "K2B_LOAD:"][0]
    parts.append(render(f[idx:]))
    return "\n".join(parts) + "\nK2B_DONE:\n    s_endpgm\n"

def kernel_wrap(label, body):
    return f""".globl {label}
.p2align 8
.type {label},@function
{label}:
{body}
"""
def desc(label, vgpr, sgpr):
    return f""".p2align 6
.amdhsa_kernel {label}
  .amdhsa_next_free_vgpr {vgpr}
  .amdhsa_next_free_sgpr {sgpr}
  .amdhsa_accum_offset {vgpr}
  .amdhsa_group_segment_fixed_size 0
  .amdhsa_kernarg_size 104
  .amdhsa_user_sgpr_count 2
  .amdhsa_user_sgpr_kernarg_segment_ptr 1
  .amdhsa_system_sgpr_workgroup_id_x 1
.end_amdhsa_kernel
"""

def generate(cfg):
    k1 = gen_k1(cfg)
    k2, lds2 = gen_k2(cfg)
    hdr = []
    order = cfg.get("launches", ["k1", "k2b"])
    for k in order:
        if k == "k1": hdr.append(f"; @launch kernel=attn_k1_kernel grid=(256,1,1) block=(512,1,1) lds=163840")
        if k == "k2": hdr.append(f"; @launch kernel=attn_k2_kernel grid=(256,1,1) block=(512,1,1) lds={lds2}")
        if k == "k2b": hdr.append(f"; @launch kernel=attn_k2b_kernel grid=(256,1,1) block=(512,1,1) lds=131072")
    txt = "\n".join(hdr) + "\n"
    txt += '.amdgcn_target "amdgcn-amd-amdhsa--gfx950"\n.text\n'
    ks = []
    if "k1" in order: ks.append(("attn_k1_kernel", k1, 256))
    if "k2" in order: ks.append(("attn_k2_kernel", k2, 192))
    if "k2b" in order: ks.append(("attn_k2b_kernel", gen_k2b(cfg), 256))
    for (n, b, vg) in ks: txt += kernel_wrap(n, b)
    txt += '.section .rodata,"a"\n'
    for (n, b, vg) in ks: txt += desc(n, vg, 102)
    return txt

if __name__ == "__main__":
    import json
    cfg = {}
    out = f"cdna_kernels/{NAME}.s"
    for a in sys.argv[1:]:
        if a.startswith("-o"): out = a[2:]
        else:
            k, val = a.split("=", 1)
            try: val = json.loads(val)
            except Exception: pass
            cfg[k] = val
    open(out, "w").write(generate(cfg))
    print("wrote", out)
```

```python
from asmlib import *

NS2 = 4
PB_OFF = 32 << 20
FL_OFF = 56 << 20

def interleave(S, mf, fill, per_gap, lead=0):
    fi = 0
    for _ in range(min(lead, len(fill))):
        fill[fi](); fi += 1
    for k, m in enumerate(mf):
        m()
        n = per_gap[k] if isinstance(per_gap, (list, tuple)) else per_gap
        for _ in range(n):
            if fi < len(fill):
                fill[fi](); fi += 1
    while fi < len(fill):
        fill[fi](); fi += 1

def add64(S, dlo, plo, phi, off):
    S.salu("s_add_u32", s(dlo), s(plo), off)
    S.salu("s_addc_u32", s(dlo + 1), s(phi), 0)

def srd(S, r, plo, phi, off, total):
    add64(S, r, plo, phi, off)
    if isinstance(off, int): S.salu("s_mov_b32", s(r + 2), total - off)
    else: S.salu("s_sub_u32", s(r + 2), total, off)
    S.salu("s_mov_b32", s(r + 3), "0x20000")

def p2_srds(S):
    S.salu("s_lshr_b32", "s80", "s41", 2)
    S.salu("s_and_b32", "s81", "s41", 3)
    S.salu("s_lshl_b32", "s44", "s80", 20)
    S.salu("s_lshl_b32", "s45", "s81", 8)
    S.salu("s_add_u32", "s44", "s44", "s45")
    srd(S, 48, 24, 25, "s44", 4096 * 1024)
    S.salu("s_lshl_b32", "s44", "s40", 23)
    S.salu("s_lshl_b32", "s45", "s42", 20)
    S.salu("s_add_u32", "s44", "s44", "s45")
    S.salu("s_lshl_b32", "s45", "s80", 16)
    S.salu("s_add_u32", "s44", "s44", "s45")
    srd(S, 52, 38, 39, "s44", 16 << 20)
    S.salu("s_lshl_b32", "s82", "s40", 3)
    S.salu("s_add_u32", "s82", "s82", "s42")
    S.salu("s_lshl_b32", "s82", "s82", 2)
    S.salu("s_add_u32", "s82", "s82", "s81")
    S.salu("s_lshl_b32", "s44", "s82", 18)
    S.salu("s_add_u32", "s44", "s44", PB_OFF)
    srd(S, 56, 38, 39, "s44", PB_OFF + (16 << 20))
    S.salu("s_lshl_b32", "s44", "s82", 11)
    S.salu("s_add_u32", "s44", "s44", FL_OFF)
    srd(S, 60, 38, 39, "s44", FL_OFF + (128 << 10))
    S.salu("s_lshl_b32", "s44", "s42", 18)
    S.salu("s_lshl_b32", "s45", "s40", 10)
    S.salu("s_add_u32", "s44", "s44", "s45")
    S.salu("s_lshl_b32", "s45", "s81", 8)
    S.salu("s_add_u32", "s44", "s44", "s45")
    srd(S, 64, 36, 37, "s44", 1024 * 2048)

def p2_loader_setup(S, cfg, rot_sgpr):
    L = "v1"; t0, t1, t2 = "v2", "v3", "v4"
    S.salu("s_sub_u32", "s44", "s43", 4)
    S.valu("v_lshrrev_b32", t2, 4, L)
    S.valu("v_and_b32", t1, 15, L)
    S.valu("v_lshlrev_b32", t0, 2, t2)
    S.valu("v_xor_b32", t1, t1, t0)
    S.valu("v_lshlrev_b32", t1, 4, t1)
    S.valu("v_lshlrev_b32", t0, 10, t2)
    S.valu("v_add_u32", "v10", t0, t1)
    S.salu("s_lshl_b32", "s45", "s44", 14)
    S.valu("v_add_u32", "v10", "s45", "v10")
    S.valu("v_lshlrev_b32", "v11", 4, L)
    S.salu("s_lshl_b32", "s45", "s44", 18)
    S.valu("v_add_u32", "v11", "s45", "v11")
    S.salu("s_lshl_b32", "s47", "s44", 12)
    fw0 = cfg.get("p2_wfl0", ""); fw = cfg.get("p2_wfl", "")
    fo0 = cfg.get("p2_ofl0", ""); fo = cfg.get("p2_ofl", "")
    def issue(st, part="wo"):
        j, half = st // 2, st % 2
        S.salu("s_add_u32", "s13", rot_sgpr, j)
        S.salu("s_and_b32", "s13", "s13", 7)
        slot = st % NS2
        if "w" in part:
            S.salu("s_lshl_b32", "s14", "s13", 17)
            for ii in range(4):
                S.salu("s_add_u32", "m0", "s47", slot * 32768 + ii * 1024)
                S.salu("s_add_u32", "s46", "s14", half * 65536 + ii * 4096)
                S.buf_dma("v10", "s[48:51]", "s46", tok=f"s{st}", flags=fw0 if st < 2 else fw)
        if "o" in part:
            S.salu("s_lshl_b32", "s14", "s13", 13)
            for ii in range(4):
                S.salu("s_add_u32", "m0", "s47", slot * 32768 + 16384 + ii * 1024)
                S.salu("s_add_u32", "s46", "s14", half * 4096 + ii * 1024)
                S.buf_dma("v11", "s[52:55]", "s46", tok=f"s{st}", flags=fo0 if st < 4 else fo)
    return issue

def p2_loader(S, cfg, ST, rot_sgpr="s79"):
    issue = p2_loader_setup(S, cfg, rot_sgpr)
    issue(0); issue(1)
    S.wait_vm_tok("s0")
    ST.stamp()
    S.barrier()
    issue(2); issue(3)
    for st in range(16):
        if st + 1 < 16: S.wait_vm_tok(f"s{st+1}")
        ST.stamp()
        S.barrier()
        if st + NS2 < 16: issue(st + NS2)

FLO_OFF = FL_OFF + (1 << 20)

def spin_nonce(S, dbg, lab, vr=8, vz="v10"):
    S.salu("s_mov_b32", "s83", 0)
    S.label(lab)
    S.valu("v_readfirstlane_b32", "s84", v(vr))
    S.valu("v_readfirstlane_b32", "s85", v(vr + 1))
    S.nop(3)
    S.salu("s_or_b32", "s86", "s84", "s85")
    S.salu("s_cmp_lg_u32", "s86", 0)
    S.branch("s_cbranch_scc1", lab + "_OK")
    S.salu("s_add_u32", "s83", "s83", 1)
    S.salu("s_cmp_gt_u32", "s83", 200000)
    S.branch("s_cbranch_scc1", lab + "_OK")
    S.raw("s_sleep 4")
    S.buf_load("buffer_load_dwordx2", v(vr, 2), vz, dbg, flags=" sc1")
    S.wait(vm=0)
    S.branch("s_branch", lab)
    S.label(lab + "_OK")

def p2_loader_fused(S, cfg, ST):
    L = "v1"
    S.salu("s_lshl_b32", "s44", "s40", 2)
    S.salu("s_add_u32", "s44", "s44", "s80")
    S.salu("s_lshl_b32", "s44", "s44", 3)
    S.salu("s_add_u32", "s44", "s44", "s42")
    S.salu("s_lshl_b32", "s44", "s44", 9)
    S.salu("s_add_u32", "s44", "s44", FLO_OFF)
    srd(S, 8, 38, 39, "s44", FLO_OFF + (32 << 10))
    S.salu("s_lshl_b32", "s79", "s81", 1)
    issue = p2_loader_setup(S, cfg, "s79")
    S.valu("v_mov_b32", "v12", 0)
    S.buf_load("buffer_load_dwordx2", "v[14:15]", "v12", "s[4:7]", flags=" sc1")
    S.wait(vm=0)
    spin_nonce(S, "s[4:7]", "FL_NONCE", 14, "v12")
    S.valu("v_mov_b32", "v16", "s84")
    S.valu("v_mov_b32", "v17", "s85")
    S.valu("v_and_b32", "v18", 3, L)
    S.valu("v_lshlrev_b32", "v18", 7, "v18")
    ST.stamp()
    S.barrier()
    ST.stamp()
    S.salu("s_cmp_lg_u32", "s43", 4)
    S.branch("s_cbranch_scc1", "FL_NOFLAG")
    S.salu("s_lshl_b32", "s45", "s81", 7)
    S.valu("v_cmp_eq_u32", "vcc", 0, L)
    S.salu("s_mov_b64", "s[86:87]", "exec")
    S.add(Inst("s_and_b64 exec, exec, vcc", "salu", ["vcc"], ["exec"]))
    S.buf_store("buffer_store_dwordx2", "v[16:17]", "v12", "s[8:11]", "s45", flags=" sc1")
    S.add(Inst("s_mov_b64 exec, s[86:87]", "salu", [], ["exec"]))
    S.label("FL_NOFLAG")
    S.wait(vm=0)
    issue(0); issue(1)
    S.wait_vm_tok("s0")
    ST.stamp()
    S.barrier()
    issue(2); issue(3)
    for st in range(16):
        if st + 1 < 16: S.wait_vm_tok(f"s{st+1}")
        ST.stamp()
        S.barrier()
        if st == 0:
            S.wait(vm=0)
            S.salu("s_mov_b32", "s83", 0)
            S.label("FL_POLL")
            S.buf_load("buffer_load_dwordx2", "v[14:15]", "v18", "s[8:11]", flags=" sc1")
            S.wait(vm=0)
            S.valu("v_cmp_eq_u64", "vcc", "v[14:15]", "v[16:17]")
            S.nop(4)
            S.add(Inst("s_cmp_eq_u64 vcc, exec", "salu", ["vcc"], ["scc"]))
            S.branch("s_cbranch_scc1", "FL_POLL_OK")
            S.salu("s_add_u32", "s83", "s83", 1)
            S.salu("s_cmp_gt_u32", "s83", 200000)
            S.branch("s_cbranch_scc1", "FL_POLL_OK")
            S.raw("s_sleep 2")
            S.branch("s_branch", "FL_POLL")
            S.label("FL_POLL_OK")
            ST.stamp()
        if st + NS2 < 16: issue(st + NS2)

def p2_compute(S, cfg, ST, dbg="s[68:71]"):
    cw = "s43"; l = "v1"
    T = [f"v{n}" for n in range(16, 24)]
    hh, gb, kx, c4, t0, t1, t2, t3 = T
    S.valu("v_lshrrev_b32", hh, 5, l)
    S.valu("v_bfe_u32", gb, l, 4, 1)
    S.valu("v_bfe_u32", kx, l, 2, 2)
    S.valu("v_and_b32", c4, 3, l)
    S.valu("v_and_b32", t0, 1, c4)
    S.valu("v_lshlrev_b32", t0, 4, t0)
    S.valu("v_lshrrev_b32", t1, 1, c4)
    S.valu("v_lshlrev_b32", t1, 3, t1)
    S.valu("v_or_b32", t0, t0, t1)
    S.valu("v_lshlrev_b32", t1, 5, gb)
    S.valu("v_or_b32", t0, t0, t1)
    S.valu("v_lshlrev_b32", t1, 2, hh)
    S.valu("v_add_u32", t1, t1, kx)
    S.valu("v_lshlrev_b32", t1, 8, t1)
    S.valu("v_add_u32", t0, t0, t1)
    S.salu("s_lshr_b32", "s44", cw, 1)
    S.salu("s_lshl_b32", "s44", "s44", 1)
    for a in range(2):
        S.valu("v_add_u32", t1, "s44", kx) if False else None
        S.salu("s_add_u32", "s45", "s44", a)
        S.valu("v_xor_b32", t1, "s45", kx)
        S.valu("v_lshlrev_b32", t1, 6, t1)
        S.valu("v_add_u32", v(2 + a), t0, t1)
        S.valu("v_add_u32", v(4 + a), 65536, v(2 + a))
    S.valu("v_lshlrev_b32", t0, 4, l)
    S.salu("s_and_b32", "s44", cw, 1)
    S.salu("s_lshl_b32", "s44", "s44", 13)
    S.salu("s_add_u32", "s44", "s44", 16384)
    S.valu("v_add_u32", "v6", "s44", t0)
    S.valu("v_add_u32", "v7", 65536, "v6")
    AB = [16, 24]; BB = [32, 40]; ACC = lambda a, b: 64 + 16 * (2 * a + b)
    def reads(ks):
        st, sk = ks // 4, ks % 4
        slot = st % NS2; hi = slot // 2; lo = (slot % 2) * 32768
        buf = ks % 2
        r = []
        def rb(b): return lambda: S.ds_read("ds_read_b128", v(BB[buf] + 4 * b, 4), v(6 + hi), lo + b * 4096 + sk * 1024)
        def ra(a, jj): return lambda: S.ds_read("ds_read_b64_tr_b16", v(AB[buf] + 4 * a + 2 * jj, 2), v(2 + a + 2 * hi), lo + sk * 4096 + jj * 2048)
        return [rb(0), ra(0, 0), ra(0, 1), rb(1), ra(1, 0), ra(1, 1)]
    def mf(ks):
        buf = ks % 2
        return [lambda a=a, b=b: S.mfma(v(ACC(a, b), 16), v(AB[buf] + 4 * a, 4), v(BB[buf] + 4 * b, 4), 0 if ks == 0 else v(ACC(a, b), 16))
                for (a, b) in ((0, 0), (0, 1), (1, 0), (1, 1))]
    ST.stamp()
    S.barrier()
    ST.stamp()
    for f in reads(0): f()
    for ks in range(64):
        if ks % 4 == 3:
            S.wait(lgkm=0)
            S.barrier()
            ST.stamp()
        fill = reads(ks + 1) if ks + 1 < 64 else []
        interleave(S, mf(ks), fill, 2)
    ST.stamp()
    S.valu("v_mov_b32", "v10", 0)
    S.buf_load("buffer_load_dwordx2", "v[8:9]", "v10", dbg, flags=" sc1")
    S.valu("v_lshlrev_b32", "v11", 4, l)
    S.salu("s_lshl_b32", "s44", "s80", 2)
    S.salu("s_add_u32", "s44", "s44", cw)
    S.salu("s_lshl_b32", "s44", "s44", 12)
    stf = cfg.get("p2_stfl", " sc1")
    for q in range(4):
        S.salu("s_cmp_eq_u32", "s80", q)
        S.branch("s_cbranch_scc1", f"P2_OWN{q}")
        S.salu("s_add_u32", "s45", "s44", q * 65536)
        for i in range(4):
            S.buf_store("buffer_store_dwordx4", v(64 + 16 * q + 4 * i, 4), "v11", "s[56:59]", "s45", i * 1024, flags=stf)
        S.branch("s_branch", f"P2_N{q}")
        S.label(f"P2_OWN{q}")
        S.nop(15)
        for i in range(16):
            S.valu("v_mov_b32", v(48 + i), v(64 + 16 * q + i))
        S.label(f"P2_N{q}")
    S.wait(vm=0)
    ST.stamp()
    S.salu("s_mov_b32", "s83", 0)
    S.label("P2_NONCE")
    S.valu("v_readfirstlane_b32", "s84", "v8")
    S.valu("v_readfirstlane_b32", "s85", "v9")
    S.nop(3)
    S.salu("s_or_b32", "s86", "s84", "s85")
    S.salu("s_cmp_lg_u32", "s86", 0)
    S.branch("s_cbranch_scc1", "P2_NONCE_OK")
    S.salu("s_add_u32", "s83", "s83", 1)
    S.salu("s_cmp_gt_u32", "s83", 200000)
    S.branch("s_cbranch_scc1", "P2_NONCE_OK")
    S.raw("s_sleep 4")
    S.buf_load("buffer_load_dwordx2", "v[8:9]", "v10", dbg, flags=" sc1")
    S.wait(vm=0)
    S.branch("s_branch", "P2_NONCE")
    S.label("P2_NONCE_OK")
    S.salu("s_lshl_b32", "s45", "s80", 2)
    S.salu("s_add_u32", "s45", "s45", cw)
    S.salu("s_lshl_b32", "s45", "s45", 7)
    S.valu("v_mov_b32", "v12", "s84")
    S.valu("v_mov_b32", "v13", "s85")
    S.valu("v_cmp_eq_u32", "vcc", 0, l)
    S.salu("s_mov_b64", "s[86:87]", "exec")
    S.add(Inst("s_and_b64 exec, exec, vcc", "salu", ["vcc"], ["exec"]))
    S.buf_store("buffer_store_dwordx2", "v[12:13]", "v10", "s[60:63]", "s45", flags=" sc1")
    S.add(Inst("s_mov_b64 exec, s[86:87]", "salu", [], ["exec"]))
    S.valu("v_and_b32", "v14", 3, l)
    S.valu("v_lshlrev_b32", "v14", 9, "v14")
    S.salu("s_lshl_b32", "s45", cw, 7)
    S.salu("s_mov_b32", "s83", 0)
    S.label("P2_POLL")
    S.buf_load("buffer_load_dwordx2", "v[8:9]", "v14", "s[60:63]", "s45", flags=" sc1")
    S.wait(vm=0)
    S.valu("v_cmp_eq_u64", "vcc", "v[8:9]", "v[12:13]")
    S.nop(4)
    S.add(Inst("s_cmp_eq_u64 vcc, exec", "salu", ["vcc"], ["scc"]))
    S.branch("s_cbranch_scc1", "P2_POLL_OK")
    S.salu("s_add_u32", "s83", "s83", 1)
    S.salu("s_cmp_gt_u32", "s83", 200000)
    S.branch("s_cbranch_scc1", "P2_POLL_OK")
    S.raw("s_sleep 2")
    S.branch("s_branch", "P2_POLL")
    S.label("P2_POLL_OK")
    ST.stamp()
    ldf = cfg.get("p2_ldfl", " sc1")
    for i in range(3):
        S.salu("s_add_u32", "s45", "s80", i + 1)
        S.salu("s_and_b32", "s45", "s45", 3)
        S.salu("s_lshl_b32", "s46", "s80", 2)
        S.salu("s_add_u32", "s45", "s45", "s46")
        S.salu("s_lshl_b32", "s45", "s45", 2)
        S.salu("s_add_u32", "s45", "s45", cw)
        S.salu("s_lshl_b32", "s45", "s45", 12)
        for k in range(4):
            S.buf_load("buffer_load_dwordx4", v(128 + 16 * i + 4 * k, 4), "v11", "s[56:59]", "s45", k * 1024, flags=ldf)
    for i in range(3):
        for k in range(16):
            S.valu("v_add_f32", v(48 + k), v(48 + k), v(128 + 16 * i + k))
    for k in range(8):
        S.valu("v_cvt_pk_bf16_f32", v(16 + k), v(48 + 2 * k), v(48 + 2 * k + 1))
    S.valu("v_and_b32", "v10", 31, l)
    S.valu("v_lshlrev_b32", "v10", 11, "v10")
    S.valu("v_lshrrev_b32", "v12", 5, l)
    S.valu("v_lshlrev_b32", "v12", 4, "v12")
    S.valu("v_add_u32", "v10", "v10", "v12")
    S.salu("s_and_b32", "s44", cw, 1)
    S.salu("s_lshl_b32", "s44", "s44", 1)
    S.salu("s_and_b32", "s45", "s80", 1)
    S.salu("s_add_u32", "s44", "s44", "s45")
    S.salu("s_lshl_b32", "s44", "s44", 16)
    S.salu("s_lshr_b32", "s45", cw, 1)
    S.salu("s_lshl_b32", "s45", "s45", 7)
    S.salu("s_add_u32", "s44", "s44", "s45")
    S.salu("s_lshr_b32", "s45", "s80", 1)
    S.salu("s_lshl_b32", "s45", "s45", 6)
    S.salu("s_add_u32", "s44", "s44", "s45")
    S.buf_store("buffer_store_dwordx4", "v[16:19]", "v10", "s[64:67]", "s44", 0)
    S.buf_store("buffer_store_dwordx4", "v[20:23]", "v10", "s[64:67]", "s44", 32)
    ST.stamp()
```

```python
import sys, argparse
from asmlib import *

NAME = "concat_heads__mha_block_cached__gqa_block_cached__near_ridge"

def interleave(S, mf, fill, per_gap, lead=0):
    fi = 0
    for _ in range(min(lead, len(fill))):
        fill[fi](); fi += 1
    for k, m in enumerate(mf):
        m()
        n = per_gap[k] if isinstance(per_gap, (list, tuple)) else per_gap
        for _ in range(n):
            if fi < len(fill):
                fill[fi](); fi += 1
    while fi < len(fill):
        fill[fi](); fi += 1

STAMP_BASE = 80
class Stamper:
    def __init__(self, S, on, vreg=None):
        self.S = S; self.on = on; self.n = 1; self.vreg = vreg
        if on:
            S.wait(lgkm=0)
            S.add(Inst(f"v_writelane_b32 v{vreg}, s98, 0", "valu", ["s98"], [f"v{vreg}"]))
    def stamp(self, real=False):
        if not self.on: return
        S = self.S
        op = "s_memrealtime" if real else "s_memtime"
        S.add(Inst(f"{op} s[100:101]", "smem", [], ["s100", "s101"]))
        S.wait(lgkm=0)
        S.add(Inst(f"v_writelane_b32 v{self.vreg}, s100, {self.n}", "valu", ["s100"], [f"v{self.vreg}"]))
        self.n += 1
    def flush(self, region, vtmp=250):
        if not self.on: return
        S = self.S
        S.wait(vm=0, lgkm=0)
        S.smem("s[78:79]", "s[0:1]", 96)
        S.wait(lgkm=0)
        S.salu("s_add_u32", "s76", "s78", (64 << 20) + region * (1 << 20))
        S.salu("s_addc_u32", "s77", "s79", 0)
        S.salu("s_mov_b32", "s78", 1 << 20)
        S.salu("s_mov_b32", "s79", "0x20000")
        S.salu("s_lshl_b32", "s74", "s2", 11)
        S.salu("s_lshl_b32", "s75", "s43", 8)
        S.salu("s_add_u32", "s74", "s74", "s75")
        a = f"v{vtmp}"
        S.valu("v_mbcnt_lo_u32_b32", a, -1, 0)
        S.valu("v_mbcnt_hi_u32_b32", a, -1, a)
        S.valu("v_lshlrev_b32", a, 2, a)
        S.buf_store("buffer_store_dword", f"v{self.vreg}", a, "s[76:79]", "s74")
        S.wait(vm=0)

def load_ptrs(S, sel_sgpr_p):
    S.smem("s[16:31]", "s[0:1]", 0)
    S.smem("s[32:35]", "s[0:1]", 64)
    S.smem("s[36:37]", "s[0:1]", 80)
    S.smem("s[38:39]", "s[0:1]", 96)

def make_srd(S, srd, ptr_lo, ptr_hi, off_sgpr, total, off_hi=None):
    if isinstance(off_sgpr, int):
        S.salu("s_add_u32", s(srd), s(ptr_lo), off_sgpr)
        S.salu("s_addc_u32", s(srd + 1), s(ptr_hi), 0)
        S.salu("s_mov_b32", s(srd + 2), total - off_sgpr)
    else:
        S.salu("s_add_u32", s(srd), s(ptr_lo), off_sgpr)
        S.salu("s_addc_u32", s(srd + 1), s(ptr_hi), 0)
        S.salu("s_sub_u32", s(srd + 2), total, off_sgpr)
    S.salu("s_mov_b32", s(srd + 3), "0x20000")

NW = 4
NX = 2
WBASE = 65536
XBASE = WBASE + NW * 16384
KSLOT = [0, 16384, 32768, 49152]
VSLOT = [WBASE + 0 * 16384, WBASE + 1 * 16384, XBASE + 0 * 16384, WBASE + 2 * 16384]

def k1_prologue(S, cfg):
    S.salu("s_cmp_ge_u32", "s2", 256)
    S.branch("s_cbranch_scc1", "K1_DONE")
    if cfg.get("stamps", False):
        S.add(Inst("s_memtime s[98:99]", "smem", [], ["s98", "s99"]))
    load_ptrs(S, None)
    S.salu("s_and_b32", "s44", "s2", 7)
    S.salu("s_lshr_b32", "s45", "s2", 3)
    S.salu("s_lshr_b32", "s40", "s44", 2)
    S.salu("s_and_b32", "s44", "s44", 3)
    S.salu("s_lshl_b32", "s44", "s44", 2)
    S.salu("s_and_b32", "s41", "s45", 3)
    S.salu("s_add_u32", "s41", "s41", "s44")
    S.salu("s_lshr_b32", "s42", "s45", 2)
    S.valu("v_lshrrev_b32", "v1", 6, "v0")
    S.valu("v_readfirstlane_b32", "s43", "v1")
    S.valu("v_and_b32", "v1", 63, "v0")
    S.salu("s_cmp_eq_u32", "s40", 0)
    S.salu("s_cselect_b64", "s[16:17]", "s[16:17]", "s[26:27]")
    S.salu("s_cselect_b64", "s[18:19]", "s[18:19]", "s[28:29]")
    S.salu("s_cselect_b64", "s[20:21]", "s[20:21]", "s[30:31]")
    S.salu("s_cselect_b64", "s[22:23]", "s[22:23]", "s[32:33]")
    if cfg.get("fused", False):
        S.salu("s_cselect_b64", "s[24:25]", "s[24:25]", "s[34:35]")
        S.smem("s[4:5]", "s[0:1]", 88)
        S.salu("s_mov_b32", "s6", 256)
        S.salu("s_mov_b32", "s7", "0x20000")
        S.salu("s_or_b32", "s44", "s2", "s43")
        S.salu("s_cmp_lg_u32", "s44", 0)
        S.branch("s_cbranch_scc1", "F_NONONCE")
        S.add(Inst("s_memrealtime s[44:45]", "smem", [], ["s44", "s45"]))
        S.wait(lgkm=0)
        S.salu("s_or_b32", "s44", "s44", 1)
        S.valu("v_mov_b32", "v2", "s44")
        S.valu("v_mov_b32", "v3", "s45")
        S.valu("v_mov_b32", "v4", 0)
        S.buf_store("buffer_store_dwordx2", "v[2:3]", "v4", "s[4:7]", flags=" sc1")
        S.label("F_NONONCE")
        S.wait(lgkm=0)
    S.salu("s_lshl_b32", "s44", "s41", 9)
    make_srd(S, 48, 22, 23, "s44", 512 * 8192)
    S.salu("s_lshr_b32", "s44", "s41", 2)
    S.salu("s_lshl_b32", "s44", "s44", 11)
    make_srd(S, 8, 22, 23, "s44", 512 * 8192)
    S.salu("s_lshr_b32", "s12", "s2", 3)
    S.salu("s_lshl_b32", "s44", "s42", 17)
    make_srd(S, 52, 16, 17, "s44", 1024 * 1024)
    S.salu("s_lshl_b32", "s44", "s42", 20)
    S.salu("s_lshl_b32", "s45", "s41", 14)
    S.salu("s_add_u32", "s44", "s44", "s45")
    make_srd(S, 56, 18, 19, "s44", 32 * 262144)
    make_srd(S, 60, 20, 21, "s44", 32 * 262144)
    S.salu("s_lshl_b32", "s45", "s40", 23)
    S.salu("s_add_u32", "s44", "s44", "s45")
    make_srd(S, 64, 38, 39, "s44", 2 * 32 * 262144)

def k1_fast(S, cfg):
    S.salu("s_sub_u32", "s44", "s43", 4)
    L = "v1"
    t0, t1, t2 = "v2", "v3", "v4"
    S.valu("v_lshrrev_b32", t0, 5, L)
    S.valu("v_and_b32", t1, 31, L)
    S.valu("v_lshlrev_b32", t2, 2, t0)
    S.valu("v_xor_b32", "v10", t1, t2)
    S.valu("v_lshlrev_b32", "v10", 4, "v10")
    S.valu("v_xor_b32", "v11", 128, "v10")
    S.valu("v_lshlrev_b32", t2, 13, t0)
    S.salu("s_lshl_b32", "s45", "s44", 16)
    S.valu("v_add_u32", t2, "s45", t2)
    S.valu("v_add_u32", "v10", "v10", t2)
    S.valu("v_add_u32", "v11", "v11", t2)
    S.valu("v_lshrrev_b32", t0, 3, L)
    S.valu("v_and_b32", t1, 7, L)
    S.valu("v_lshrrev_b32", t2, 4, L)
    S.valu("v_xor_b32", "v12", t1, t2)
    S.valu("v_lshlrev_b32", "v12", 4, "v12")
    S.valu("v_xor_b32", "v13", 64, "v12")
    S.valu("v_lshlrev_b32", t0, 10, t0)
    S.salu("s_lshl_b32", "s45", "s44", 15)
    S.valu("v_add_u32", t0, "s45", t0)
    S.valu("v_add_u32", "v12", "v12", t0)
    S.valu("v_add_u32", "v13", "v13", t0)
    S.salu("s_lshl_b32", "s47", "s44", 12)
    if cfg.get("rot", True):
        S.salu("s_and_b32", "s79", "s41", 3)
        S.salu("s_lshl_b32", "s79", "s79", 1)
        S.salu("s_add_u32", "s79", "s79", "s42")
        S.salu("s_and_b32", "s79", "s79", 7)
    else:
        S.salu("s_mov_b32", "s79", 0)
    ldflags = cfg.get("ldflags", " nt")
    kvflags = cfg.get("kvflags", " nt")
    skip = cfg.get("skip", "")
    def dma(voff, srd, base, off, ldsbase, tok, flags):
        S.salu("s_add_u32", "m0", "s47", ldsbase)
        S.salu("s_add_u32", "s46", base, off)
        S.buf_dma(voff, srd, "s46", tok=tok, flags=flags)
    def issue_w(st):
        S.salu("s_add_u32", "s13", "s79", st // 2)
        S.salu("s_and_b32", "s13", "s13", 7)
        S.salu("s_lshl_b32", "s13", "s13", 19)
        for ii in range(4):
            dma("v10" if ii % 2 == 0 else "v11", "s[48:51]", "s13", (st % 2) * 262144 + ii * 16384,
                WBASE + (st % NW) * 16384 + ii * 1024, f"w{st}", cfg.get("ldflags0", ldflags) if st < 2 else ldflags)
    def issue_x(j):
        S.salu("s_add_u32", "s13", "s79", j)
        S.salu("s_and_b32", "s13", "s13", 7)
        S.salu("s_lshl_b32", "s13", "s13", 7)
        for ii in range(4):
            dma("v12" if ii % 2 == 0 else "v13", "s[52:55]", "s13", ii * 8192,
                XBASE + (j % NX) * 16384 + ii * 1024, f"x{j}", cfg.get("ldflags0", ldflags) if j < 2 else ldflags)
    S.valu("v_lshrrev_b32", t2, 4, L)
    S.valu("v_and_b32", t1, 15, L)
    S.valu("v_lshlrev_b32", t0, 8, t2)
    S.salu("s_and_b32", "s45", "s44", 1)
    S.salu("s_lshl_b32", "s45", "s45", 12)
    S.salu("s_lshr_b32", "s46", "s44", 1)
    S.salu("s_lshl_b32", "s46", "s46", 18)
    S.salu("s_add_u32", "s45", "s45", "s46")
    S.valu("v_add_u32", t0, "s45", t0)
    S.valu("v_xor_b32", "v5", t1, t2)
    for ii in range(4):
        S.valu("v_xor_b32", v(14 + ii), 4 * ii, "v5")
        S.valu("v_lshlrev_b32", v(14 + ii), 4, v(14 + ii))
        S.valu("v_add_u32", v(14 + ii), v(14 + ii), t0)
        if ii: S.valu("v_add_u32", v(14 + ii), ii * 1024, v(14 + ii))
    S.valu("v_lshlrev_b32", "v5", 2, t2)
    S.valu("v_xor_b32", "v18", t1, "v5")
    S.valu("v_lshlrev_b32", "v18", 4, "v18")
    S.valu("v_add_u32", "v18", "v18", t0)
    S.salu("s_mov_b32", "s14", 0)
    def issue_k(cw):
        for ii in range(4):
            dma(v(14 + ii), "s[56:59]", "s14", 2 * (cw % 2) * 262144 + (cw // 2) * 8192, KSLOT[cw] + ii * 1024, "k", kvflags)
    VR = 32
    def issue_v(cw):
        for ii in range(4):
            S.salu("s_mov_b32", "s46", 2 * (cw % 2) * 262144 + (cw // 2) * 8192 + ii * 1024)
            S.buf_load("buffer_load_dwordx4", v(VR + 16 * cw + 4 * ii, 4), "v18", "s[60:63]", "s46", tok="v", flags=kvflags)
    S.valu("v_lshlrev_b32", "v19", 4, L)
    S.valu("v_add_u32", "v19", "s47", "v19")
    S.valu("v_add_u32", "v20", 65536, "v19")
    S.valu("v_add_u32", "v21", 131072, "v19")
    def write_v(cw):
        sb = VSLOT[cw]; areg = 19 + sb // 65536
        for ii in range(4):
            S.ds_write("ds_write_b128", v(areg), v(VR + 16 * cw + 4 * ii, 4), sb % 65536 + ii * 1024)

    def body(S, phase, ST):
        def issue(items):
            for it in items:
                if it[0] in skip: continue
                {"w": issue_w, "x": issue_x, "k": issue_k, "v": issue_v}[it[0]](it[1])
        sched = {b: [] for b in range(-2, 17)}
        sched[-2] = [("w", 0), ("x", 0), ("w", 1)]
        sched[-1] = [("w", 2), ("x", 1), ("w", 3)]
        for st in range(0, 16):
            if st + NW < 16: sched[st].append(("w", st + NW))
            if st % 2 == 1 and (st - 1) // 2 + NX < 8: sched[st].append(("x", (st - 1) // 2 + NX))
        items = [[("k", 0), ("k", 1)], [("k", 2), ("k", 3)], [("v", 0), ("v", 1)], [("v", 2), ("v", 3)]]
        if "btab" in cfg:
            bursts = cfg["btab"][phase]
            for bt, its in zip(bursts, items):
                sched[bt] += its
        else:
            bursts = cfg.get("bursts", [0, 3, 6, 9])
            for bt, its in zip(bursts, items):
                sched[min(bt + phase, 11)] += its
        wr = {12: [0], 13: [1, 2], 14: [3]}
        lastv = max(bursts[2:]) if "btab" in cfg else 0
        if lastv >= 11:
            wr = {15: [0, 1, 2, 3]}
        issue(sched[-2])
        ST.stamp()
        S.wait_vm_tok("w0"); S.wait_vm_tok("x0")
        ST.stamp()
        S.barrier()
        issue(sched[-1])
        for st in range(16):
            if st + 1 < 16:
                S.wait_vm_tok(f"w{st+1}")
                S.wait_vm_tok(f"x{(st+1)//2}")
            else:
                S.wait_vm_tok("k")
            if st >= 13: S.wait(lgkm=0)
            ST.stamp()
            S.barrier()
            ST.stamp()
            issue(sched[st])
            for cw in wr.get(st, []):
                if "v" not in skip: write_v(cw)
            if cfg.get("fused", False) and st == cfg.get("wopf_at", 12):
                import k2b
                k2b.p2_srds(S)
                if cfg.get("wopf", True):
                    S.valu("v_lshrrev_b32", "v2", 1, L)
                    S.valu("v_lshlrev_b32", "v2", 10, "v2")
                    S.valu("v_and_b32", "v3", 1, L)
                    S.valu("v_lshlrev_b32", "v3", 7, "v3")
                    S.valu("v_add_u32", "v2", "v2", "v3")
                    S.salu("s_sub_u32", "s44", "s43", 4)
                    S.salu("s_lshl_b32", "s44", "s44", 15)
                    S.salu("s_lshl_b32", "s45", "s42", 17)
                    S.salu("s_add_u32", "s44", "s44", "s45")
                    S.buf_load("buffer_load_dword", "v24", "v2", "s[48:51]", "s44", flags=cfg.get("wopf_fl", ""))
        if cfg.get("b16", False):
            S.wait(lgkm=0)
            S.barrier()
        if cfg.get("fused", False):
            import k2b
            k2b.p2_loader_fused(S, cfg, ST)
        ST.stamp(real=True)
        ST.flush(0, 31)
        S.endpgm()
    return body

def k1_consumer(S, cfg):
    cw = "s43"
    l = "v1"
    T = [f"v{n}" for n in range(16, 32)]
    i_, hh, gb, kx, c4, t0, t1, t2 = T[:8]
    S.valu("v_and_b32", i_, 15, l)
    S.valu("v_lshrrev_b32", hh, 5, l)
    S.valu("v_bfe_u32", gb, l, 4, 1)
    S.valu("v_lshrrev_b32", kx, 2, i_)
    S.valu("v_and_b32", c4, 3, l)
    S.valu("v_and_b32", t0, 1, c4)
    S.valu("v_lshlrev_b32", t0, 4, t0)
    S.valu("v_lshrrev_b32", t1, 1, c4)
    S.valu("v_lshlrev_b32", t1, 3, t1)
    S.valu("v_or_b32", t0, t0, t1)
    S.valu("v_lshlrev_b32", t1, 5, gb)
    S.valu("v_or_b32", t0, t0, t1)
    S.valu("v_lshlrev_b32", t1, 3, hh)
    S.valu("v_add_u32", t1, t1, kx)
    S.valu("v_lshlrev_b32", t1, 9, t1)
    S.valu("v_add_u32", t0, t0, t1)
    S.salu("s_lshr_b32", "s44", cw, 1)
    S.salu("s_lshl_b32", "s44", "s44", 8)
    S.valu("v_add_u32", t0, "s44", t0)
    for t in range(4):
        S.valu("v_xor_b32", t1, t, kx)
        S.valu("v_lshlrev_b32", t1, 6, t1)
        S.valu("v_add_u32", v(2 + t), t0, t1)
        S.valu("v_add_u32", v(2 + t), WBASE, v(2 + t))
    S.valu("v_and_b32", t0, 31, l)
    S.valu("v_bfe_u32", t1, l, 1, 3)
    S.valu("v_xor_b32", t1, t1, hh)
    S.valu("v_lshlrev_b32", t0, 7, t0)
    S.salu("s_and_b32", "s44", cw, 1)
    S.salu("s_lshl_b32", "s44", "s44", 13)
    S.salu("s_add_u32", "s44", "s44", XBASE)
    S.valu("v_add_u32", t0, "s44", t0)
    for s4 in range(4):
        S.valu("v_xor_b32", t2, 2 * s4, t1)
        S.valu("v_lshlrev_b32", t2, 4, t2)
        S.valu("v_add_u32", v(10 + s4), t0, t2)
    S.salu("s_and_b32", "s44", cw, 1)
    S.salu("s_lshl_b32", "s44", "s44", 19)
    S.salu("s_lshr_b32", "s45", cw, 1)
    S.salu("s_lshl_b32", "s45", "s45", 13)
    S.salu("s_add_u32", "s70", "s44", "s45")
    S.salu("s_add_u32", "s71", "s70", 262144)
    S.salu("s_add_u32", "s72", "s70", 4096)
    S.salu("s_add_u32", "s73", "s71", 4096)
    def sel4(dst, vals):
        S.salu("s_mov_b32", dst, vals[0])
        for c in range(1, 4):
            S.salu("s_cmp_eq_u32", cw, c)
            S.salu("s_cselect_b32", dst, vals[c], dst)
    sel4("s74", KSLOT); sel4("s75", VSLOT)
    import math, struct
    c = (128 ** -0.5) * math.log2(math.e)
    S.salu("s_mov_b32", "s76", hex(struct.unpack("<I", struct.pack("<f", c))[0]))

    ABUF = [16, 32]; BBUF = [48, 56]
    ACC = lambda ib, t: 128 + 64 * ib + 16 * t
    def reads(ks):
        st, sub = ks // 2, ks % 2
        j, s4 = ks // 4, ks % 4
        slot = st % NW
        buf = ks % 2
        r = []
        def rb(ib):
            return lambda: S.ds_read("ds_read_b128", v(BBUF[buf] + 4 * ib, 4), v(10 + s4), (j % NX) * 16384 + ib * 4096)
        def ra(t, jj):
            base = 2 + t
            return lambda: S.ds_read("ds_read_b64_tr_b16", v(ABUF[buf] + 4 * t + 2 * jj, 2), v(base),
                                     (slot % 4) * 16384 + sub * 8192 + jj * 2048)
        r += [rb(0), ra(0, 0), ra(0, 1), rb(1), ra(1, 0), ra(1, 1), ra(2, 0), ra(2, 1), ra(3, 0), ra(3, 1)]
        return r
    def mfmas(ks, order):
        buf = ks % 2
        m = []
        for (t, ib) in order:
            first = (ks == 0)
            def f(t=t, ib=ib, first=first):
                S.mfma(v(ACC(ib, t), 16), v(ABUF[buf] + 4 * t, 4), v(BBUF[buf] + 4 * ib, 4), 0 if first else v(ACC(ib, t), 16))
            m.append(f)
        return m
    ST = Stamper(S, cfg.get("stamps", False), 15)
    ST.stamp()
    S.barrier()
    ST.stamp()
    for f in reads(0): f()
    std = [(0, 0), (0, 1), (1, 0), (1, 1), (2, 0), (2, 1), (3, 0), (3, 1)]
    last = [(0, 0), (1, 0), (2, 0), (3, 0), (0, 1), (1, 1), (2, 1), (3, 1)]
    def kv_addr_code():
        c = []
        a = lambda *x, **k: c.append(lambda: S.valu(*x, **k))
        a("v_and_b32", "v0", 15, l)
        a("v_lshrrev_b32", "v14", 5, l)
        a("v_xor_b32", "v0", "v0", "v14")
        a("v_lshlrev_b32", "v0", 4, "v0")
        a("v_and_b32", "v2", 31, l)
        a("v_lshlrev_b32", "v2", 8, "v2")
        a("v_add_u32", "v2", "s74", "v2")
        a("v_or_b32", "v2", "v2", "v0")
        for cidx in range(1, 8):
            a("v_xor_b32", v(2 + cidx), (2 * cidx) << 4, "v2")
        return c
    def v_addr_code():
        c = []
        a = lambda *x, **k: c.append(lambda: S.valu(*x, **k))
        a("v_bfe_u32", "v0", l, 2, 2)
        a("v_lshrrev_b32", "v14", 5, l)
        a("v_lshlrev_b32", "v14", 2, "v14")
        a("v_add_u32", "v14", "v14", "v0")
        a("v_lshlrev_b32", "v14", 8, "v14")
        a("v_add_u32", "v14", "s75", "v14")
        a("v_bfe_u32", "v10", l, 4, 1)
        a("v_lshlrev_b32", "v10", 5, "v10")
        a("v_add_u32", "v14", "v14", "v10")
        a("v_and_b32", "v10", 3, l)
        a("v_lshlrev_b32", "v10", 3, "v10")
        a("v_add_u32", "v14", "v14", "v10")
        a("v_lshlrev_b32", "v0", 6, "v0")
        for tp in range(4):
            a("v_xor_b32", v(10 + tp), tp << 6, "v0")
            a("v_add_u32", v(10 + tp), v(10 + tp), "v14")
        return c

    K0, QB0, QB1, K1 = 96, 64, 16, 144
    S0, S1 = 128, 176
    P0, P1 = 48, 56
    V0, V1 = 96, 144
    def kreads(ib, base):
        r = []
        for t in range(4):
            for u in range(2):
                cidx = 2 * t + u
                r.append(lambda cidx=cidx: S.ds_read("ds_read_b128", v(base + 4 * cidx, 4), v(2 + cidx), ib * 8192))
        return r
    def vreads(ib, base):
        r = []
        for u in range(2):
            for tp in range(4):
                for jj in range(2):
                    r.append(lambda tp=tp, u=u, jj=jj: S.ds_read("ds_read_b64_tr_b16", v(base + 4 * (2 * tp + u) + 2 * jj, 2),
                                                                v(10 + tp), ib * 8192 + u * 4096 + jj * 2048))
        return r

    for ks in range(32):
        sub = ks % 2
        if ks % 2 == 0: ST.stamp()
        if sub == 1:
            S.wait(lgkm=0)
            S.barrier()
        fill = []
        if cfg.get("nocompute", False) and ks + 1 < 32:
            continue
        if ks + 1 < 32:
            fill += reads(ks + 1)
            interleave(S, mfmas(ks, std), fill, 2)
        else:
            fill += kv_addr_code() + kreads(0, K0) + v_addr_code()
            interleave(S, mfmas(ks, last), fill, [8, 8, 4, 4, 6, 6, 6, 6])

    def cvt(dst, src, n):
        return [lambda i=i: S.valu("v_cvt_pk_bf16_f32", v(dst + i), v(src + 2 * i), v(src + 2 * i + 1)) for i in range(n)]
    def smf(acc, kb, qb):
        m = []
        for cidx in range(8):
            m.append(lambda cidx=cidx: S.mfma(v(acc, 16), v(kb + 4 * cidx, 4), v(qb + 4 * cidx, 4), 0 if cidx == 0 else v(acc, 16)))
        return m
    def softmax(acc, pdst, tm):
        c = []
        a = lambda *x, **k: c.append(lambda: S.valu(*x, **k))
        m, m2, t, t2 = [v(tm + i) for i in range(4)]
        a("v_max3_f32", m, v(acc), v(acc + 1), v(acc + 2))
        a("v_max3_f32", m2, v(acc + 3), v(acc + 4), v(acc + 5))
        a("v_max3_f32", m, m, v(acc + 6), v(acc + 7))
        a("v_max3_f32", m2, m2, v(acc + 8), v(acc + 9))
        a("v_max3_f32", m, m, v(acc + 10), v(acc + 11))
        a("v_max3_f32", m2, m2, v(acc + 12), v(acc + 13))
        a("v_max3_f32", m, m, v(acc + 14), v(acc + 15))
        a("v_max_f32", m, m, m2)
        a("v_mov_b32", m2, m)
        a("v_permlane32_swap_b32", m2, m)
        a("v_max_f32", m, m, m2)
        a("v_mul_f32", m, "s76", m)
        for r in range(16):
            a("v_fma_f32", v(acc + r), v(acc + r), "s76", "-" + m)
        for r in range(16):
            a("v_exp_f32", v(acc + r), v(acc + r))
        a("v_add_f32", t, v(acc), v(acc + 1))
        a("v_add_f32", t2, v(acc + 2), v(acc + 3))
        for r in range(4, 16, 2):
            a("v_add_f32", t, t, v(acc + r))
            a("v_add_f32", t2, t2, v(acc + r + 1))
        a("v_add_f32", t, t, t2)
        a("v_mov_b32", t2, t)
        a("v_permlane32_swap_b32", t2, t)
        a("v_add_f32", t, t, t2)
        a("v_rcp_f32", t, t)
        for r in range(16):
            a("v_mul_f32", v(acc + r), v(acc + r), t)
        for r in range(8):
            a("v_cvt_pk_bf16_f32", v(pdst + r), v(acc + 2 * r), v(acc + 2 * r + 1))
        return c
    def pvmf(otiles, vb, pb):
        m = []
        for u in range(2):
            for tp in range(4):
                m.append(lambda tp=tp, u=u: S.mfma(v(otiles[tp], 16), v(vb + 4 * (2 * tp + u), 4), v(pb + 4 * u, 4),
                                                   0 if u == 0 else v(otiles[tp], 16)))
        return m
    stflags = cfg.get("stflags", "")
    def ostore(otiles, tmp, so_lo, so_hi):
        c = []
        for tp in range(4):
            for r2 in range(2):
                f = 2 * tp + r2
                d = tmp + 4 * f
                for i in range(4):
                    c.append(lambda d=d, i=i, tp=tp, r2=r2: S.valu("v_cvt_pk_bf16_f32", v(d + i), v(otiles[tp] + 8 * r2 + 2 * i),
                                                                 v(otiles[tp] + 8 * r2 + 2 * i + 1)))
                c.append(lambda d=d, f=f: S.buf_store("buffer_store_dwordx4", v(d, 4), "v0", "s[64:67]",
                                                      so_lo if f < 4 else so_hi, (f % 4) * 1024, flags=stflags))
        return c
    ST.stamp()
    for f in cvt(QB0, ACC(0, 0), 32): f()
    interleave(S, smf(S0, K0, QB0), kreads(1, K1) + cvt(QB1, ACC(1, 0), 32), 5)
    if cfg.get("b16", False): S.barrier()
    ST.stamp()
    sm0 = softmax(S0, P0, 2)
    interleave(S, smf(S1, K1, QB1), vreads(0, V0) + sm0[:40], [2, 2, 2, 2, 2, 2, 2, 2])
    for f in sm0[40:]: f()
    O0 = [192, 208, 224, 240]
    O1 = [64, 80, 16, 32]
    sm1 = softmax(S1, P1, 6)
    interleave(S, pvmf(O0, V0, P0), vreads(1, V1) + sm1, 8)
    S.valu("v_lshlrev_b32", "v0", 4, l)
    interleave(S, pvmf(O1, V1, P1), ostore(O0, 96, "s70", "s72"), 5)
    for f in ostore(O1, 128, "s71", "s73"): f()
    ST.stamp()
    if cfg.get("fused", False):
        import k2b
        S.wait(vm=0)
        ST.stamp()
        S.barrier()
        k2b.p2_srds(S)
        k2b.p2_compute(S, cfg, ST, dbg="s[4:7]")
        ST.flush(0, 14)
        S.endpgm()
        return
    if cfg.get("stamps", False):
        S.wait(vm=0)
        ST.stamp()
    ST.flush(0, 14)
    S.endpgm()

def gen_k1(cfg):
    P = Stream("k1pro"); k1_prologue(P, cfg)
    P.salu("s_cmp_ge_u32", "s43", 4)
    P.branch("s_cbranch_scc1", "K1_FAST")
    parts = []
    X = Stream(); k1_consumer(X, cfg)
    A = Stream(); A.ins = list(P.ins) + X.ins
    parts.append(render(A.finalize()))
    nph = cfg.get("nphase", 1)
    Lc = Stream()
    body = k1_fast(Lc, cfg)
    setup = list(Lc.ins)
    if nph > 1:
        Lc.salu("s_lshr_b32", "s15", "s12", cfg.get("phase_shift", 0))
        Lc.salu("s_and_b32", "s15", "s15", nph - 1)
        for ph in range(1, nph):
            Lc.salu("s_cmp_eq_u32", "s15", ph)
            Lc.branch("s_cbranch_scc1", f"K1_PH{ph}")
    head = list(Lc.ins)
    for ph in range(nph):
        Lc.ins = []
        ST = Stamper(Lc, cfg.get("stamps", False), 30)
        ST.stamp(); ST.stamp(real=True)
        body(Lc, ph, ST)
        lab = f"K1_PH{ph}"
        A = Stream(); A.ins = list(P.ins) + [Inst("K1_FAST:", "label")] + head + [Inst(lab + ":", "label")] + list(Lc.ins)
        f = A.finalize()
        key = "K1_FAST:" if ph == 0 else lab + ":"
        idx = [k for k, i in enumerate(f) if i.kind == "label" and i.text == key][0]
        parts.append(render(f[idx:]))
    return "\n".join(parts) + "\nK1_DONE:\n    s_endpgm\n"

def gen_k2(cfg):
    S = Stream("k2")
    D = cfg.get("k2_depth", 4)
    R = D + 1
    S.salu("s_cmp_ge_u32", "s2", 256)
    S.branch("s_cbranch_scc1", "K2_DONE")
    if cfg.get("stamps", False):
        S.add(Inst("s_memtime s[98:99]", "smem", [], ["s98", "s99"]))
    S.smem("s[16:17]", "s[0:1]", 32)
    S.smem("s[18:19]", "s[0:1]", 72)
    S.smem("s[36:37]", "s[0:1]", 80)
    S.smem("s[38:39]", "s[0:1]", 96)
    S.salu("s_and_b32", "s44", "s2", 7)
    S.salu("s_lshr_b32", "s45", "s2", 3)
    S.salu("s_lshr_b32", "s40", "s44", 2)
    S.salu("s_and_b32", "s44", "s44", 3)
    S.salu("s_lshl_b32", "s44", "s44", 2)
    S.salu("s_lshr_b32", "s41", "s45", 3)
    S.salu("s_add_u32", "s41", "s41", "s44")
    S.salu("s_and_b32", "s42", "s45", 7)
    S.valu("v_lshrrev_b32", "v1", 6, "v0")
    S.valu("v_readfirstlane_b32", "s43", "v1")
    S.valu("v_and_b32", "v1", 63, "v0")
    S.salu("s_cmp_eq_u32", "s40", 0)
    S.salu("s_cselect_b64", "s[16:17]", "s[16:17]", "s[18:19]")
    S.salu("s_lshl_b32", "s44", "s42", 7)
    S.salu("s_lshl_b32", "s45", "s43", 19)
    S.salu("s_add_u32", "s44", "s44", "s45")
    make_srd(S, 48, 16, 17, "s44", 4096 * 1024)
    S.salu("s_lshl_b32", "s44", "s40", 23)
    S.salu("s_lshl_b32", "s45", "s41", 19)
    S.salu("s_add_u32", "s44", "s44", "s45")
    S.salu("s_lshl_b32", "s45", "s43", 15)
    S.salu("s_add_u32", "s44", "s44", "s45")
    make_srd(S, 52, 38, 39, "s44", 2 * 32 * 262144)
    S.salu("s_lshl_b32", "s44", "s41", 17)
    S.salu("s_lshl_b32", "s45", "s40", 10)
    S.salu("s_add_u32", "s44", "s44", "s45")
    S.salu("s_lshl_b32", "s45", "s42", 7)
    S.salu("s_add_u32", "s44", "s44", "s45")
    make_srd(S, 56, 36, 37, "s44", 1024 * 2048)
    l = "v1"
    S.valu("v_lshrrev_b32", "v3", 3, l)
    S.valu("v_bfe_u32", "v4", l, 4, 1)
    S.valu("v_lshlrev_b32", "v4", 2, "v4")
    S.valu("v_and_b32", "v5", 7, l)
    S.valu("v_xor_b32", "v4", "v4", "v5")
    S.valu("v_lshlrev_b32", "v4", 4, "v4")
    S.valu("v_lshlrev_b32", "v3", 10, "v3")
    S.valu("v_add_u32", "v2", "v3", "v4")
    S.valu("v_lshlrev_b32", "v3", 4, l)
    S.salu("s_mul_i32", "s46", "s43", R * 2048)
    S.valu("v_bfe_u32", "v6", l, 2, 2)
    S.valu("v_lshrrev_b32", "v7", 5, l)
    S.valu("v_lshlrev_b32", "v7", 2, "v7")
    S.valu("v_add_u32", "v7", "v7", "v6")
    S.valu("v_lshlrev_b32", "v7", 7, "v7")
    S.valu("v_add_u32", "v7", "s46", "v7")
    S.valu("v_bfe_u32", "v8", l, 4, 1)
    S.valu("v_lshlrev_b32", "v8", 5, "v8")
    S.valu("v_add_u32", "v7", "v7", "v8")
    S.valu("v_and_b32", "v8", 3, l)
    S.valu("v_lshlrev_b32", "v8", 3, "v8")
    S.valu("v_add_u32", "v7", "v7", "v8")
    S.valu("v_bfe_u32", "v6", l, 3, 1)
    S.valu("v_lshlrev_b32", "v6", 6, "v6")
    S.valu("v_add_u32", "v4", "v7", "v6")
    S.valu("v_xor_b32", "v6", 64, "v6")
    S.valu("v_add_u32", "v5", "v7", "v6")
    if cfg.get("k2_rot", True):
        S.salu("s_lshl_b32", "s60", "s42", 2)
        S.salu("s_and_b32", "s61", "s41", 3)
        S.salu("s_lshl_b32", "s61", "s61", 3)
        S.salu("s_add_u32", "s60", "s60", "s61")
    else:
        S.salu("s_mov_b32", "s60", 0)
    OB = 16
    NOB = D + 1
    AB = OB + 8 * NOB
    ACC = 128
    assert AB + 16 <= ACC
    ldflags = cfg.get("k2_ldflags", "")
    def issue(n):
        slot = n % R
        fw = cfg.get("k2_wfl0", " nt") if n < 8 else ldflags
        fo = cfg.get("k2_ofl0", "") if n < 4 else ldflags
        S.salu("s_add_u32", "s62", "s60", n)
        S.salu("s_and_b32", "s62", "s62", 31)
        S.salu("s_lshl_b32", "s63", "s62", 14)
        for e in range(2):
            S.salu("s_add_u32", "m0", "s46", slot * 2048 + e * 1024)
            S.salu("s_add_u32", "s47", "s63", e * 8192)
            S.buf_dma("v2", "s[48:51]", "s47", tok=f"w{n}", flags=fw)
        ob = OB + 8 * (n % NOB)
        S.salu("s_lshl_b32", "s63", "s62", 10)
        for ib in range(2):
            S.salu("s_add_u32", "s47", "s63", ib * 262144)
            S.buf_load("buffer_load_dwordx4", v(ob + 4 * ib, 4), "v3", "s[52:55]", "s47", tok=f"o{n}", flags=fo)
    def areads(n):
        slot = n % R
        ab = AB + 8 * (n % 2)
        S.wait_vm_tok(f"w{n}")
        for nt2 in range(2):
            for jj in range(2):
                S.ds_read("ds_read_b64_tr_b16", v(ab + 4 * nt2 + 2 * jj, 2), v(4 + nt2), slot * 2048 + jj * 1024)
    NS = 32
    ST = Stamper(S, cfg.get("stamps", False), 10)
    ST.stamp(); ST.stamp(real=True)
    for n in range(D): issue(n)
    areads(0)
    ST.stamp()
    for n in range(NS):
        ab = AB + 8 * (n % 2); ob = OB + 8 * (n % NOB)
        def mf(nt2, ib):
            S.mfma(v(ACC + 32 * nt2 + 16 * ib, 16), v(ab + 4 * nt2, 4), v(ob + 4 * ib, 4),
                   0 if n == 0 else v(ACC + 32 * nt2 + 16 * ib, 16))
        if n % 4 == 0: ST.stamp()
        mf(0, 0)
        if n + D < NS: issue(n + D)
        mf(0, 1)
        if n + 1 < NS: areads(n + 1)
        mf(1, 0)
        mf(1, 1)
    ST.stamp()
    S.barrier()
    ST.stamp()
    S.salu("s_mul_i32", "s46", "s43", 17408)
    S.valu("v_and_b32", "v6", 31, l)
    S.valu("v_mul_u32_u24", "v6", 272, "v6")
    S.valu("v_lshrrev_b32", "v7", 5, l)
    S.valu("v_lshlrev_b32", "v7", 4, "v7")
    S.valu("v_add_u32", "v6", "v6", "v7")
    S.valu("v_add_u32", "v6", "s46", "v6")
    for nt2 in range(2):
        for ib in range(2):
            for q in range(4):
                S.ds_write("ds_write_b128", "v6", v(ACC + 32 * nt2 + 16 * ib + 4 * q, 4), ib * 32 * 272 + (32 * nt2 + 8 * q) * 4)
    S.wait(lgkm=0)
    S.barrier()
    S.valu("v_lshrrev_b32", "v6", 3, "v0")
    S.valu("v_and_b32", "v7", 7, "v0")
    S.valu("v_mul_u32_u24", "v8", 272, "v6")
    S.valu("v_lshlrev_b32", "v9", 5, "v7")
    S.valu("v_add_u32", "v8", "v8", "v9")
    S.valu("v_add_u32", "v9", 69632, "v8")
    for w in range(8):
        base = "v8" if w < 4 else "v9"
        S.ds_read("ds_read_b128", v(16 + 8 * w, 4), base, (w % 4) * 17408)
        S.ds_read("ds_read_b128", v(16 + 8 * w + 4, 4), base, (w % 4) * 17408 + 16)
    for w in range(1, 8):
        for i in range(8):
            S.valu("v_add_f32", v(16 + i), v(16 + i), v(16 + 8 * w + i))
    for i in range(4):
        S.valu("v_cvt_pk_bf16_f32", v(12 + i), v(16 + 2 * i), v(16 + 2 * i + 1))
    S.valu("v_lshlrev_b32", "v6", 11, "v6")
    S.valu("v_lshlrev_b32", "v7", 4, "v7")
    S.valu("v_add_u32", "v6", "v6", "v7")
    S.buf_store("buffer_store_dwordx4", "v[12:15]", "v6", "s[56:59]")
    if cfg.get("stamps", False):
        S.wait(vm=0)
        ST.stamp(); ST.stamp(real=True)
    ST.flush(1, 11)
    S.endpgm()
    txt = render(S.finalize()) + "\nK2_DONE:\n    s_endpgm\n"
    lds = max(8 * R * 2048, 8 * 17408)
    return txt, lds

def gen_k2b(cfg):
    import k2b
    P = Stream("k2bpro")
    P.salu("s_cmp_ge_u32", "s2", 256)
    P.branch("s_cbranch_scc1", "K2B_DONE")
    if cfg.get("stamps", False):
        P.add(Inst("s_memtime s[98:99]", "smem", [], ["s98", "s99"]))
    P.smem("s[24:25]", "s[0:1]", 32)
    P.smem("s[26:27]", "s[0:1]", 72)
    P.smem("s[36:37]", "s[0:1]", 80)
    P.smem("s[68:69]", "s[0:1]", 88)
    P.smem("s[38:39]", "s[0:1]", 96)
    P.salu("s_and_b32", "s44", "s2", 7)
    P.salu("s_lshr_b32", "s12", "s2", 3)
    P.salu("s_lshr_b32", "s40", "s44", 2)
    P.salu("s_and_b32", "s44", "s44", 3)
    P.salu("s_lshl_b32", "s44", "s44", 2)
    P.salu("s_and_b32", "s41", "s12", 3)
    P.salu("s_add_u32", "s41", "s41", "s44")
    P.salu("s_lshr_b32", "s42", "s12", 2)
    P.valu("v_lshrrev_b32", "v1", 6, "v0")
    P.valu("v_readfirstlane_b32", "s43", "v1")
    P.valu("v_and_b32", "v1", 63, "v0")
    P.salu("s_cmp_eq_u32", "s40", 0)
    P.salu("s_cselect_b64", "s[24:25]", "s[24:25]", "s[26:27]")
    P.salu("s_mov_b32", "s70", 256)
    P.salu("s_mov_b32", "s71", "0x20000")
    k2b.p2_srds(P)
    P.salu("s_and_b32", "s79", "s41", 3)
    P.salu("s_lshl_b32", "s79", "s79", 1)
    P.salu("s_add_u32", "s79", "s79", "s42")
    P.salu("s_and_b32", "s79", "s79", 7)
    if not cfg.get("p2_rot", True): P.salu("s_mov_b32", "s79", 0)
    P.salu("s_or_b32", "s44", "s2", "s43")
    P.salu("s_cmp_lg_u32", "s44", 0)
    P.branch("s_cbranch_scc1", "K2B_NONONCE")
    P.add(Inst("s_memrealtime s[44:45]", "smem", [], ["s44", "s45"]))
    P.wait(lgkm=0)
    P.salu("s_or_b32", "s44", "s44", 1)
    P.valu("v_mov_b32", "v2", "s44")
    P.valu("v_mov_b32", "v3", "s45")
    P.valu("v_mov_b32", "v4", 0)
    P.buf_store("buffer_store_dwordx2", "v[2:3]", "v4", "s[68:71]", flags=" sc1")
    P.label("K2B_NONONCE")
    if cfg.get("clkprobe", False):
        P.add(Inst("s_memtime s[90:91]", "smem", [], ["s90", "s91"]))
        P.add(Inst("s_memrealtime s[92:93]", "smem", [], ["s92", "s93"]))
        P.wait(lgkm=0)
    P.salu("s_cmp_ge_u32", "s43", 4)
    P.branch("s_cbranch_scc1", "K2B_LOAD")
    parts = []
    X = Stream(); ST = Stamper(X, cfg.get("stamps", False), 15)
    k2b.p2_compute(X, cfg, ST)
    if cfg.get("clkprobe", False):
        X.wait(vm=0)
        X.add(Inst("s_memtime s[94:95]", "smem", [], ["s94", "s95"]))
        X.add(Inst("s_memrealtime s[96:97]", "smem", [], ["s96", "s97"]))
        X.wait(lgkm=0)
        X.salu("s_sub_u32", "s94", "s94", "s90")
        X.salu("s_sub_u32", "s96", "s96", "s92")
        X.salu("s_or_b32", "s44", "s2", "s43")
        X.salu("s_cmp_lg_u32", "s44", 0)
        X.branch("s_cbranch_scc1", "K2B_NOPROBE")
        X.valu("v_mov_b32", "v2", "s94")
        X.valu("v_mov_b32", "v3", "s96")
        X.valu("v_mov_b32", "v4", 8)
        X.buf_store("buffer_store_dwordx2", "v[2:3]", "v4", "s[68:71]")
        X.label("K2B_NOPROBE")
    ST.flush(1, 14); X.endpgm()
    A = Stream(); A.ins = list(P.ins) + X.ins
    parts.append(render(A.finalize()))
    X = Stream(); ST = Stamper(X, cfg.get("stamps", False), 30)
    k2b.p2_loader(X, cfg, ST)
    ST.flush(1, 31); X.endpgm()
    A = Stream(); A.ins = list(P.ins) + [Inst("K2B_LOAD:", "label")] + X.ins
    f = A.finalize()
    idx = [k for k, i in enumerate(f) if i.kind == "label" and i.text == "K2B_LOAD:"][0]
    parts.append(render(f[idx:]))
    return "\n".join(parts) + "\nK2B_DONE:\n    s_endpgm\n"

def kernel_wrap(label, body):
    return f""".globl {label}
.p2align 8
.type {label},@function
{label}:
{body}
"""
def desc(label, vgpr, sgpr):
    return f""".p2align 6
.amdhsa_kernel {label}
  .amdhsa_next_free_vgpr {vgpr}
  .amdhsa_next_free_sgpr {sgpr}
  .amdhsa_accum_offset {vgpr}
  .amdhsa_group_segment_fixed_size 0
  .amdhsa_kernarg_size 104
  .amdhsa_user_sgpr_count 2
  .amdhsa_user_sgpr_kernarg_segment_ptr 1
  .amdhsa_system_sgpr_workgroup_id_x 1
.end_amdhsa_kernel
"""

def generate(cfg):
    if cfg.get("launches") == ["fused"]: cfg["fused"] = True
    k1 = gen_k1(cfg)
    k2, lds2 = gen_k2(cfg)
    hdr = []
    order = cfg.get("launches", ["k1", "k2b"])
    for k in order:
        if k == "k1": hdr.append(f"; @launch kernel=attn_k1_kernel grid=(256,1,1) block=(512,1,1) lds=163840")
        if k == "k2": hdr.append(f"; @launch kernel=attn_k2_kernel grid=(256,1,1) block=(512,1,1) lds={lds2}")
        if k == "fused": hdr.append(f"; @launch kernel=attn_k1_kernel grid=(256,1,1) block=(512,1,1) lds=163840")
        if k == "nop": hdr.append(f"; @launch kernel=attn_nop_kernel grid=(256,1,1) block=(64,1,1) lds=0")
        if k == "k2b": hdr.append(f"; @launch kernel=attn_k2b_kernel grid=(256,1,1) block=(512,1,1) lds=131072")
    txt = "\n".join(hdr) + "\n"
    txt += '.amdgcn_target "amdgcn-amd-amdhsa--gfx950"\n.text\n'
    ks = []
    if "k1" in order or "fused" in order: ks.append(("attn_k1_kernel", k1, 256))
    if "k2" in order: ks.append(("attn_k2_kernel", k2, 192))
    if "k2b" in order: ks.append(("attn_k2b_kernel", gen_k2b(cfg), 256))
    if "nop" in order: ks.append(("attn_nop_kernel", "    s_endpgm\n", 8))
    for (n, b, vg) in ks: txt += kernel_wrap(n, b)
    txt += '.section .rodata,"a"\n'
    for (n, b, vg) in ks: txt += desc(n, vg, 102)
    return txt

if __name__ == "__main__":
    import json
    cfg = {}
    out = f"cdna_kernels/{NAME}.s"
    for a in sys.argv[1:]:
        if a.startswith("-o"): out = a[2:]
        else:
            k, val = a.split("=", 1)
            try: val = json.loads(val)
            except Exception: pass
            cfg[k] = val
    open(out, "w").write(generate(cfg))
    print("wrote", out)
```

```python
import re

def _expand(r):
    m = re.fullmatch(r"([vsa])\[(\d+):(\d+)\]", r)
    if m:
        return [f"{m.group(1)}{i}" for i in range(int(m.group(2)), int(m.group(3)) + 1)]
    return [r]

def regs(*rs):
    out = []
    for r in rs:
        if r is None: continue
        if isinstance(r, (list, tuple, set)):
            out += regs(*r)
        elif isinstance(r, str):
            if re.fullmatch(r"[vsa]\d+|[vsa]\[\d+:\d+\]|vcc|m0|exec|scc", r):
                if r == "vcc": out += ["vcc"]
                else: out += _expand(r)
    return out

def v(a, n=1):
    return f"v{a}" if n == 1 else f"v[{a}:{a+n-1}]"
def s(a, n=1):
    return f"s{a}" if n == 1 else f"s[{a}:{a+n-1}]"

TRANS = ("v_exp_f32", "v_log_f32", "v_rcp_f32", "v_rsq_f32", "v_sqrt_f32", "v_sin_f32", "v_cos_f32")

class Inst:
    __slots__ = ("text", "kind", "rd", "wr", "tok", "passes", "srcc", "note", "ab")
    def __init__(self, text, kind, rd=(), wr=(), tok=None, passes=0, srcc=(), ab=()):
        self.text = text; self.kind = kind
        self.rd = set(rd); self.wr = set(wr); self.tok = tok
        self.passes = passes; self.srcc = set(srcc); self.ab = set(ab)

class Stream:
    def __init__(self, name=""):
        self.name = name
        self.ins = []
    def add(self, i):
        self.ins.append(i); return i
    def raw(self, text):
        return self.add(Inst(text, "raw"))
    sfx = ""
    def _l(self, l):
        return l + Stream.sfx if l.startswith("FL_") else l
    def label(self, l):
        return self.add(Inst(self._l(l) + ":", "label"))
    def comment(self, c):
        return self.add(Inst("; " + c, "comment"))
    def salu(self, op, dst, *srcs, extra=""):
        wr = regs(dst)
        rd = regs(*srcs)
        txt = f"{op} " + ", ".join([str(dst)] + [str(x) for x in srcs]) + extra
        if op.startswith("s_cmp"):
            rd = regs(dst, *srcs); wr = ["scc"]
        return self.add(Inst(txt, "salu", rd, wr))
    def smem(self, dst, base, off):
        n = len(regs(dst))
        op = {1: "s_load_dword", 2: "s_load_dwordx2", 4: "s_load_dwordx4", 8: "s_load_dwordx8", 16: "s_load_dwordx16"}[n]
        return self.add(Inst(f"{op} {dst}, {base}, {off}", "smem", regs(base), regs(dst)))
    def valu(self, op, dst, *srcs, extra=""):
        wr = regs(dst)
        rd = regs(*[str(x).lstrip("-").replace("abs(", "").rstrip(")") for x in srcs])
        kind = "valu"
        base = op.replace("_e32", "").replace("_e64", "")
        if base in TRANS: kind = "trans"
        if base.startswith("v_fmac") or base.startswith("v_pk_fmac"): rd += wr
        if base.startswith("v_cndmask") and len(srcs) == 2: rd += ["vcc"]
        if base.startswith("v_readfirstlane") or base.startswith("v_readlane"): kind = "readlane"
        if base.startswith("v_permlane"):
            kind = "permlane"; rd += wr; wr += regs(*srcs)
        if base.startswith("v_cmp") and dst == "vcc": wr = ["vcc"]
        txt = f"{op} " + ", ".join([str(dst)] + [str(x) for x in srcs]) + extra
        return self.add(Inst(txt, kind, rd, wr))
    def mfma(self, d, a, b, c, shape="32x32x16"):
        passes = 8 if shape == "32x32x16" else 4
        txt = f"v_mfma_f32_{shape}_bf16 {d}, {a}, {b}, {c}"
        rc = regs(c) if isinstance(c, str) else []
        return self.add(Inst(txt, "mfma", regs(a, b) + rc, regs(d), passes=passes, srcc=rc, ab=regs(a, b)))
    def ds_read(self, op, dst, addr, offset=0, tok=None):
        assert 0 <= offset < 65536, offset
        o = f" offset:{offset}" if offset else ""
        return self.add(Inst(f"{op} {dst}, {addr}{o}", "ds_read", regs(addr), regs(dst), tok=tok))
    def ds_write(self, op, addr, data, offset=0, tok=None):
        assert 0 <= offset < 65536, offset
        o = f" offset:{offset}" if offset else ""
        return self.add(Inst(f"{op} {addr}, {data}{o}", "ds_write", regs(addr, data), [], tok=tok))
    def buf_load(self, op, dst, voff, srd, soff="0", offset=0, flags="", tok=None):
        assert 0 <= offset < 4096
        o = f" offset:{offset}" if offset else ""
        return self.add(Inst(f"{op} {dst}, {voff}, {srd}, {soff} offen{o}{flags}", "vm_load",
                             regs(voff, srd, soff), regs(dst), tok=tok))
    def buf_dma(self, voff, srd, soff="0", offset=0, flags="", tok=None, op="buffer_load_dwordx4"):
        assert 0 <= offset < 4096
        o = f" offset:{offset}" if offset else ""
        return self.add(Inst(f"{op} {voff}, {srd}, {soff} offen{o}{flags} lds", "dma",
                             regs(voff, srd, soff) + ["m0"], [], tok=tok))
    def buf_store(self, op, data, voff, srd, soff="0", offset=0, flags="", tok=None):
        assert 0 <= offset < 4096
        o = f" offset:{offset}" if offset else ""
        return self.add(Inst(f"{op} {data}, {voff}, {srd}, {soff} offen{o}{flags}", "vm_store",
                             regs(data, voff, srd, soff), [], tok=tok, ab=regs(data)))
    def barrier(self):
        return self.add(Inst("s_barrier", "barrier"))
    def nop(self, n):
        return self.add(Inst(f"s_nop {n}", "nop", passes=n + 1))
    def wait_vm_tok(self, tok):
        return self.add(Inst("", "wait_vm_tok", tok=tok))
    def wait_lgkm_tok(self, tok):
        return self.add(Inst("", "wait_lgkm_tok", tok=tok))
    def wait(self, vm=None, lgkm=None):
        t = []
        if vm is not None: t.append(f"vmcnt({vm})")
        if lgkm is not None: t.append(f"lgkmcnt({lgkm})")
        i = Inst("s_waitcnt " + " ".join(t), "wait"); i.ab = (vm, lgkm)
        return self.add(i)
    def branch(self, op, target):
        return self.add(Inst(f"{op} {self._l(target)}", "branch", ["scc"] if "scc" in op else []))
    def endpgm(self):
        return self.add(Inst("s_endpgm", "end"))
    def setprio(self, p):
        return self.add(Inst(f"s_setprio {p}", "salu"))

    def finalize(self, auto_wait=True):
        out = self._insert_waits(self.ins) if auto_wait else list(self.ins)
        out = self._insert_nops(out)
        return out

    def _insert_waits(self, ins):
        out = []
        lg = []
        vm = []
        def do_wait(nv, nl):
            nonlocal lg, vm
            t = []
            if nv is not None:
                nv = min(nv, 63)
                if nv < len(vm): t.append(f"vmcnt({nv})"); vm = vm[len(vm) - nv:] if nv > 0 else []
            if nl is not None:
                nl = min(nl, 15)
                if nl < len(lg): t.append(f"lgkmcnt({nl})"); lg = lg[len(lg) - nl:] if nl > 0 else []
            if t:
                out.append(Inst("s_waitcnt " + " ".join(t), "wait"))
        for i in ins:
            if i.kind == "wait_vm_tok":
                idx = [k for k, (w, tok) in enumerate(vm) if tok == i.tok]
                if idx: do_wait(len(vm) - 1 - idx[-1], None)
                continue
            if i.kind == "wait_lgkm_tok":
                idx = [k for k, (w, tok) in enumerate(lg) if tok == i.tok]
                if idx: do_wait(None, len(lg) - 1 - idx[-1])
                continue
            if i.kind == "wait":
                nv, nl = i.ab
                if nv is not None: vm = vm[len(vm) - nv:] if 0 < nv < len(vm) else ([] if nv == 0 else vm)
                if nl is not None: lg = lg[len(lg) - nl:] if 0 < nl < len(lg) else ([] if nl == 0 else lg)
                out.append(i); continue
            if i.kind in ("label", "branch"):
                out.append(i); continue
            touched = i.rd | i.wr
            nl = nv = None
            for k, (w, tok) in enumerate(lg):
                if w & touched: nl = len(lg) - 1 - k
            for k, (w, tok) in enumerate(vm):
                if w & touched: nv = len(vm) - 1 - k
            if any(tok == "SMEM" for (w, tok) in lg) and nl is not None:
                nl = 0
            if nl is not None or nv is not None:
                do_wait(nv, nl)
            out.append(i)
            if i.kind in ("ds_read", "ds_write"):
                lg.append((set(i.wr), i.tok))
            elif i.kind == "smem":
                lg.append((set(i.wr), "SMEM"))
            elif i.kind in ("vm_load", "vm_store", "dma"):
                vm.append((set(i.wr), i.tok))
        return out

    def _insert_nops(self, ins):
        out = []
        def states(i):
            if i.kind in ("comment", "label"): return 0
            if i.kind == "nop": return i.passes
            return 1
        VALUISH = ("valu", "trans", "readlane", "permlane")
        for i in ins:
            if i.kind in ("comment", "label", "raw", "nop", "wait", "barrier", "branch", "end"):
                out.append(i); continue
            need = 0
            d = 0
            for p in reversed(out):
                if d > 24: break
                req = 0
                if p.kind == "mfma":
                    P = p.passes
                    big = {4: 8, 8: 12}[P]; mid = {4: 6, 8: 10}[P]; war = {4: 3, 8: 7}[P]
                    if i.kind == "mfma":
                        if p.wr & i.ab: req = max(req, big)
                        if p.wr & i.srcc:
                            if not (p.wr == i.srcc and p.passes == i.passes): req = max(req, mid)
                        if (p.wr & i.wr) and not (p.wr & i.srcc): req = max(req, mid)
                    else:
                        if p.wr & (i.rd | i.wr): req = max(req, big)
                        if i.kind in VALUISH and (p.srcc & i.wr): req = max(req, war)
                        if i.kind in ("ds_read", "vm_load") and (p.srcc & i.wr): req = max(req, war)
                elif p.kind in VALUISH:
                    vw = {r for r in p.wr if r[0] == "v" and r != "vcc"}
                    sw = {r for r in p.wr if r[0] == "s" or r == "vcc"}
                    if i.kind == "mfma" and (vw & i.rd): req = max(req, 2)
                    if i.kind == "permlane" and (vw & i.rd): req = max(req, 2)
                    if i.kind == "readlane" and (vw & i.rd): req = max(req, 1)
                    if p.kind == "trans" and i.kind in VALUISH and i.kind != "trans" and (vw & i.rd): req = max(req, 1)
                    if p.kind == "trans" and i.kind == "trans" and (vw & i.rd): req = max(req, 1)
                    if i.kind in ("vm_load", "vm_store", "dma") and (sw & i.rd): req = max(req, 5)
                    if i.kind in VALUISH and (sw & i.rd): req = max(req, 2)
                    if i.kind in ("salu", "smem") and (sw & i.rd): req = max(req, 4)
                    if "dpp" in i.text and (vw & i.rd): req = max(req, 2)
                elif p.kind == "salu":
                    if "m0" in p.wr and i.kind == "dma": req = max(req, 1)
                elif p.kind == "vm_store":
                    if len(p.ab) >= 3 and (p.ab & i.wr): req = max(req, 2)
                need = max(need, req - d)
                d += states(p)
            while need > 0:
                n = min(need, 16)
                out.append(Inst(f"s_nop {n-1}", "nop", passes=n)); need -= n
            out.append(i)
        return out

def render(insts):
    lines = []
    for i in insts:
        if i.kind in ("label",): lines.append(i.text)
        else: lines.append("    " + i.text)
    return "\n".join(lines)
```

```python
from asmlib import *

NS2 = 4
O2 = [0, 16384, 32768, 49152]
W2 = [114688, 147456, 65536, 81920]
PB_OFF = 32 << 20
FL_OFF = 56 << 20

def interleave(S, mf, fill, per_gap, lead=0):
    fi = 0
    for _ in range(min(lead, len(fill))):
        fill[fi](); fi += 1
    for k, m in enumerate(mf):
        m()
        n = per_gap[k] if isinstance(per_gap, (list, tuple)) else per_gap
        for _ in range(n):
            if fi < len(fill):
                fill[fi](); fi += 1
    while fi < len(fill):
        fill[fi](); fi += 1

def add64(S, dlo, plo, phi, off):
    S.salu("s_add_u32", s(dlo), s(plo), off)
    S.salu("s_addc_u32", s(dlo + 1), s(phi), 0)

def srd(S, r, plo, phi, off, total):
    add64(S, r, plo, phi, off)
    if isinstance(off, int): S.salu("s_mov_b32", s(r + 2), total - off)
    else: S.salu("s_sub_u32", s(r + 2), total, off)
    S.salu("s_mov_b32", s(r + 3), "0x20000")

def p2_srds(S):
    S.salu("s_lshr_b32", "s80", "s41", 2)
    S.salu("s_and_b32", "s81", "s41", 3)
    S.salu("s_lshl_b32", "s44", "s80", 20)
    S.salu("s_lshl_b32", "s45", "s81", 8)
    S.salu("s_add_u32", "s44", "s44", "s45")
    srd(S, 48, 24, 25, "s44", 4096 * 1024)
    S.salu("s_lshl_b32", "s44", "s40", 23)
    S.salu("s_lshl_b32", "s45", "s42", 20)
    S.salu("s_add_u32", "s44", "s44", "s45")
    S.salu("s_lshl_b32", "s45", "s80", 16)
    S.salu("s_add_u32", "s44", "s44", "s45")
    srd(S, 52, 38, 39, "s44", 16 << 20)
    S.salu("s_lshl_b32", "s82", "s40", 3)
    S.salu("s_add_u32", "s82", "s82", "s42")
    S.salu("s_lshl_b32", "s82", "s82", 2)
    S.salu("s_add_u32", "s82", "s82", "s81")
    S.salu("s_lshl_b32", "s44", "s82", 18)
    S.salu("s_add_u32", "s44", "s44", PB_OFF)
    srd(S, 56, 38, 39, "s44", PB_OFF + (16 << 20))
    S.salu("s_lshl_b32", "s44", "s82", 7)
    S.salu("s_add_u32", "s44", "s44", FL_OFF)
    srd(S, 60, 38, 39, "s44", FL_OFF + (128 << 10))
    S.salu("s_lshl_b32", "s44", "s42", 18)
    S.salu("s_lshl_b32", "s45", "s40", 10)
    S.salu("s_add_u32", "s44", "s44", "s45")
    S.salu("s_lshl_b32", "s45", "s81", 8)
    S.salu("s_add_u32", "s44", "s44", "s45")
    srd(S, 64, 36, 37, "s44", 1024 * 2048)

def p2_loader_setup(S, cfg, rot_sgpr, fusedorder=False):
    L = "v1"; t0, t1, t2 = "v2", "v3", "v4"
    S.salu("s_sub_u32", "s44", "s43", 4)
    S.valu("v_lshrrev_b32", t2, 4, L)
    S.valu("v_and_b32", t1, 15, L)
    S.valu("v_lshlrev_b32", t0, 2, t2)
    S.valu("v_xor_b32", t1, t1, t0)
    S.valu("v_lshlrev_b32", t1, 4, t1)
    S.valu("v_lshlrev_b32", t0, 10, t2)
    S.valu("v_add_u32", "v10", t0, t1)
    S.salu("s_lshl_b32", "s45", "s44", 14)
    S.valu("v_add_u32", "v10", "s45", "v10")
    S.valu("v_lshlrev_b32", "v11", 4, L)
    S.salu("s_lshl_b32", "s45", "s44", 18)
    S.valu("v_add_u32", "v11", "s45", "v11")
    S.salu("s_lshl_b32", "s47", "s44", 12)
    fw0 = cfg.get("p2_wfl0", ""); fw = cfg.get("p2_wfl", "")
    fo0 = cfg.get("p2_ofl0", ""); fo = cfg.get("p2_ofl", "")
    def issue(st, part="wo"):
        j, half = st // 2, st % 2
        if fusedorder:
            add = [0, 1, 2, 4, 6, 3, 5, 7][j]
        else:
            add = j
        S.salu("s_add_u32", "s13", rot_sgpr, add)
        S.salu("s_and_b32", "s13", "s13", 7)
        slot = st % NS2
        if "w" in part:
            S.salu("s_lshl_b32", "s14", "s13", 17)
            for ii in range(4):
                S.salu("s_add_u32", "m0", "s47", W2[slot] + ii * 1024)
                S.salu("s_add_u32", "s46", "s14", half * 65536 + ii * 4096)
                S.buf_dma("v10", "s[48:51]", "s46", tok=f"s{st}", flags=fw0 if st < 2 else fw)
        if "o" in part:
            S.salu("s_lshl_b32", "s14", "s13", 13)
            for ii in range(4):
                S.salu("s_add_u32", "m0", "s47", O2[slot] + ii * 1024)
                S.salu("s_add_u32", "s46", "s14", half * 4096 + ii * 1024)
                S.buf_dma("v11", "s[52:55]", "s46", tok=f"s{st}", flags=fo0 if st < 4 else fo)
    return issue

def p2_loader(S, cfg, ST, rot_sgpr="s79"):
    issue = p2_loader_setup(S, cfg, rot_sgpr)
    issue(0); issue(1)
    S.wait_vm_tok("s0")
    ST.stamp()
    S.barrier()
    issue(2); issue(3)
    for st in range(16):
        if st + 1 < 16: S.wait_vm_tok(f"s{st+1}")
        ST.stamp()
        S.barrier()
        if st + NS2 < 16: issue(st + NS2)

FLO_OFF = FL_OFF + (1 << 20)

def spin_nonce(S, dbg, lab, vr=8, vz="v10"):
    S.salu("s_mov_b32", "s83", 0)
    S.label(lab)
    S.valu("v_readfirstlane_b32", "s84", v(vr))
    S.valu("v_readfirstlane_b32", "s85", v(vr + 1))
    S.nop(3)
    S.salu("s_or_b32", "s86", "s84", "s85")
    S.salu("s_cmp_lg_u32", "s86", 0)
    S.branch("s_cbranch_scc1", lab + "_OK")
    S.salu("s_add_u32", "s83", "s83", 1)
    S.salu("s_cmp_gt_u32", "s83", 200000)
    S.branch("s_cbranch_scc1", lab + "_OK")
    S.raw("s_sleep 4")
    S.buf_load("buffer_load_dwordx2", v(vr, 2), vz, dbg, flags=" sc1")
    S.wait(vm=0)
    S.branch("s_branch", lab)
    S.label(lab + "_OK")

def flag_store(S, srd_, off_sgpr, vz, vn, L="v1", fl=" sc1"):
    S.valu("v_cmp_eq_u32", "vcc", 0, L)
    S.salu("s_mov_b64", "s[86:87]", "exec")
    S.add(Inst("s_and_b64 exec, exec, vcc", "salu", ["vcc"], ["exec"]))
    S.buf_store("buffer_store_dwordx2", vn, vz, srd_, off_sgpr, flags=fl)
    S.add(Inst("s_mov_b64 exec, s[86:87]", "salu", [], ["exec"]))

def poll(S, lab, srd_, voff, soff, vtmp, vn, sleep=1, raw=False):
    S.salu("s_mov_b32", "s83", 0)
    S.label(lab)
    if raw:
        S.raw("s_nop 4")
        S.raw(f"buffer_load_dwordx2 {vtmp}, {voff}, {srd_}, {soff} offen sc1")
        S.raw("s_waitcnt vmcnt(0)")
    else:
        S.buf_load("buffer_load_dwordx2", vtmp, voff, srd_, soff, flags=" sc1")
        S.wait(vm=0)
    S.valu("v_cmp_eq_u64", "vcc", vtmp, vn)
    S.nop(4)
    S.add(Inst("s_cmp_eq_u64 vcc, exec", "salu", ["vcc"], ["scc"]))
    S.branch("s_cbranch_scc1", lab + "_OK")
    S.salu("s_add_u32", "s83", "s83", 1)
    S.salu("s_cmp_gt_u32", "s83", 200000)
    S.branch("s_cbranch_scc1", lab + "_OK")
    S.raw(f"s_sleep {sleep}")
    S.branch("s_branch", lab)
    S.label(lab + "_OK")

def raw_flag(S, off_sgpr):
    S.raw("v_cmp_eq_u32 vcc, 0, v1")
    S.raw("s_mov_b64 s[86:87], exec")
    S.raw("s_nop 3")
    S.raw("s_and_b64 exec, exec, vcc")
    S.raw(f"buffer_store_dwordx2 v[16:17], v12, s[8:11], {off_sgpr} offen sc1")
    S.raw("s_mov_b64 exec, s[86:87]")

def p2_loader_fused(S, cfg, ST):
    L = "v1"
    S.salu("s_lshl_b32", "s44", "s40", 2)
    S.salu("s_add_u32", "s44", "s44", "s80")
    S.salu("s_lshl_b32", "s44", "s44", 3)
    S.salu("s_add_u32", "s44", "s44", "s42")
    S.salu("s_lshl_b32", "s44", "s44", 8)
    S.salu("s_add_u32", "s44", "s44", FLO_OFF)
    srd(S, 8, 38, 39, "s44", FLO_OFF + (256 << 10))
    S.salu("s_lshl_b32", "s79", "s81", 1)
    issue = p2_loader_setup(S, cfg, "s79", True)
    issue(0, "w"); issue(1, "w")
    S.valu("v_mov_b32", "v12", 0)
    S.buf_load("buffer_load_dwordx2", "v[14:15]", "v12", "s[4:7]", flags=" sc1", tok="nonce")
    S.valu("v_and_b32", "v18", 15, L)
    S.valu("v_lshlrev_b32", "v18", 3, "v18")
    S.valu("v_lshlrev_b32", "v19", 4, L)
    S.salu("s_sub_u32", "s44", "s43", 4)
    S.salu("s_lshl_b32", "s45", "s44", 12)
    S.valu("v_add_u32", "v20", "s45", "v19")
    S.salu("s_lshl_b32", "s15", "s81", 14)
    S.salu("s_lshl_b32", "s45", "s44", 18)
    S.salu("s_add_u32", "s15", "s15", "s45")
    S.salu("s_lshl_b32", "s88", "s81", 2)
    S.salu("s_add_u32", "s88", "s88", "s44")
    S.salu("s_lshl_b32", "s88", "s88", 3)
    S.salu("s_add_u32", "s89", "s88", 128)
    S.salu("s_mov_b32", "s90", 128)
    S.valu("v_mov_b32", "v21", 131072)
    def wg_poll(lab, soff, val, backup=False):
        S.salu("s_cmp_lg_u32", "s43", 4)
        S.branch("s_cbranch_scc1", lab + "_W")
        S.salu("s_mov_b32", "s83", 0)
        S.label(lab)
        S.raw("s_nop 4")
        S.raw(f"buffer_load_dwordx2 v[14:15], v18, s[8:11], {soff} offen sc1")
        S.raw("s_waitcnt vmcnt(0)")
        S.valu("v_cmp_eq_u64", "vcc", "v[14:15]", "v[16:17]")
        S.nop(4)
        S.add(Inst("s_cmp_eq_u64 vcc, exec", "salu", ["vcc"], ["scc"]))
        S.branch("s_cbranch_scc1", lab + "_OK")
        S.salu("s_add_u32", "s83", "s83", 1)
        if backup:
            S.salu("s_cmp_lg_u32", "s83", cfg.get("backup_after", 8))
            S.branch("s_cbranch_scc1", lab + "_NB")
            raw_flag(S, "s88")
            S.label(lab + "_NB")
        S.salu("s_cmp_gt_u32", "s83", 200000)
        S.branch("s_cbranch_scc1", lab + "_OK")
        S.raw(f"s_sleep {cfg.get('o_sleep', 4)}")
        S.branch("s_branch", lab)
        S.label(lab + "_OK")
        S.valu("v_mov_b32", "v22", val)
        S.ds_write("ds_write_b32", "v21", "v22")
        S.wait(lgkm=0)
        S.branch("s_branch", lab + "_D")
        S.label(lab + "_W")
        S.salu("s_mov_b32", "s83", 0)
        S.label(lab + "_L")
        S.ds_read("ds_read_b32", "v22", "v21")
        S.wait(lgkm=0)
        S.valu("v_readfirstlane_b32", "s86", "v22")
        S.nop(3)
        S.salu("s_cmp_ge_u32", "s86", val)
        S.branch("s_cbranch_scc1", lab + "_D")
        S.salu("s_add_u32", "s83", "s83", 1)
        if backup:
            S.salu("s_cmp_lg_u32", "s83", cfg.get("backup_after_l", 40))
            S.branch("s_cbranch_scc1", lab + "_NB2")
            raw_flag(S, "s88")
            S.label(lab + "_NB2")
        S.salu("s_cmp_gt_u32", "s83", 4000000)
        S.branch("s_cbranch_scc1", lab + "_D")
        S.raw("s_sleep 1")
        S.branch("s_branch", lab + "_L")
        S.label(lab + "_D")
        if backup:
            raw_flag(S, "s88")
    S.wait(lgkm=0)
    ST.stamp()
    S.barrier()
    S.wait(vm=0)
    spin_nonce(S, "s[4:7]", "FL_NONCE", 14, "v12")
    S.valu("v_mov_b32", "v16", "s84")
    S.valu("v_mov_b32", "v17", "s85")
    S.barrier()
    ST.stamp(real=cfg.get("realst", False))
    S.valu("v_mov_b32", "v22", 0)
    S.ds_write("ds_write_b32", "v21", "v22")
    S.ds_write("ds_write_b64", "v21", "v[16:17]", 8)
    issue(2, "w"); issue(3, "w")
    stf = cfg.get("stflags", " sc1")
    for hh in range(2):
        for f in range(8):
            S.ds_read("ds_read_b128", v(32 + 32 * hh + 4 * f, 4), "v20", (2 * hh + f // 4) * 16384 + (f % 4) * 1024)
    def stores(hh, fs):
        for f in fs:
            S.salu("s_add_u32", "s46", "s15", hh * 8192 + (f // 4) * 4096)
            S.buf_store("buffer_store_dwordx4", v(32 + 32 * hh + 4 * f, 4), "v19", "s[52:55]", "s46", (f % 4) * 1024, flags=stf, tok=f"ost{hh}")
    if cfg.get("nosplit", False):
        pn = cfg.get("o_pacen", [6, 5, 5])
        allst = [(0, f) for f in range(8)] + [(1, f) for f in range(8)]
        c = 0
        for st in range(16):
            if st < 3:
                for (hh, f) in allst[c:c + pn[st]]: stores(hh, [f])
                c += pn[st]
            if st == 3:
                S.wait_vm_tok("ost1")
                ST.stamp(real=cfg.get("realst", False))
                fast = cfg.get("fastflag", False)
                flag_store(S, "s[8:11]", "s88", "v12", "v[16:17]", fl="" if fast else " sc1")
                if fast == "late":
                    pass
                wg_poll("FL_POLL0", "0", 1, backup=fast)
                ST.stamp(real=cfg.get("realst", False))
                issue(4); issue(5); issue(6)
            if st + 1 < 16: S.wait_vm_tok(f"s{st+1}")
            if st == 0: S.wait(lgkm=0)
            ST.stamp()
            S.barrier()
            if st >= 3 and st + NS2 < 16: issue(st + NS2)
        return
    p0 = cfg.get("o_pace0", [3, 3, 2])
    p1 = cfg.get("o_pace1", [3, 3, 2])
    c0 = c1 = 0
    for st in range(16):
        if st < 3:
            stores(0, range(c0, c0 + p0[st])); c0 += p0[st]
        if st == 3:
            S.wait_vm_tok("ost0")
            ST.stamp()
            flag_store(S, "s[8:11]", "s88", "v12", "v[16:17]")
            wg_poll("FL_POLL0", "0", 1)
            ST.stamp()
            issue(4); issue(5); issue(6)
            stores(1, range(c1, c1 + p1[0])); c1 += p1[0]
        if st + 1 < 16: S.wait_vm_tok(f"s{st+1}")
        if st == 0: S.wait(lgkm=0)
        ST.stamp()
        S.barrier()
        if st == 5:
            S.wait_vm_tok("ost1")
            flag_store(S, "s[8:11]", "s89", "v12", "v[16:17]")
        if st == 6:
            wg_poll("FL_POLL1", "s90", 2)
            ST.stamp()
        if st >= 3 and st + NS2 < 16: issue(st + NS2)
        if st in (3, 4):
            stores(1, range(c1, c1 + p1[st - 2])); c1 += p1[st - 2]
    assert c0 == 8 and c1 == 8

def p2_compute(S, cfg, ST, dbg="s[68:71]", fused=False):
    cw = "s43"; l = "v1"
    T = [f"v{n}" for n in range(16, 24)]
    hh, gb, kx, c4, t0, t1, t2, t3 = T
    S.valu("v_lshrrev_b32", hh, 5, l)
    S.valu("v_bfe_u32", gb, l, 4, 1)
    S.valu("v_bfe_u32", kx, l, 2, 2)
    S.valu("v_and_b32", c4, 3, l)
    S.valu("v_and_b32", t0, 1, c4)
    S.valu("v_lshlrev_b32", t0, 4, t0)
    S.valu("v_lshrrev_b32", t1, 1, c4)
    S.valu("v_lshlrev_b32", t1, 3, t1)
    S.valu("v_or_b32", t0, t0, t1)
    S.valu("v_lshlrev_b32", t1, 5, gb)
    S.valu("v_or_b32", t0, t0, t1)
    S.valu("v_lshlrev_b32", t1, 2, hh)
    S.valu("v_add_u32", t1, t1, kx)
    S.valu("v_lshlrev_b32", t1, 8, t1)
    S.valu("v_add_u32", t0, t0, t1)
    S.salu("s_lshr_b32", "s44", cw, 1)
    S.salu("s_lshl_b32", "s44", "s44", 1)
    for a in range(2):
        S.valu("v_add_u32", t1, "s44", kx) if False else None
        S.salu("s_add_u32", "s45", "s44", a)
        S.valu("v_xor_b32", t1, "s45", kx)
        S.valu("v_lshlrev_b32", t1, 6, t1)
        S.valu("v_add_u32", v(2 + a), t0, t1)
        S.valu("v_add_u32", v(2 + a), 65536, v(2 + a))
        S.valu("v_add_u32", v(4 + a), 65536, v(2 + a))
    S.valu("v_lshlrev_b32", t0, 4, l)
    S.salu("s_and_b32", "s44", cw, 1)
    S.salu("s_lshl_b32", "s44", "s44", 13)
    S.valu("v_add_u32", "v6", "s44", t0)
    AB = [16, 24]; BB = [32, 40]; ACC = lambda a, b: 64 + 16 * (2 * a + b)
    def reads(ks):
        st, sk = ks // 4, ks % 4
        slot = st % NS2
        wrel = W2[slot] - 65536; hi = wrel // 65536; lo = wrel % 65536
        buf = ks % 2
        r = []
        def rb(b): return lambda: S.ds_read("ds_read_b128", v(BB[buf] + 4 * b, 4), "v6", O2[slot] + b * 4096 + sk * 1024)
        def ra(a, jj): return lambda: S.ds_read("ds_read_b64_tr_b16", v(AB[buf] + 4 * a + 2 * jj, 2), v(2 + a + 2 * hi), lo + sk * 4096 + jj * 2048)
        return [rb(0), ra(0, 0), ra(0, 1), rb(1), ra(1, 0), ra(1, 1)]
    def mf(ks):
        buf = ks % 2
        return [lambda a=a, b=b: S.mfma(v(ACC(a, b), 16), v(AB[buf] + 4 * a, 4), v(BB[buf] + 4 * b, 4), 0 if ks == 0 else v(ACC(a, b), 16))
                for (a, b) in ((0, 0), (0, 1), (1, 0), (1, 1))]
    ST.stamp()
    if fused: S.wait(lgkm=0)
    S.barrier()
    ST.stamp()
    for f in reads(0): f()
    for ks in range(64):
        if ks % 4 == 3:
            S.wait(lgkm=0)
            S.barrier()
            ST.stamp()
        fill = reads(ks + 1) if ks + 1 < 64 else []
        interleave(S, mf(ks), fill, 2)
    if cfg.get("xtag", False) and fused:
        ST.stamp()
        S.valu("v_mov_b32", "v10", 131072)
        S.ds_read("ds_read_b64", "v[8:9]", "v10", 8)
        S.valu("v_lshlrev_b32", "v11", 4, l)
        S.salu("s_lshl_b32", "s44", "s80", 2)
        S.salu("s_add_u32", "s44", "s44", cw)
        S.salu("s_lshl_b32", "s44", "s44", 12)
        for q in range(4):
            S.salu("s_cmp_eq_u32", "s80", q)
            S.branch("s_cbranch_scc1", f"P2_OWN{q}")
            S.salu("s_add_u32", "s45", "s44", q * 65536)
            S.nop(7)
            R = 128 + 12 * q
            pos = [0, 1, 2, 4, 5, 6, 8, 9]
            for i in range(8):
                S.valu("v_cvt_pk_bf16_f32", v(R + pos[i]), v(64 + 16 * q + 2 * i), v(64 + 16 * q + 2 * i + 1))
            for t in (3, 7, 10, 11):
                S.valu("v_mov_b32", v(R + t), "v8")
            for i in range(3):
                S.buf_store("buffer_store_dwordx4", v(R + 4 * i, 4), "v11", "s[56:59]", "s45", i * 1024, flags=" sc1")
            S.branch("s_branch", f"P2_N{q}")
            S.label(f"P2_OWN{q}")
            S.nop(15)
            for i in range(16):
                S.valu("v_mov_b32", v(48 + i), v(64 + 16 * q + i))
            S.label(f"P2_N{q}")
        ST.stamp()
        for i in range(3):
            S.salu("s_add_u32", "s45", "s80", i + 1)
            S.salu("s_and_b32", "s45", "s45", 3)
            S.salu("s_lshl_b32", "s46", "s80", 2)
            S.salu("s_add_u32", "s45", "s45", "s46")
            S.salu("s_lshl_b32", "s45", "s45", 2)
            S.salu("s_add_u32", "s45", "s45", cw)
            S.salu("s_lshl_b32", f"s{88 + i}", "s45", 12)
        D = 180
        if not cfg.get("xfull", False):
            S.salu("s_mov_b32", "s83", 0)
            S.label("P2_TP")
            S.raw("s_nop 4")
            for i in range(3):
                S.raw(f"buffer_load_dwordx4 v[{D + 12 * i + 8}:{D + 12 * i + 11}], v11, s[56:59], s{88 + i} offen offset:2048 sc1")
            S.raw("s_waitcnt vmcnt(0)")
            S.raw(f"v_cmp_eq_u32 vcc, v8, v{D + 11}")
            S.raw(f"v_cmp_eq_u32 s[86:87], v8, v{D + 12 + 11}")
            S.raw(f"v_cmp_eq_u32 s[92:93], v8, v{D + 24 + 11}")
            S.raw("s_nop 4")
            S.raw("s_and_b64 vcc, vcc, s[86:87]")
            S.raw("s_and_b64 vcc, vcc, s[92:93]")
            S.raw("s_cmp_eq_u64 vcc, exec")
            S.raw("s_cbranch_scc1 P2_TP_OK")
            S.raw("s_add_u32 s83, s83, 1")
            S.raw("s_cmp_gt_u32 s83, 200000")
            S.raw("s_cbranch_scc1 P2_TP_OK")
            S.raw(f"s_sleep {cfg.get('x_sleep', 2)}")
            S.raw("s_branch P2_TP")
            S.label("P2_TP_OK")
            ST.stamp()
        S.salu("s_mov_b32", "s83", 0)
        S.label("P2_TQ")
        S.raw("s_nop 4")
        NQ = 3 if cfg.get("xfull", False) else 2
        for i in range(3):
            for k_ in range(NQ):
                S.raw(f"buffer_load_dwordx4 v[{D + 12 * i + 4 * k_}:{D + 12 * i + 4 * k_ + 3}], v11, s[56:59], s{88 + i} offen offset:{k_ * 1024} sc1")
        S.raw("s_waitcnt vmcnt(0)")
        S.raw("s_mov_b64 s[94:95], exec")
        for i in range(3):
            for k_ in range(NQ):
                S.raw(f"v_cmp_eq_u32 vcc, v8, v{D + 12 * i + 4 * k_ + 3}")
                S.raw("s_nop 4")
                S.raw("s_and_b64 s[94:95], s[94:95], vcc")
        S.raw("s_cmp_eq_u64 s[94:95], exec")
        S.raw("s_cbranch_scc1 P2_TQ_OK")
        S.raw("s_add_u32 s83, s83, 1")
        S.raw("s_cmp_gt_u32 s83, 200000")
        S.raw("s_cbranch_scc1 P2_TQ_OK")
        S.raw(f"s_sleep {cfg.get('x_sleep2', 1)}")
        S.raw("s_branch P2_TQ")
        S.label("P2_TQ_OK")
        S.salu("s_mov_b32", "s46", "0xffff0000")
        pos = [0, 1, 2, 4, 5, 6, 8, 9]
        for i in range(3):
            for k_ in range(8):
                src = v(D + 12 * i + pos[k_])
                S.valu("v_lshlrev_b32", "v16", 16, src)
                S.valu("v_and_b32", "v17", "s46", src)
                S.valu("v_add_f32", v(48 + 2 * k_), v(48 + 2 * k_), "v16")
                S.valu("v_add_f32", v(48 + 2 * k_ + 1), v(48 + 2 * k_ + 1), "v17")
        for k_ in range(8):
            S.valu("v_cvt_pk_bf16_f32", v(16 + k_), v(48 + 2 * k_), v(48 + 2 * k_ + 1))
    else:
        ST.stamp()
        xbf = cfg.get("xbf16", False)
        TB = 2048 if xbf else 4096
        S.valu("v_mov_b32", "v10", 0)
        S.buf_load("buffer_load_dwordx2", "v[8:9]", "v10", dbg, flags=" sc1")
        S.valu("v_lshlrev_b32", "v11", 4, l)
        S.salu("s_lshl_b32", "s44", "s80", 2)
        S.salu("s_add_u32", "s44", "s44", cw)
        S.salu("s_lshl_b32", "s44", "s44", 12)
        stf = cfg.get("p2_stfl", " sc1")
        for q in range(4):
            S.salu("s_cmp_eq_u32", "s80", q)
            S.branch("s_cbranch_scc1", f"P2_OWN{q}")
            S.salu("s_add_u32", "s45", "s44", q * 65536)
            if xbf:
                S.nop(7)
                for i in range(8):
                    S.valu("v_cvt_pk_bf16_f32", v(128 + 8 * q + i), v(64 + 16 * q + 2 * i), v(64 + 16 * q + 2 * i + 1))
                for i in range(2):
                    S.buf_store("buffer_store_dwordx4", v(128 + 8 * q + 4 * i, 4), "v11", "s[56:59]", "s45", i * 1024, flags=stf)
            else:
                for i in range(4):
                    S.buf_store("buffer_store_dwordx4", v(64 + 16 * q + 4 * i, 4), "v11", "s[56:59]", "s45", i * 1024, flags=stf)
            S.branch("s_branch", f"P2_N{q}")
            S.label(f"P2_OWN{q}")
            S.nop(15)
            for i in range(16):
                S.valu("v_mov_b32", v(48 + i), v(64 + 16 * q + i))
            S.label(f"P2_N{q}")
        S.wait(vm=0)
        ST.stamp()
        spin_nonce(S, dbg, "P2_NONCE", 8, "v10")
        S.salu("s_lshl_b32", "s45", "s80", 2)
        S.salu("s_add_u32", "s45", "s45", cw)
        S.salu("s_lshl_b32", "s45", "s45", 3)
        S.valu("v_mov_b32", "v12", "s84")
        S.valu("v_mov_b32", "v13", "s85")
        flag_store(S, "s[60:63]", "s45", "v10", "v[12:13]")
        S.valu("v_and_b32", "v14", 3, l)
        S.valu("v_lshlrev_b32", "v14", 5, "v14")
        S.salu("s_lshl_b32", "s45", cw, 3)
        poll(S, "P2_POLL", "s[60:63]", "v14", "s45", "v[8:9]", "v[12:13]", sleep=cfg.get("x_sleep", 4))
        ST.stamp()
        ldf = cfg.get("p2_ldfl", " sc1")
        for i in range(3):
            S.salu("s_add_u32", "s45", "s80", i + 1)
            S.salu("s_and_b32", "s45", "s45", 3)
            S.salu("s_lshl_b32", "s46", "s80", 2)
            S.salu("s_add_u32", "s45", "s45", "s46")
            S.salu("s_lshl_b32", "s45", "s45", 2)
            S.salu("s_add_u32", "s45", "s45", cw)
            S.salu("s_lshl_b32", "s45", "s45", 12)
            if xbf:
                for k in range(2):
                    S.buf_load("buffer_load_dwordx4", v(128 + 8 * i + 4 * k, 4), "v11", "s[56:59]", "s45", k * 1024, flags=ldf)
            else:
                for k in range(4):
                    S.buf_load("buffer_load_dwordx4", v(128 + 16 * i + 4 * k, 4), "v11", "s[56:59]", "s45", k * 1024, flags=ldf)
        if xbf:
            S.salu("s_mov_b32", "s46", "0xffff0000")
            for i in range(3):
                for k in range(8):
                    S.valu("v_lshlrev_b32", "v16", 16, v(128 + 8 * i + k))
                    S.valu("v_and_b32", "v17", "s46", v(128 + 8 * i + k))
                    S.valu("v_add_f32", v(48 + 2 * k), v(48 + 2 * k), "v16")
                    S.valu("v_add_f32", v(48 + 2 * k + 1), v(48 + 2 * k + 1), "v17")
        else:
            for i in range(3):
                for k in range(16):
                    S.valu("v_add_f32", v(48 + k), v(48 + k), v(128 + 16 * i + k))
        for k in range(8):
            S.valu("v_cvt_pk_bf16_f32", v(16 + k), v(48 + 2 * k), v(48 + 2 * k + 1))

    S.valu("v_and_b32", "v10", 31, l)
    S.valu("v_lshlrev_b32", "v10", 11, "v10")
    S.valu("v_lshrrev_b32", "v12", 5, l)
    S.valu("v_lshlrev_b32", "v12", 4, "v12")
    S.valu("v_add_u32", "v10", "v10", "v12")
    S.salu("s_and_b32", "s44", cw, 1)
    S.salu("s_lshl_b32", "s44", "s44", 1)
    S.salu("s_and_b32", "s45", "s80", 1)
    S.salu("s_add_u32", "s44", "s44", "s45")
    S.salu("s_lshl_b32", "s44", "s44", 16)
    S.salu("s_lshr_b32", "s45", cw, 1)
    S.salu("s_lshl_b32", "s45", "s45", 7)
    S.salu("s_add_u32", "s44", "s44", "s45")
    S.salu("s_lshr_b32", "s45", "s80", 1)
    S.salu("s_lshl_b32", "s45", "s45", 6)
    S.salu("s_add_u32", "s44", "s44", "s45")
    S.buf_store("buffer_store_dwordx4", "v[16:19]", "v10", "s[64:67]", "s44", 0)
    S.buf_store("buffer_store_dwordx4", "v[20:23]", "v10", "s[64:67]", "s44", 32)
    ST.stamp()
```

```python
import sys, argparse
from asmlib import *

NAME = "concat_heads__mha_block_cached__gqa_block_cached__near_ridge"

def interleave(S, mf, fill, per_gap, lead=0):
    fi = 0
    for _ in range(min(lead, len(fill))):
        fill[fi](); fi += 1
    for k, m in enumerate(mf):
        m()
        n = per_gap[k] if isinstance(per_gap, (list, tuple)) else per_gap
        for _ in range(n):
            if fi < len(fill):
                fill[fi](); fi += 1
    while fi < len(fill):
        fill[fi](); fi += 1

STAMP_BASE = 80
class Stamper:
    def __init__(self, S, on, vreg=None):
        self.S = S; self.on = on; self.n = 1; self.vreg = vreg
        if on:
            S.wait(lgkm=0)
            S.add(Inst(f"v_writelane_b32 v{vreg}, s98, 0", "valu", ["s98"], [f"v{vreg}"]))
    def stamp(self, real=False):
        if not self.on: return
        S = self.S
        op = "s_memrealtime" if real else "s_memtime"
        S.add(Inst(f"{op} s[100:101]", "smem", [], ["s100", "s101"]))
        S.wait(lgkm=0)
        S.add(Inst(f"v_writelane_b32 v{self.vreg}, s100, {self.n}", "valu", ["s100"], [f"v{self.vreg}"]))
        self.n += 1
    def flush(self, region, vtmp=250):
        if not self.on: return
        S = self.S
        S.wait(vm=0, lgkm=0)
        S.smem("s[78:79]", "s[0:1]", 96)
        S.wait(lgkm=0)
        S.salu("s_add_u32", "s76", "s78", (64 << 20) + region * (1 << 20))
        S.salu("s_addc_u32", "s77", "s79", 0)
        S.salu("s_mov_b32", "s78", 1 << 20)
        S.salu("s_mov_b32", "s79", "0x20000")
        S.salu("s_lshl_b32", "s74", "s2", 11)
        S.salu("s_lshl_b32", "s75", "s43", 8)
        S.salu("s_add_u32", "s74", "s74", "s75")
        a = f"v{vtmp}"
        S.valu("v_mbcnt_lo_u32_b32", a, -1, 0)
        S.valu("v_mbcnt_hi_u32_b32", a, -1, a)
        S.valu("v_lshlrev_b32", a, 2, a)
        S.buf_store("buffer_store_dword", f"v{self.vreg}", a, "s[76:79]", "s74")
        S.wait(vm=0)

def load_ptrs(S, sel_sgpr_p):
    S.smem("s[16:31]", "s[0:1]", 0)
    S.smem("s[32:35]", "s[0:1]", 64)
    S.smem("s[36:37]", "s[0:1]", 80)
    S.smem("s[38:39]", "s[0:1]", 96)

def make_srd(S, srd, ptr_lo, ptr_hi, off_sgpr, total, off_hi=None):
    if isinstance(off_sgpr, int):
        S.salu("s_add_u32", s(srd), s(ptr_lo), off_sgpr)
        S.salu("s_addc_u32", s(srd + 1), s(ptr_hi), 0)
        S.salu("s_mov_b32", s(srd + 2), total - off_sgpr)
    else:
        S.salu("s_add_u32", s(srd), s(ptr_lo), off_sgpr)
        S.salu("s_addc_u32", s(srd + 1), s(ptr_hi), 0)
        S.salu("s_sub_u32", s(srd + 2), total, off_sgpr)
    S.salu("s_mov_b32", s(srd + 3), "0x20000")

NW = 4
NX = 2
WBASE = 65536
XBASE = WBASE + NW * 16384
KSLOT = [0, 16384, 32768, 49152]
VSLOT = [WBASE + 0 * 16384, WBASE + 1 * 16384, XBASE + 0 * 16384, WBASE + 2 * 16384]

def k1_prologue(S, cfg):
    S.salu("s_cmp_ge_u32", "s2", 256)
    S.branch("s_cbranch_scc1", "K1_DONE")
    if cfg.get("stamps", False):
        S.add(Inst("s_memtime s[98:99]", "smem", [], ["s98", "s99"]))
    load_ptrs(S, None)
    S.salu("s_and_b32", "s44", "s2", 7)
    S.salu("s_lshr_b32", "s45", "s2", 3)
    S.salu("s_lshr_b32", "s40", "s44", 2)
    S.salu("s_and_b32", "s44", "s44", 3)
    S.salu("s_lshl_b32", "s44", "s44", 2)
    S.salu("s_and_b32", "s41", "s45", 3)
    S.salu("s_add_u32", "s41", "s41", "s44")
    S.salu("s_lshr_b32", "s42", "s45", 2)
    S.valu("v_lshrrev_b32", "v1", 6, "v0")
    S.valu("v_readfirstlane_b32", "s43", "v1")
    S.valu("v_and_b32", "v1", 63, "v0")
    S.salu("s_cmp_eq_u32", "s40", 0)
    S.salu("s_cselect_b64", "s[16:17]", "s[16:17]", "s[26:27]")
    S.salu("s_cselect_b64", "s[18:19]", "s[18:19]", "s[28:29]")
    S.salu("s_cselect_b64", "s[20:21]", "s[20:21]", "s[30:31]")
    S.salu("s_cselect_b64", "s[22:23]", "s[22:23]", "s[32:33]")
    if cfg.get("fused", False):
        S.salu("s_cselect_b64", "s[24:25]", "s[24:25]", "s[34:35]")
        S.smem("s[4:5]", "s[0:1]", 88)
        S.salu("s_mov_b32", "s6", 256)
        S.salu("s_mov_b32", "s7", "0x20000")
        S.salu("s_or_b32", "s44", "s2", "s43")
        S.salu("s_cmp_lg_u32", "s44", 0)
        S.branch("s_cbranch_scc1", "F_NONONCE")
        S.add(Inst("s_memrealtime s[44:45]", "smem", [], ["s44", "s45"]))
        S.wait(lgkm=0)
        S.salu("s_or_b32", "s44", "s44", 1)
        S.valu("v_mov_b32", "v2", "s44")
        S.valu("v_mov_b32", "v3", "s45")
        S.valu("v_mov_b32", "v4", 0)
        S.buf_store("buffer_store_dwordx2", "v[2:3]", "v4", "s[4:7]", flags=" sc1")
        S.label("F_NONONCE")
        S.wait(lgkm=0)
    S.salu("s_lshl_b32", "s44", "s41", 9)
    make_srd(S, 48, 22, 23, "s44", 512 * 8192)
    S.salu("s_lshr_b32", "s44", "s41", 2)
    S.salu("s_lshl_b32", "s44", "s44", 11)
    make_srd(S, 8, 22, 23, "s44", 512 * 8192)
    S.salu("s_lshr_b32", "s12", "s2", 3)
    S.salu("s_lshl_b32", "s44", "s42", 17)
    make_srd(S, 52, 16, 17, "s44", 1024 * 1024)
    S.salu("s_lshl_b32", "s44", "s42", 20)
    S.salu("s_lshl_b32", "s45", "s41", 14)
    S.salu("s_add_u32", "s44", "s44", "s45")
    make_srd(S, 56, 18, 19, "s44", 32 * 262144)
    make_srd(S, 60, 20, 21, "s44", 32 * 262144)
    S.salu("s_lshl_b32", "s45", "s40", 23)
    S.salu("s_add_u32", "s44", "s44", "s45")
    make_srd(S, 64, 38, 39, "s44", 2 * 32 * 262144)

def k1_fast(S, cfg):
    S.salu("s_sub_u32", "s44", "s43", 4)
    L = "v1"
    t0, t1, t2 = "v2", "v3", "v4"
    S.valu("v_lshrrev_b32", t0, 5, L)
    S.valu("v_and_b32", t1, 31, L)
    S.valu("v_lshlrev_b32", t2, 2, t0)
    S.valu("v_xor_b32", "v10", t1, t2)
    S.valu("v_lshlrev_b32", "v10", 4, "v10")
    S.valu("v_xor_b32", "v11", 128, "v10")
    S.valu("v_lshlrev_b32", t2, 13, t0)
    S.salu("s_lshl_b32", "s45", "s44", 16)
    S.valu("v_add_u32", t2, "s45", t2)
    S.valu("v_add_u32", "v10", "v10", t2)
    S.valu("v_add_u32", "v11", "v11", t2)
    S.valu("v_lshrrev_b32", t0, 3, L)
    S.valu("v_and_b32", t1, 7, L)
    S.valu("v_lshrrev_b32", t2, 4, L)
    S.valu("v_xor_b32", "v12", t1, t2)
    S.valu("v_lshlrev_b32", "v12", 4, "v12")
    S.valu("v_xor_b32", "v13", 64, "v12")
    S.valu("v_lshlrev_b32", t0, 10, t0)
    S.salu("s_lshl_b32", "s45", "s44", 15)
    S.valu("v_add_u32", t0, "s45", t0)
    S.valu("v_add_u32", "v12", "v12", t0)
    S.valu("v_add_u32", "v13", "v13", t0)
    S.salu("s_lshl_b32", "s47", "s44", 12)
    if cfg.get("rot", True):
        S.salu("s_and_b32", "s79", "s41", 3)
        S.salu("s_lshl_b32", "s79", "s79", 1)
        S.salu("s_add_u32", "s79", "s79", "s42")
        S.salu("s_and_b32", "s79", "s79", 7)
    else:
        S.salu("s_mov_b32", "s79", 0)
    ldflags = cfg.get("ldflags", " nt")
    kvflags = cfg.get("kvflags", " nt")
    skip = cfg.get("skip", "")
    def dma(voff, srd, base, off, ldsbase, tok, flags):
        S.salu("s_add_u32", "m0", "s47", ldsbase)
        S.salu("s_add_u32", "s46", base, off)
        S.buf_dma(voff, srd, "s46", tok=tok, flags=flags)
    def issue_w(st):
        S.salu("s_add_u32", "s13", "s79", st // 2)
        S.salu("s_and_b32", "s13", "s13", 7)
        S.salu("s_lshl_b32", "s13", "s13", 19)
        for ii in range(4):
            dma("v10" if ii % 2 == 0 else "v11", "s[48:51]", "s13", (st % 2) * 262144 + ii * 16384,
                WBASE + (st % NW) * 16384 + ii * 1024, f"w{st}", cfg.get("ldflags0", ldflags) if st < 2 else ldflags)
    def issue_x(j):
        S.salu("s_add_u32", "s13", "s79", j)
        S.salu("s_and_b32", "s13", "s13", 7)
        S.salu("s_lshl_b32", "s13", "s13", 7)
        for ii in range(4):
            dma("v12" if ii % 2 == 0 else "v13", "s[52:55]", "s13", ii * 8192,
                XBASE + (j % NX) * 16384 + ii * 1024, f"x{j}", cfg.get("ldflags0", ldflags) if j < 2 else ldflags)
    S.valu("v_lshrrev_b32", t2, 4, L)
    S.valu("v_and_b32", t1, 15, L)
    S.valu("v_lshlrev_b32", t0, 8, t2)
    S.salu("s_and_b32", "s45", "s44", 1)
    S.salu("s_lshl_b32", "s45", "s45", 12)
    S.salu("s_lshr_b32", "s46", "s44", 1)
    S.salu("s_lshl_b32", "s46", "s46", 18)
    S.salu("s_add_u32", "s45", "s45", "s46")
    S.valu("v_add_u32", t0, "s45", t0)
    S.valu("v_xor_b32", "v5", t1, t2)
    for ii in range(4):
        S.valu("v_xor_b32", v(14 + ii), 4 * ii, "v5")
        S.valu("v_lshlrev_b32", v(14 + ii), 4, v(14 + ii))
        S.valu("v_add_u32", v(14 + ii), v(14 + ii), t0)
        if ii: S.valu("v_add_u32", v(14 + ii), ii * 1024, v(14 + ii))
    S.valu("v_lshlrev_b32", "v5", 2, t2)
    S.valu("v_xor_b32", "v18", t1, "v5")
    S.valu("v_lshlrev_b32", "v18", 4, "v18")
    S.valu("v_add_u32", "v18", "v18", t0)
    S.salu("s_mov_b32", "s14", 0)
    def issue_k(cw):
        for ii in range(4):
            dma(v(14 + ii), "s[56:59]", "s14", 2 * (cw % 2) * 262144 + (cw // 2) * 8192, KSLOT[cw] + ii * 1024, "k", kvflags)
    VR = 32
    def issue_v(cw):
        for ii in range(4):
            S.salu("s_mov_b32", "s46", 2 * (cw % 2) * 262144 + (cw // 2) * 8192 + ii * 1024)
            S.buf_load("buffer_load_dwordx4", v(VR + 16 * cw + 4 * ii, 4), "v18", "s[60:63]", "s46", tok="v", flags=kvflags)
    S.valu("v_lshlrev_b32", "v19", 4, L)
    S.valu("v_add_u32", "v19", "s47", "v19")
    S.valu("v_add_u32", "v20", 65536, "v19")
    S.valu("v_add_u32", "v21", 131072, "v19")
    def write_v(cw):
        sb = VSLOT[cw]; areg = 19 + sb // 65536
        for ii in range(4):
            S.ds_write("ds_write_b128", v(areg), v(VR + 16 * cw + 4 * ii, 4), sb % 65536 + ii * 1024)

    def body(S, phase, ST):
        def issue(items):
            for it in items:
                if it[0] in skip: continue
                {"w": issue_w, "x": issue_x, "k": issue_k, "v": issue_v}[it[0]](it[1])
        sched = {b: [] for b in range(-2, 17)}
        sched[-2] = [("w", 0), ("x", 0), ("w", 1)]
        sched[-1] = [("w", 2), ("x", 1), ("w", 3)]
        for st in range(0, 16):
            if st + NW < 16: sched[st].append(("w", st + NW))
            if st % 2 == 1 and (st - 1) // 2 + NX < 8: sched[st].append(("x", (st - 1) // 2 + NX))
        items = [[("k", 0), ("k", 1)], [("k", 2), ("k", 3)], [("v", 0), ("v", 1)], [("v", 2), ("v", 3)]]
        if "btab" in cfg:
            bursts = cfg["btab"][phase]
            for bt, its in zip(bursts, items):
                sched[bt] += its
        else:
            bursts = cfg.get("bursts", [0, 3, 6, 9])
            for bt, its in zip(bursts, items):
                sched[min(bt + phase, 11)] += its
        wr = {12: [0], 13: [1, 2], 14: [3]}
        lastv = max(bursts[2:]) if "btab" in cfg else 0
        if lastv >= 11:
            wr = {15: [0, 1, 2, 3]}
        issue(sched[-2])
        ST.stamp()
        S.wait_vm_tok("w0"); S.wait_vm_tok("x0")
        ST.stamp()
        S.barrier()
        issue(sched[-1])
        for st in range(16):
            if st + 1 < 16:
                S.wait_vm_tok(f"w{st+1}")
                S.wait_vm_tok(f"x{(st+1)//2}")
            else:
                S.wait_vm_tok("k")
            if st >= 13: S.wait(lgkm=0)
            ST.stamp()
            S.barrier()
            ST.stamp()
            issue(sched[st])
            for cw in wr.get(st, []):
                if "v" not in skip: write_v(cw)
            if cfg.get("fused", False) and st == cfg.get("wopf_at", 12):
                import k2b
                k2b.p2_srds(S)
                if cfg.get("wopf", True):
                    S.valu("v_lshrrev_b32", "v2", 1, L)
                    S.valu("v_lshlrev_b32", "v2", 10, "v2")
                    S.valu("v_and_b32", "v3", 1, L)
                    S.valu("v_lshlrev_b32", "v3", 7, "v3")
                    S.valu("v_add_u32", "v2", "v2", "v3")
                    S.salu("s_sub_u32", "s44", "s43", 4)
                    S.salu("s_lshl_b32", "s44", "s44", 15)
                    S.salu("s_lshl_b32", "s45", "s42", 17)
                    S.salu("s_add_u32", "s44", "s44", "s45")
                    S.buf_load("buffer_load_dword", "v24", "v2", "s[48:51]", "s44", flags=cfg.get("wopf_fl", ""))
        if cfg.get("b16", False):
            S.wait(lgkm=0)
            S.barrier()
        if cfg.get("fused", False):
            import k2b
            k2b.p2_loader_fused(S, cfg, ST)
        ST.stamp(real=True)
        ST.flush(0, 31)
        S.endpgm()
    return body

def k1_consumer(S, cfg):
    cw = "s43"
    l = "v1"
    T = [f"v{n}" for n in range(16, 32)]
    i_, hh, gb, kx, c4, t0, t1, t2 = T[:8]
    S.valu("v_and_b32", i_, 15, l)
    S.valu("v_lshrrev_b32", hh, 5, l)
    S.valu("v_bfe_u32", gb, l, 4, 1)
    S.valu("v_lshrrev_b32", kx, 2, i_)
    S.valu("v_and_b32", c4, 3, l)
    S.valu("v_and_b32", t0, 1, c4)
    S.valu("v_lshlrev_b32", t0, 4, t0)
    S.valu("v_lshrrev_b32", t1, 1, c4)
    S.valu("v_lshlrev_b32", t1, 3, t1)
    S.valu("v_or_b32", t0, t0, t1)
    S.valu("v_lshlrev_b32", t1, 5, gb)
    S.valu("v_or_b32", t0, t0, t1)
    S.valu("v_lshlrev_b32", t1, 3, hh)
    S.valu("v_add_u32", t1, t1, kx)
    S.valu("v_lshlrev_b32", t1, 9, t1)
    S.valu("v_add_u32", t0, t0, t1)
    S.salu("s_lshr_b32", "s44", cw, 1)
    S.salu("s_lshl_b32", "s44", "s44", 8)
    S.valu("v_add_u32", t0, "s44", t0)
    for t in range(4):
        S.valu("v_xor_b32", t1, t, kx)
        S.valu("v_lshlrev_b32", t1, 6, t1)
        S.valu("v_add_u32", v(2 + t), t0, t1)
        S.valu("v_add_u32", v(2 + t), WBASE, v(2 + t))
    S.valu("v_and_b32", t0, 31, l)
    S.valu("v_bfe_u32", t1, l, 1, 3)
    S.valu("v_xor_b32", t1, t1, hh)
    S.valu("v_lshlrev_b32", t0, 7, t0)
    S.salu("s_and_b32", "s44", cw, 1)
    S.salu("s_lshl_b32", "s44", "s44", 13)
    S.salu("s_add_u32", "s44", "s44", XBASE)
    S.valu("v_add_u32", t0, "s44", t0)
    for s4 in range(4):
        S.valu("v_xor_b32", t2, 2 * s4, t1)
        S.valu("v_lshlrev_b32", t2, 4, t2)
        S.valu("v_add_u32", v(10 + s4), t0, t2)
    S.salu("s_and_b32", "s44", cw, 1)
    S.salu("s_lshl_b32", "s44", "s44", 19)
    S.salu("s_lshr_b32", "s45", cw, 1)
    S.salu("s_lshl_b32", "s45", "s45", 13)
    S.salu("s_add_u32", "s70", "s44", "s45")
    S.salu("s_add_u32", "s71", "s70", 262144)
    S.salu("s_add_u32", "s72", "s70", 4096)
    S.salu("s_add_u32", "s73", "s71", 4096)
    def sel4(dst, vals):
        S.salu("s_mov_b32", dst, vals[0])
        for c in range(1, 4):
            S.salu("s_cmp_eq_u32", cw, c)
            S.salu("s_cselect_b32", dst, vals[c], dst)
    sel4("s74", KSLOT); sel4("s75", VSLOT)
    import math, struct
    c = (128 ** -0.5) * math.log2(math.e)
    S.salu("s_mov_b32", "s76", hex(struct.unpack("<I", struct.pack("<f", c))[0]))

    ABUF = [16, 32]; BBUF = [48, 56]
    ACC = lambda ib, t: 128 + 64 * ib + 16 * t
    def reads(ks):
        st, sub = ks // 2, ks % 2
        j, s4 = ks // 4, ks % 4
        slot = st % NW
        buf = ks % 2
        r = []
        def rb(ib):
            return lambda: S.ds_read("ds_read_b128", v(BBUF[buf] + 4 * ib, 4), v(10 + s4), (j % NX) * 16384 + ib * 4096)
        def ra(t, jj):
            base = 2 + t
            return lambda: S.ds_read("ds_read_b64_tr_b16", v(ABUF[buf] + 4 * t + 2 * jj, 2), v(base),
                                     (slot % 4) * 16384 + sub * 8192 + jj * 2048)
        r += [rb(0), ra(0, 0), ra(0, 1), rb(1), ra(1, 0), ra(1, 1), ra(2, 0), ra(2, 1), ra(3, 0), ra(3, 1)]
        return r
    def mfmas(ks, order):
        buf = ks % 2
        m = []
        for (t, ib) in order:
            first = (ks == 0)
            def f(t=t, ib=ib, first=first):
                S.mfma(v(ACC(ib, t), 16), v(ABUF[buf] + 4 * t, 4), v(BBUF[buf] + 4 * ib, 4), 0 if first else v(ACC(ib, t), 16))
            m.append(f)
        return m
    ST = Stamper(S, cfg.get("stamps", False), 15)
    ST.stamp()
    S.barrier()
    ST.stamp()
    for f in reads(0): f()
    std = [(0, 0), (0, 1), (1, 0), (1, 1), (2, 0), (2, 1), (3, 0), (3, 1)]
    last = [(0, 0), (1, 0), (2, 0), (3, 0), (0, 1), (1, 1), (2, 1), (3, 1)]
    def kv_addr_code():
        c = []
        a = lambda *x, **k: c.append(lambda: S.valu(*x, **k))
        a("v_and_b32", "v0", 15, l)
        a("v_lshrrev_b32", "v14", 5, l)
        a("v_xor_b32", "v0", "v0", "v14")
        a("v_lshlrev_b32", "v0", 4, "v0")
        a("v_and_b32", "v2", 31, l)
        a("v_lshlrev_b32", "v2", 8, "v2")
        a("v_add_u32", "v2", "s74", "v2")
        a("v_or_b32", "v2", "v2", "v0")
        for cidx in range(1, 8):
            a("v_xor_b32", v(2 + cidx), (2 * cidx) << 4, "v2")
        return c
    def v_addr_code():
        c = []
        a = lambda *x, **k: c.append(lambda: S.valu(*x, **k))
        a("v_bfe_u32", "v0", l, 2, 2)
        a("v_lshrrev_b32", "v14", 5, l)
        a("v_lshlrev_b32", "v14", 2, "v14")
        a("v_add_u32", "v14", "v14", "v0")
        a("v_lshlrev_b32", "v14", 8, "v14")
        a("v_add_u32", "v14", "s75", "v14")
        a("v_bfe_u32", "v10", l, 4, 1)
        a("v_lshlrev_b32", "v10", 5, "v10")
        a("v_add_u32", "v14", "v14", "v10")
        a("v_and_b32", "v10", 3, l)
        a("v_lshlrev_b32", "v10", 3, "v10")
        a("v_add_u32", "v14", "v14", "v10")
        a("v_lshlrev_b32", "v0", 6, "v0")
        for tp in range(4):
            a("v_xor_b32", v(10 + tp), tp << 6, "v0")
            a("v_add_u32", v(10 + tp), v(10 + tp), "v14")
        return c

    K0, QB0, QB1, K1 = 96, 64, 16, 144
    S0, S1 = 128, 176
    P0, P1 = 48, 56
    V0, V1 = 96, 144
    def kreads(ib, base):
        r = []
        for t in range(4):
            for u in range(2):
                cidx = 2 * t + u
                r.append(lambda cidx=cidx: S.ds_read("ds_read_b128", v(base + 4 * cidx, 4), v(2 + cidx), ib * 8192))
        return r
    def vreads(ib, base):
        r = []
        for u in range(2):
            for tp in range(4):
                for jj in range(2):
                    r.append(lambda tp=tp, u=u, jj=jj: S.ds_read("ds_read_b64_tr_b16", v(base + 4 * (2 * tp + u) + 2 * jj, 2),
                                                                v(10 + tp), ib * 8192 + u * 4096 + jj * 2048))
        return r

    for ks in range(32):
        sub = ks % 2
        if ks % 2 == 0: ST.stamp()
        if sub == 1:
            S.wait(lgkm=0)
            S.barrier()
        fill = []
        if cfg.get("nocompute", False) and ks + 1 < 32:
            continue
        if ks + 1 < 32:
            fill += reads(ks + 1)
            interleave(S, mfmas(ks, std), fill, 2)
        else:
            fill += kv_addr_code() + kreads(0, K0) + v_addr_code()
            interleave(S, mfmas(ks, last), fill, [8, 8, 4, 4, 6, 6, 6, 6])

    def cvt(dst, src, n):
        return [lambda i=i: S.valu("v_cvt_pk_bf16_f32", v(dst + i), v(src + 2 * i), v(src + 2 * i + 1)) for i in range(n)]
    def smf(acc, kb, qb):
        m = []
        for cidx in range(8):
            m.append(lambda cidx=cidx: S.mfma(v(acc, 16), v(kb + 4 * cidx, 4), v(qb + 4 * cidx, 4), 0 if cidx == 0 else v(acc, 16)))
        return m
    def softmax(acc, pdst, tm):
        c = []
        a = lambda *x, **k: c.append(lambda: S.valu(*x, **k))
        m, m2, t, t2 = [v(tm + i) for i in range(4)]
        a("v_max3_f32", m, v(acc), v(acc + 1), v(acc + 2))
        a("v_max3_f32", m2, v(acc + 3), v(acc + 4), v(acc + 5))
        a("v_max3_f32", m, m, v(acc + 6), v(acc + 7))
        a("v_max3_f32", m2, m2, v(acc + 8), v(acc + 9))
        a("v_max3_f32", m, m, v(acc + 10), v(acc + 11))
        a("v_max3_f32", m2, m2, v(acc + 12), v(acc + 13))
        a("v_max3_f32", m, m, v(acc + 14), v(acc + 15))
        a("v_max_f32", m, m, m2)
        a("v_mov_b32", m2, m)
        a("v_permlane32_swap_b32", m2, m)
        a("v_max_f32", m, m, m2)
        a("v_mul_f32", m, "s76", m)
        for r in range(16):
            a("v_fma_f32", v(acc + r), v(acc + r), "s76", "-" + m)
        for r in range(16):
            a("v_exp_f32", v(acc + r), v(acc + r))
        a("v_add_f32", t, v(acc), v(acc + 1))
        a("v_add_f32", t2, v(acc + 2), v(acc + 3))
        for r in range(4, 16, 2):
            a("v_add_f32", t, t, v(acc + r))
            a("v_add_f32", t2, t2, v(acc + r + 1))
        a("v_add_f32", t, t, t2)
        a("v_mov_b32", t2, t)
        a("v_permlane32_swap_b32", t2, t)
        a("v_add_f32", t, t, t2)
        a("v_rcp_f32", t, t)
        for r in range(16):
            a("v_mul_f32", v(acc + r), v(acc + r), t)
        for r in range(8):
            a("v_cvt_pk_bf16_f32", v(pdst + r), v(acc + 2 * r), v(acc + 2 * r + 1))
        return c
    def pvmf(otiles, vb, pb):
        m = []
        for u in range(2):
            for tp in range(4):
                m.append(lambda tp=tp, u=u: S.mfma(v(otiles[tp], 16), v(vb + 4 * (2 * tp + u), 4), v(pb + 4 * u, 4),
                                                   0 if u == 0 else v(otiles[tp], 16)))
        return m
    stflags = cfg.get("stflags", "")
    def ostore(otiles, tmp, so_lo, so_hi):
        c = []
        for tp in range(4):
            for r2 in range(2):
                f = 2 * tp + r2
                d = tmp + 4 * f
                for i in range(4):
                    c.append(lambda d=d, i=i, tp=tp, r2=r2: S.valu("v_cvt_pk_bf16_f32", v(d + i), v(otiles[tp] + 8 * r2 + 2 * i),
                                                                 v(otiles[tp] + 8 * r2 + 2 * i + 1)))
                c.append(lambda d=d, f=f: S.buf_store("buffer_store_dwordx4", v(d, 4), "v0", "s[64:67]",
                                                      so_lo if f < 4 else so_hi, (f % 4) * 1024, flags=stflags))
        return c
    ST.stamp()
    O0 = [192, 208, 224, 240]
    O1 = [64, 80, 16, 32]
    if cfg.get("attn2", False):
        c0 = cvt(QB0, ACC(0, 0), 32); c1 = cvt(QB1, ACC(1, 0), 32)
        s0 = smf(S0, K0, QB0); s1 = smf(S1, K1, QB1)
        for f in c0[:8]: f()
        k1r = kreads(1, K1)
        fill = c0[8:] + k1r + c1
        interleave(S, s0, fill, [8, 1, 8, 1, 8, 6, 6, 6])
        if cfg.get("fused", False):
            S.wait(lgkm=0)
            S.barrier()
        ST.stamp()
        sm0 = softmax(S0, P0, 2); sm1 = softmax(S1, P1, 6)
        v0r = vreads(0, V0); v1r = vreads(1, V1)
        interleave(S, s1, v0r + sm0[:30], [4, 4, 4, 4, 6, 8, 8, 8])
        a_, b_ = sm0[30:], sm1
        for f in v1r[:0]: f()
        i = j = 0
        while i < len(a_) or j < len(b_):
            if i < len(a_): a_[i](); i += 1
            if j < len(b_) and (i >= 10 or i >= len(a_)): b_[j](); j += 1
            if i >= len(a_): break
        interleave(S, pvmf(O0, V0, P0), v1r + b_[j:], 8)
    else:
        for f in cvt(QB0, ACC(0, 0), 32): f()
        interleave(S, smf(S0, K0, QB0), kreads(1, K1) + cvt(QB1, ACC(1, 0), 32), 5)
        if cfg.get("b16", False): S.barrier()
        if cfg.get("fused", False):
            S.wait(lgkm=0)
            S.barrier()
        ST.stamp()
        sm0 = softmax(S0, P0, 2)
        interleave(S, smf(S1, K1, QB1), vreads(0, V0) + sm0[:40], [2, 2, 2, 2, 2, 2, 2, 2])
        for f in sm0[40:]: f()
        sm1 = softmax(S1, P1, 6)
        interleave(S, pvmf(O0, V0, P0), vreads(1, V1) + sm1, 8)
    S.valu("v_lshlrev_b32", "v0", 4, l)
    if cfg.get("fused", False):
        import k2b
        S.salu("s_lshr_b32", "s44", cw, 1)
        S.salu("s_lshl_b32", "s44", "s44", 15)
        S.salu("s_and_b32", "s45", cw, 1)
        S.salu("s_lshl_b32", "s45", "s45", 13)
        S.salu("s_add_u32", "s44", "s44", "s45")
        S.valu("v_add_u32", "v0", "s44", "v0")
        def owrite(otiles, tmp, ib):
            c = []
            for tp in range(4):
                for r2 in range(2):
                    f = 2 * tp + r2
                    d = tmp + 4 * f
                    for i in range(4):
                        c.append(lambda d=d, i=i, tp=tp, r2=r2: S.valu("v_cvt_pk_bf16_f32", v(d + i), v(otiles[tp] + 8 * r2 + 2 * i),
                                                                     v(otiles[tp] + 8 * r2 + 2 * i + 1)))
                    c.append(lambda d=d, f=f: S.ds_write("ds_write_b128", "v0", v(d, 4), (f // 4) * 16384 + ib * 4096 + (f % 4) * 1024))
            return c
        interleave(S, pvmf(O1, V1, P1), owrite(O0, 96, 0), 5)
        for f in owrite(O1, 128, 1): f()
        ST.stamp()
        k2b.p2_srds(S)
        k2b.p2_compute(S, cfg, ST, dbg="s[4:7]", fused=True)
        ST.flush(0, 14)
        S.endpgm()
        return
    interleave(S, pvmf(O1, V1, P1), ostore(O0, 96, "s70", "s72"), 5)
    for f in ostore(O1, 128, "s71", "s73"): f()
    ST.stamp()
    if cfg.get("stamps", False):
        S.wait(vm=0)
        ST.stamp()
    ST.flush(0, 14)
    S.endpgm()

def gen_k1(cfg):
    P = Stream("k1pro"); k1_prologue(P, cfg)
    P.salu("s_cmp_ge_u32", "s43", 4)
    P.branch("s_cbranch_scc1", "K1_FAST")
    parts = []
    X = Stream(); k1_consumer(X, cfg)
    A = Stream(); A.ins = list(P.ins) + X.ins
    parts.append(render(A.finalize()))
    nph = cfg.get("nphase", 1)
    Lc = Stream()
    body = k1_fast(Lc, cfg)
    setup = list(Lc.ins)
    if nph > 1:
        if cfg.get("phase_src", "idx") == "p":
            Lc.salu("s_mov_b32", "s15", "s40")
        elif cfg.get("phase_src") == "xcd":
            Lc.salu("s_and_b32", "s15", "s2", nph - 1)
        else:
            Lc.salu("s_lshr_b32", "s15", "s12", cfg.get("phase_shift", 0))
            Lc.salu("s_and_b32", "s15", "s15", nph - 1)
        for ph in range(1, nph):
            Lc.salu("s_cmp_eq_u32", "s15", ph)
            Lc.branch("s_cbranch_scc1", f"K1_PH{ph}")
    head = list(Lc.ins)
    for ph in range(nph):
        Lc.ins = []
        Stream.sfx = f"_p{ph}"
        ST = Stamper(Lc, cfg.get("stamps", False), 30)
        ST.stamp(); ST.stamp(real=True)
        body(Lc, ph, ST)
        lab = f"K1_PH{ph}"
        A = Stream(); A.ins = list(P.ins) + [Inst("K1_FAST:", "label")] + head + [Inst(lab + ":", "label")] + list(Lc.ins)
        f = A.finalize()
        key = "K1_FAST:" if ph == 0 else lab + ":"
        idx = [k for k, i in enumerate(f) if i.kind == "label" and i.text == key][0]
        parts.append(render(f[idx:]))
    return "\n".join(parts) + "\nK1_DONE:\n    s_endpgm\n"

def gen_k2(cfg):
    S = Stream("k2")
    D = cfg.get("k2_depth", 4)
    R = D + 1
    S.salu("s_cmp_ge_u32", "s2", 256)
    S.branch("s_cbranch_scc1", "K2_DONE")
    if cfg.get("stamps", False):
        S.add(Inst("s_memtime s[98:99]", "smem", [], ["s98", "s99"]))
    S.smem("s[16:17]", "s[0:1]", 32)
    S.smem("s[18:19]", "s[0:1]", 72)
    S.smem("s[36:37]", "s[0:1]", 80)
    S.smem("s[38:39]", "s[0:1]", 96)
    S.salu("s_and_b32", "s44", "s2", 7)
    S.salu("s_lshr_b32", "s45", "s2", 3)
    S.salu("s_lshr_b32", "s40", "s44", 2)
    S.salu("s_and_b32", "s44", "s44", 3)
    S.salu("s_lshl_b32", "s44", "s44", 2)
    S.salu("s_lshr_b32", "s41", "s45", 3)
    S.salu("s_add_u32", "s41", "s41", "s44")
    S.salu("s_and_b32", "s42", "s45", 7)
    S.valu("v_lshrrev_b32", "v1", 6, "v0")
    S.valu("v_readfirstlane_b32", "s43", "v1")
    S.valu("v_and_b32", "v1", 63, "v0")
    S.salu("s_cmp_eq_u32", "s40", 0)
    S.salu("s_cselect_b64", "s[16:17]", "s[16:17]", "s[18:19]")
    S.salu("s_lshl_b32", "s44", "s42", 7)
    S.salu("s_lshl_b32", "s45", "s43", 19)
    S.salu("s_add_u32", "s44", "s44", "s45")
    make_srd(S, 48, 16, 17, "s44", 4096 * 1024)
    S.salu("s_lshl_b32", "s44", "s40", 23)
    S.salu("s_lshl_b32", "s45", "s41", 19)
    S.salu("s_add_u32", "s44", "s44", "s45")
    S.salu("s_lshl_b32", "s45", "s43", 15)
    S.salu("s_add_u32", "s44", "s44", "s45")
    make_srd(S, 52, 38, 39, "s44", 2 * 32 * 262144)
    S.salu("s_lshl_b32", "s44", "s41", 17)
    S.salu("s_lshl_b32", "s45", "s40", 10)
    S.salu("s_add_u32", "s44", "s44", "s45")
    S.salu("s_lshl_b32", "s45", "s42", 7)
    S.salu("s_add_u32", "s44", "s44", "s45")
    make_srd(S, 56, 36, 37, "s44", 1024 * 2048)
    l = "v1"
    S.valu("v_lshrrev_b32", "v3", 3, l)
    S.valu("v_bfe_u32", "v4", l, 4, 1)
    S.valu("v_lshlrev_b32", "v4", 2, "v4")
    S.valu("v_and_b32", "v5", 7, l)
    S.valu("v_xor_b32", "v4", "v4", "v5")
    S.valu("v_lshlrev_b32", "v4", 4, "v4")
    S.valu("v_lshlrev_b32", "v3", 10, "v3")
    S.valu("v_add_u32", "v2", "v3", "v4")
    S.valu("v_lshlrev_b32", "v3", 4, l)
    S.salu("s_mul_i32", "s46", "s43", R * 2048)
    S.valu("v_bfe_u32", "v6", l, 2, 2)
    S.valu("v_lshrrev_b32", "v7", 5, l)
    S.valu("v_lshlrev_b32", "v7", 2, "v7")
    S.valu("v_add_u32", "v7", "v7", "v6")
    S.valu("v_lshlrev_b32", "v7", 7, "v7")
    S.valu("v_add_u32", "v7", "s46", "v7")
    S.valu("v_bfe_u32", "v8", l, 4, 1)
    S.valu("v_lshlrev_b32", "v8", 5, "v8")
    S.valu("v_add_u32", "v7", "v7", "v8")
    S.valu("v_and_b32", "v8", 3, l)
    S.valu("v_lshlrev_b32", "v8", 3, "v8")
    S.valu("v_add_u32", "v7", "v7", "v8")
    S.valu("v_bfe_u32", "v6", l, 3, 1)
    S.valu("v_lshlrev_b32", "v6", 6, "v6")
    S.valu("v_add_u32", "v4", "v7", "v6")
    S.valu("v_xor_b32", "v6", 64, "v6")
    S.valu("v_add_u32", "v5", "v7", "v6")
    if cfg.get("k2_rot", True):
        S.salu("s_lshl_b32", "s60", "s42", 2)
        S.salu("s_and_b32", "s61", "s41", 3)
        S.salu("s_lshl_b32", "s61", "s61", 3)
        S.salu("s_add_u32", "s60", "s60", "s61")
    else:
        S.salu("s_mov_b32", "s60", 0)
    OB = 16
    NOB = D + 1
    AB = OB + 8 * NOB
    ACC = 128
    assert AB + 16 <= ACC
    ldflags = cfg.get("k2_ldflags", "")
    def issue(n):
        slot = n % R
        fw = cfg.get("k2_wfl0", " nt") if n < 8 else ldflags
        fo = cfg.get("k2_ofl0", "") if n < 4 else ldflags
        S.salu("s_add_u32", "s62", "s60", n)
        S.salu("s_and_b32", "s62", "s62", 31)
        S.salu("s_lshl_b32", "s63", "s62", 14)
        for e in range(2):
            S.salu("s_add_u32", "m0", "s46", slot * 2048 + e * 1024)
            S.salu("s_add_u32", "s47", "s63", e * 8192)
            S.buf_dma("v2", "s[48:51]", "s47", tok=f"w{n}", flags=fw)
        ob = OB + 8 * (n % NOB)
        S.salu("s_lshl_b32", "s63", "s62", 10)
        for ib in range(2):
            S.salu("s_add_u32", "s47", "s63", ib * 262144)
            S.buf_load("buffer_load_dwordx4", v(ob + 4 * ib, 4), "v3", "s[52:55]", "s47", tok=f"o{n}", flags=fo)
    def areads(n):
        slot = n % R
        ab = AB + 8 * (n % 2)
        S.wait_vm_tok(f"w{n}")
        for nt2 in range(2):
            for jj in range(2):
                S.ds_read("ds_read_b64_tr_b16", v(ab + 4 * nt2 + 2 * jj, 2), v(4 + nt2), slot * 2048 + jj * 1024)
    NS = 32
    ST = Stamper(S, cfg.get("stamps", False), 10)
    ST.stamp(); ST.stamp(real=True)
    for n in range(D): issue(n)
    areads(0)
    ST.stamp()
    for n in range(NS):
        ab = AB + 8 * (n % 2); ob = OB + 8 * (n % NOB)
        def mf(nt2, ib):
            S.mfma(v(ACC + 32 * nt2 + 16 * ib, 16), v(ab + 4 * nt2, 4), v(ob + 4 * ib, 4),
                   0 if n == 0 else v(ACC + 32 * nt2 + 16 * ib, 16))
        if n % 4 == 0: ST.stamp()
        mf(0, 0)
        if n + D < NS: issue(n + D)
        mf(0, 1)
        if n + 1 < NS: areads(n + 1)
        mf(1, 0)
        mf(1, 1)
    ST.stamp()
    S.barrier()
    ST.stamp()
    S.salu("s_mul_i32", "s46", "s43", 17408)
    S.valu("v_and_b32", "v6", 31, l)
    S.valu("v_mul_u32_u24", "v6", 272, "v6")
    S.valu("v_lshrrev_b32", "v7", 5, l)
    S.valu("v_lshlrev_b32", "v7", 4, "v7")
    S.valu("v_add_u32", "v6", "v6", "v7")
    S.valu("v_add_u32", "v6", "s46", "v6")
    for nt2 in range(2):
        for ib in range(2):
            for q in range(4):
                S.ds_write("ds_write_b128", "v6", v(ACC + 32 * nt2 + 16 * ib + 4 * q, 4), ib * 32 * 272 + (32 * nt2 + 8 * q) * 4)
    S.wait(lgkm=0)
    S.barrier()
    S.valu("v_lshrrev_b32", "v6", 3, "v0")
    S.valu("v_and_b32", "v7", 7, "v0")
    S.valu("v_mul_u32_u24", "v8", 272, "v6")
    S.valu("v_lshlrev_b32", "v9", 5, "v7")
    S.valu("v_add_u32", "v8", "v8", "v9")
    S.valu("v_add_u32", "v9", 69632, "v8")
    for w in range(8):
        base = "v8" if w < 4 else "v9"
        S.ds_read("ds_read_b128", v(16 + 8 * w, 4), base, (w % 4) * 17408)
        S.ds_read("ds_read_b128", v(16 + 8 * w + 4, 4), base, (w % 4) * 17408 + 16)
    for w in range(1, 8):
        for i in range(8):
            S.valu("v_add_f32", v(16 + i), v(16 + i), v(16 + 8 * w + i))
    for i in range(4):
        S.valu("v_cvt_pk_bf16_f32", v(12 + i), v(16 + 2 * i), v(16 + 2 * i + 1))
    S.valu("v_lshlrev_b32", "v6", 11, "v6")
    S.valu("v_lshlrev_b32", "v7", 4, "v7")
    S.valu("v_add_u32", "v6", "v6", "v7")
    S.buf_store("buffer_store_dwordx4", "v[12:15]", "v6", "s[56:59]")
    if cfg.get("stamps", False):
        S.wait(vm=0)
        ST.stamp(); ST.stamp(real=True)
    ST.flush(1, 11)
    S.endpgm()
    txt = render(S.finalize()) + "\nK2_DONE:\n    s_endpgm\n"
    lds = max(8 * R * 2048, 8 * 17408)
    return txt, lds

def gen_k2b(cfg):
    import k2b
    P = Stream("k2bpro")
    P.salu("s_cmp_ge_u32", "s2", 256)
    P.branch("s_cbranch_scc1", "K2B_DONE")
    if cfg.get("stamps", False):
        P.add(Inst("s_memtime s[98:99]", "smem", [], ["s98", "s99"]))
    P.smem("s[24:25]", "s[0:1]", 32)
    P.smem("s[26:27]", "s[0:1]", 72)
    P.smem("s[36:37]", "s[0:1]", 80)
    P.smem("s[68:69]", "s[0:1]", 88)
    P.smem("s[38:39]", "s[0:1]", 96)
    P.salu("s_and_b32", "s44", "s2", 7)
    P.salu("s_lshr_b32", "s12", "s2", 3)
    P.salu("s_lshr_b32", "s40", "s44", 2)
    P.salu("s_and_b32", "s44", "s44", 3)
    P.salu("s_lshl_b32", "s44", "s44", 2)
    P.salu("s_and_b32", "s41", "s12", 3)
    P.salu("s_add_u32", "s41", "s41", "s44")
    P.salu("s_lshr_b32", "s42", "s12", 2)
    P.valu("v_lshrrev_b32", "v1", 6, "v0")
    P.valu("v_readfirstlane_b32", "s43", "v1")
    P.valu("v_and_b32", "v1", 63, "v0")
    P.salu("s_cmp_eq_u32", "s40", 0)
    P.salu("s_cselect_b64", "s[24:25]", "s[24:25]", "s[26:27]")
    P.salu("s_mov_b32", "s70", 256)
    P.salu("s_mov_b32", "s71", "0x20000")
    k2b.p2_srds(P)
    P.salu("s_and_b32", "s79", "s41", 3)
    P.salu("s_lshl_b32", "s79", "s79", 1)
    P.salu("s_add_u32", "s79", "s79", "s42")
    P.salu("s_and_b32", "s79", "s79", 7)
    if not cfg.get("p2_rot", True): P.salu("s_mov_b32", "s79", 0)
    P.salu("s_or_b32", "s44", "s2", "s43")
    P.salu("s_cmp_lg_u32", "s44", 0)
    P.branch("s_cbranch_scc1", "K2B_NONONCE")
    P.add(Inst("s_memrealtime s[44:45]", "smem", [], ["s44", "s45"]))
    P.wait(lgkm=0)
    P.salu("s_or_b32", "s44", "s44", 1)
    P.valu("v_mov_b32", "v2", "s44")
    P.valu("v_mov_b32", "v3", "s45")
    P.valu("v_mov_b32", "v4", 0)
    P.buf_store("buffer_store_dwordx2", "v[2:3]", "v4", "s[68:71]", flags=" sc1")
    P.label("K2B_NONONCE")
    if cfg.get("clkprobe", False):
        P.add(Inst("s_memtime s[90:91]", "smem", [], ["s90", "s91"]))
        P.add(Inst("s_memrealtime s[92:93]", "smem", [], ["s92", "s93"]))
        P.wait(lgkm=0)
    P.salu("s_cmp_ge_u32", "s43", 4)
    P.branch("s_cbranch_scc1", "K2B_LOAD")
    parts = []
    X = Stream(); ST = Stamper(X, cfg.get("stamps", False), 15)
    k2b.p2_compute(X, cfg, ST)
    if cfg.get("clkprobe", False):
        X.wait(vm=0)
        X.add(Inst("s_memtime s[94:95]", "smem", [], ["s94", "s95"]))
        X.add(Inst("s_memrealtime s[96:97]", "smem", [], ["s96", "s97"]))
        X.wait(lgkm=0)
        X.salu("s_sub_u32", "s94", "s94", "s90")
        X.salu("s_sub_u32", "s96", "s96", "s92")
        X.salu("s_or_b32", "s44", "s2", "s43")
        X.salu("s_cmp_lg_u32", "s44", 0)
        X.branch("s_cbranch_scc1", "K2B_NOPROBE")
        X.valu("v_mov_b32", "v2", "s94")
        X.valu("v_mov_b32", "v3", "s96")
        X.valu("v_mov_b32", "v4", 8)
        X.buf_store("buffer_store_dwordx2", "v[2:3]", "v4", "s[68:71]")
        X.label("K2B_NOPROBE")
    ST.flush(1, 14); X.endpgm()
    A = Stream(); A.ins = list(P.ins) + X.ins
    parts.append(render(A.finalize()))
    X = Stream(); ST = Stamper(X, cfg.get("stamps", False), 30)
    k2b.p2_loader(X, cfg, ST)
    ST.flush(1, 31); X.endpgm()
    A = Stream(); A.ins = list(P.ins) + [Inst("K2B_LOAD:", "label")] + X.ins
    f = A.finalize()
    idx = [k for k, i in enumerate(f) if i.kind == "label" and i.text == "K2B_LOAD:"][0]
    parts.append(render(f[idx:]))
    return "\n".join(parts) + "\nK2B_DONE:\n    s_endpgm\n"

def kernel_wrap(label, body):
    return f""".globl {label}
.p2align 8
.type {label},@function
{label}:
{body}
"""
def desc(label, vgpr, sgpr):
    return f""".p2align 6
.amdhsa_kernel {label}
  .amdhsa_next_free_vgpr {vgpr}
  .amdhsa_next_free_sgpr {sgpr}
  .amdhsa_accum_offset {vgpr}
  .amdhsa_group_segment_fixed_size 0
  .amdhsa_kernarg_size 104
  .amdhsa_user_sgpr_count 2
  .amdhsa_user_sgpr_kernarg_segment_ptr 1
  .amdhsa_system_sgpr_workgroup_id_x 1
.end_amdhsa_kernel
"""

def generate(cfg):
    if cfg.get("launches") == ["fused"]: cfg["fused"] = True
    k1 = gen_k1(cfg)
    k2, lds2 = gen_k2(cfg)
    hdr = []
    order = cfg.get("launches", ["k1", "k2b"])
    for k in order:
        if k == "k1": hdr.append(f"; @launch kernel=attn_k1_kernel grid=(256,1,1) block=(512,1,1) lds=163840")
        if k == "k2": hdr.append(f"; @launch kernel=attn_k2_kernel grid=(256,1,1) block=(512,1,1) lds={lds2}")
        if k == "fused": hdr.append(f"; @launch kernel=attn_k1_kernel grid=(256,1,1) block=(512,1,1) lds=163840")
        if k == "nop": hdr.append(f"; @launch kernel=attn_nop_kernel grid=(256,1,1) block=(64,1,1) lds=0")
        if k == "k2b": hdr.append(f"; @launch kernel=attn_k2b_kernel grid=(256,1,1) block=(512,1,1) lds=131072")
    txt = "\n".join(hdr) + "\n"
    txt += '.amdgcn_target "amdgcn-amd-amdhsa--gfx950"\n.text\n'
    ks = []
    if "k1" in order or "fused" in order: ks.append(("attn_k1_kernel", k1, 256))
    if "k2" in order: ks.append(("attn_k2_kernel", k2, 192))
    if "k2b" in order: ks.append(("attn_k2b_kernel", gen_k2b(cfg), 256))
    if "nop" in order: ks.append(("attn_nop_kernel", "    s_endpgm\n", 8))
    for (n, b, vg) in ks: txt += kernel_wrap(n, b)
    txt += '.section .rodata,"a"\n'
    for (n, b, vg) in ks: txt += desc(n, vg, 102)
    return txt

if __name__ == "__main__":
    import json
    cfg = {}
    out = f"cdna_kernels/{NAME}.s"
    for a in sys.argv[1:]:
        if a.startswith("-o"): out = a[2:]
        else:
            k, val = a.split("=", 1)
            try: val = json.loads(val)
            except Exception: pass
            cfg[k] = val
    open(out, "w").write(generate(cfg))
    print("wrote", out)
```

```python
from asmlib import *

NS2 = 4
O2 = [0, 16384, 32768, 49152]
W2 = [114688, 147456, 65536, 81920]
PB_OFF = 32 << 20
FL_OFF = 56 << 20

def interleave(S, mf, fill, per_gap, lead=0):
    fi = 0
    for _ in range(min(lead, len(fill))):
        fill[fi](); fi += 1
    for k, m in enumerate(mf):
        m()
        n = per_gap[k] if isinstance(per_gap, (list, tuple)) else per_gap
        for _ in range(n):
            if fi < len(fill):
                fill[fi](); fi += 1
    while fi < len(fill):
        fill[fi](); fi += 1

def add64(S, dlo, plo, phi, off):
    S.salu("s_add_u32", s(dlo), s(plo), off)
    S.salu("s_addc_u32", s(dlo + 1), s(phi), 0)

def srd(S, r, plo, phi, off, total):
    add64(S, r, plo, phi, off)
    if isinstance(off, int): S.salu("s_mov_b32", s(r + 2), total - off)
    else: S.salu("s_sub_u32", s(r + 2), total, off)
    S.salu("s_mov_b32", s(r + 3), "0x20000")

def p2_srds(S):
    S.salu("s_lshr_b32", "s80", "s41", 2)
    S.salu("s_and_b32", "s81", "s41", 3)
    S.salu("s_lshl_b32", "s44", "s80", 20)
    S.salu("s_lshl_b32", "s45", "s81", 8)
    S.salu("s_add_u32", "s44", "s44", "s45")
    srd(S, 48, 24, 25, "s44", 4096 * 1024)
    S.salu("s_lshl_b32", "s44", "s40", 23)
    S.salu("s_lshl_b32", "s45", "s42", 20)
    S.salu("s_add_u32", "s44", "s44", "s45")
    S.salu("s_lshl_b32", "s45", "s80", 16)
    S.salu("s_add_u32", "s44", "s44", "s45")
    srd(S, 52, 38, 39, "s44", 16 << 20)
    S.salu("s_lshl_b32", "s82", "s40", 3)
    S.salu("s_add_u32", "s82", "s82", "s42")
    S.salu("s_lshl_b32", "s82", "s82", 2)
    S.salu("s_add_u32", "s82", "s82", "s81")
    S.salu("s_lshl_b32", "s44", "s82", 18)
    S.salu("s_add_u32", "s44", "s44", PB_OFF)
    srd(S, 56, 38, 39, "s44", PB_OFF + (16 << 20))
    S.salu("s_lshl_b32", "s44", "s82", 7)
    S.salu("s_add_u32", "s44", "s44", FL_OFF)
    srd(S, 60, 38, 39, "s44", FL_OFF + (128 << 10))
    S.salu("s_lshl_b32", "s44", "s42", 18)
    S.salu("s_lshl_b32", "s45", "s40", 10)
    S.salu("s_add_u32", "s44", "s44", "s45")
    S.salu("s_lshl_b32", "s45", "s81", 8)
    S.salu("s_add_u32", "s44", "s44", "s45")
    srd(S, 64, 36, 37, "s44", 1024 * 2048)

def p2_loader_setup(S, cfg, rot_sgpr, fusedorder=False):
    L = "v1"; t0, t1, t2 = "v2", "v3", "v4"
    S.salu("s_sub_u32", "s44", "s43", 4)
    S.valu("v_lshrrev_b32", t2, 4, L)
    S.valu("v_and_b32", t1, 15, L)
    S.valu("v_lshlrev_b32", t0, 2, t2)
    S.valu("v_xor_b32", t1, t1, t0)
    S.valu("v_lshlrev_b32", t1, 4, t1)
    S.valu("v_lshlrev_b32", t0, 10, t2)
    S.valu("v_add_u32", "v10", t0, t1)
    S.salu("s_lshl_b32", "s45", "s44", 14)
    S.valu("v_add_u32", "v10", "s45", "v10")
    S.valu("v_lshlrev_b32", "v11", 4, L)
    S.salu("s_lshl_b32", "s45", "s44", 18)
    S.valu("v_add_u32", "v11", "s45", "v11")
    S.salu("s_lshl_b32", "s47", "s44", 12)
    fw0 = cfg.get("p2_wfl0", ""); fw = cfg.get("p2_wfl", "")
    fo0 = cfg.get("p2_ofl0", ""); fo = cfg.get("p2_ofl", "")
    def issue(st, part="wo"):
        j, half = st // 2, st % 2
        if fusedorder:
            add = [0, 1, 2, 4, 6, 3, 5, 7][j]
        else:
            add = j
        S.salu("s_add_u32", "s13", rot_sgpr, add)
        S.salu("s_and_b32", "s13", "s13", 7)
        slot = st % NS2
        if "w" in part:
            S.salu("s_lshl_b32", "s14", "s13", 17)
            for ii in range(4):
                S.salu("s_add_u32", "m0", "s47", W2[slot] + ii * 1024)
                S.salu("s_add_u32", "s46", "s14", half * 65536 + ii * 4096)
                S.buf_dma("v10", "s[48:51]", "s46", tok=f"s{st}", flags=fw0 if st < 2 else fw)
        if "o" in part:
            S.salu("s_lshl_b32", "s14", "s13", 13)
            for ii in range(4):
                S.salu("s_add_u32", "m0", "s47", O2[slot] + ii * 1024)
                S.salu("s_add_u32", "s46", "s14", half * 4096 + ii * 1024)
                S.buf_dma("v11", "s[52:55]", "s46", tok=f"s{st}", flags=fo0 if st < 4 else fo)
    return issue

def p2_loader(S, cfg, ST, rot_sgpr="s79"):
    issue = p2_loader_setup(S, cfg, rot_sgpr)
    issue(0); issue(1)
    S.wait_vm_tok("s0")
    ST.stamp()
    S.barrier()
    issue(2); issue(3)
    for st in range(16):
        if st + 1 < 16: S.wait_vm_tok(f"s{st+1}")
        ST.stamp()
        S.barrier()
        if st + NS2 < 16: issue(st + NS2)

FLO_OFF = FL_OFF + (1 << 20)

def spin_nonce(S, dbg, lab, vr=8, vz="v10"):
    S.salu("s_mov_b32", "s83", 0)
    S.label(lab)
    S.valu("v_readfirstlane_b32", "s84", v(vr))
    S.valu("v_readfirstlane_b32", "s85", v(vr + 1))
    S.nop(3)
    S.salu("s_or_b32", "s86", "s84", "s85")
    S.salu("s_cmp_lg_u32", "s86", 0)
    S.branch("s_cbranch_scc1", lab + "_OK")
    S.salu("s_add_u32", "s83", "s83", 1)
    S.salu("s_cmp_gt_u32", "s83", 200000)
    S.branch("s_cbranch_scc1", lab + "_OK")
    S.raw("s_sleep 4")
    S.buf_load("buffer_load_dwordx2", v(vr, 2), vz, dbg, flags=" sc1")
    S.wait(vm=0)
    S.branch("s_branch", lab)
    S.label(lab + "_OK")

def flag_store(S, srd_, off_sgpr, vz, vn, L="v1", fl=" sc1"):
    S.valu("v_cmp_eq_u32", "vcc", 0, L)
    S.salu("s_mov_b64", "s[86:87]", "exec")
    S.add(Inst("s_and_b64 exec, exec, vcc", "salu", ["vcc"], ["exec"]))
    S.buf_store("buffer_store_dwordx2", vn, vz, srd_, off_sgpr, flags=fl)
    S.add(Inst("s_mov_b64 exec, s[86:87]", "salu", [], ["exec"]))

def poll(S, lab, srd_, voff, soff, vtmp, vn, sleep=1, raw=False):
    S.salu("s_mov_b32", "s83", 0)
    S.label(lab)
    if raw:
        S.raw("s_nop 4")
        S.raw(f"buffer_load_dwordx2 {vtmp}, {voff}, {srd_}, {soff} offen sc1")
        S.raw("s_waitcnt vmcnt(0)")
    else:
        S.buf_load("buffer_load_dwordx2", vtmp, voff, srd_, soff, flags=" sc1")
        S.wait(vm=0)
    S.valu("v_cmp_eq_u64", "vcc", vtmp, vn)
    S.nop(4)
    S.add(Inst("s_cmp_eq_u64 vcc, exec", "salu", ["vcc"], ["scc"]))
    S.branch("s_cbranch_scc1", lab + "_OK")
    S.salu("s_add_u32", "s83", "s83", 1)
    S.salu("s_cmp_gt_u32", "s83", 200000)
    S.branch("s_cbranch_scc1", lab + "_OK")
    S.raw(f"s_sleep {sleep}")
    S.branch("s_branch", lab)
    S.label(lab + "_OK")

def raw_flag(S, off_sgpr):
    S.raw("v_cmp_eq_u32 vcc, 0, v1")
    S.raw("s_mov_b64 s[86:87], exec")
    S.raw("s_nop 3")
    S.raw("s_and_b64 exec, exec, vcc")
    S.raw(f"buffer_store_dwordx2 v[16:17], v12, s[8:11], {off_sgpr} offen sc1")
    S.raw("s_mov_b64 exec, s[86:87]")

def p2_loader_fused(S, cfg, ST):
    L = "v1"
    S.salu("s_lshl_b32", "s44", "s40", 2)
    S.salu("s_add_u32", "s44", "s44", "s80")
    S.salu("s_lshl_b32", "s44", "s44", 3)
    S.salu("s_add_u32", "s44", "s44", "s42")
    S.salu("s_lshl_b32", "s44", "s44", 8)
    S.salu("s_add_u32", "s44", "s44", FLO_OFF)
    srd(S, 8, 38, 39, "s44", FLO_OFF + (256 << 10))
    S.salu("s_lshl_b32", "s79", "s81", 1)
    issue = p2_loader_setup(S, cfg, "s79", True)
    issue(0, "w"); issue(1, "w")
    S.valu("v_mov_b32", "v12", 0)
    S.buf_load("buffer_load_dwordx2", "v[14:15]", "v12", "s[4:7]", flags=" sc1", tok="nonce")
    S.valu("v_and_b32", "v18", 15, L)
    S.valu("v_lshlrev_b32", "v18", 3, "v18")
    S.valu("v_lshlrev_b32", "v19", 4, L)
    S.salu("s_sub_u32", "s44", "s43", 4)
    S.salu("s_lshl_b32", "s45", "s44", 12)
    S.valu("v_add_u32", "v20", "s45", "v19")
    S.salu("s_lshl_b32", "s15", "s81", 14)
    S.salu("s_lshl_b32", "s45", "s44", 18)
    S.salu("s_add_u32", "s15", "s15", "s45")
    S.salu("s_lshl_b32", "s88", "s81", 2)
    S.salu("s_add_u32", "s88", "s88", "s44")
    S.salu("s_lshl_b32", "s88", "s88", 3)
    S.salu("s_add_u32", "s89", "s88", 128)
    S.salu("s_mov_b32", "s90", 128)
    S.valu("v_mov_b32", "v21", 131072)
    def wg_poll(lab, soff, val, backup=False, foff="s88", final=True):
        S.salu("s_cmp_lg_u32", "s43", 4)
        S.branch("s_cbranch_scc1", lab + "_W")
        S.salu("s_mov_b32", "s83", 0)
        S.label(lab)
        S.raw("s_nop 4")
        S.raw(f"buffer_load_dwordx2 v[14:15], v18, s[8:11], {soff} offen sc1")
        S.raw("s_waitcnt vmcnt(0)")
        S.valu("v_cmp_eq_u64", "vcc", "v[14:15]", "v[16:17]")
        S.nop(4)
        S.add(Inst("s_cmp_eq_u64 vcc, exec", "salu", ["vcc"], ["scc"]))
        S.branch("s_cbranch_scc1", lab + "_OK")
        S.salu("s_add_u32", "s83", "s83", 1)
        if backup:
            S.salu("s_cmp_lg_u32", "s83", cfg.get("backup_after", 8))
            S.branch("s_cbranch_scc1", lab + "_NB")
            raw_flag(S, foff)
            S.label(lab + "_NB")
        S.salu("s_cmp_gt_u32", "s83", 200000)
        S.branch("s_cbranch_scc1", lab + "_OK")
        S.raw(f"s_sleep {cfg.get('o_sleep', 4)}")
        S.branch("s_branch", lab)
        S.label(lab + "_OK")
        S.valu("v_mov_b32", "v22", val)
        S.ds_write("ds_write_b32", "v21", "v22")
        S.wait(lgkm=0)
        S.branch("s_branch", lab + "_D")
        S.label(lab + "_W")
        S.salu("s_mov_b32", "s83", 0)
        S.label(lab + "_L")
        S.ds_read("ds_read_b32", "v22", "v21")
        S.wait(lgkm=0)
        S.valu("v_readfirstlane_b32", "s86", "v22")
        S.nop(3)
        S.salu("s_cmp_ge_u32", "s86", val)
        S.branch("s_cbranch_scc1", lab + "_D")
        S.salu("s_add_u32", "s83", "s83", 1)
        if backup:
            S.salu("s_cmp_lg_u32", "s83", cfg.get("backup_after_l", 40))
            S.branch("s_cbranch_scc1", lab + "_NB2")
            raw_flag(S, foff)
            S.label(lab + "_NB2")
        S.salu("s_cmp_gt_u32", "s83", 4000000)
        S.branch("s_cbranch_scc1", lab + "_D")
        S.raw("s_sleep 1")
        S.branch("s_branch", lab + "_L")
        S.label(lab + "_D")
        if backup and final:
            raw_flag(S, foff)
    S.wait(lgkm=0)
    ST.stamp()
    S.barrier()
    S.wait(vm=0)
    spin_nonce(S, "s[4:7]", "FL_NONCE", 14, "v12")
    S.valu("v_mov_b32", "v16", "s84")
    S.valu("v_mov_b32", "v17", "s85")
    S.barrier()
    ST.stamp(real=cfg.get("realst", False))
    S.valu("v_mov_b32", "v22", 0)
    S.ds_write("ds_write_b32", "v21", "v22")
    S.ds_write("ds_write_b64", "v21", "v[16:17]", 8)
    if not (cfg.get("stfirst", False) or cfg.get("split2", False)):
        issue(2, "w"); issue(3, "w")
    stf = cfg.get("stflags", " sc1")
    for hh in range(2):
        for f in range(8):
            S.ds_read("ds_read_b128", v(32 + 32 * hh + 4 * f, 4), "v20", (2 * hh + f // 4) * 16384 + (f % 4) * 1024)
    def stores(hh, fs):
        for f in fs:
            S.salu("s_add_u32", "s46", "s15", hh * 8192 + (f // 4) * 4096)
            S.buf_store("buffer_store_dwordx4", v(32 + 32 * hh + 4 * f, 4), "v19", "s[52:55]", "s46", (f % 4) * 1024, flags=stf, tok=f"ost{hh}")
    if cfg.get("split2", False):
        fast = cfg.get("fastflag", False)
        stores(0, range(8))
        issue(2, "w"); issue(3, "w")
        for st in range(16):
            if st == 3:
                S.wait_vm_tok("ost0")
                ST.stamp(real=cfg.get("realst", False))
                flag_store(S, "s[8:11]", "s88", "v12", "v[16:17]", fl="" if fast else " sc1")
                stores(1, range(8))
                wg_poll("FL_POLL0", "0", 1, backup=fast, foff="s88", final=False)
                ST.stamp(real=cfg.get("realst", False))
                S.wait_vm_tok("ost1")
                flag_store(S, "s[8:11]", "s89", "v12", "v[16:17]", fl="" if fast else " sc1")
                issue(4); issue(5); issue(6)
                if fast:
                    raw_flag(S, "s88")
            if st + 1 < 16: S.wait_vm_tok(f"s{st+1}")
            if st == 0: S.wait(lgkm=0)
            ST.stamp()
            S.barrier()
            if st == 6:
                wg_poll("FL_POLL1", "s90", 2, backup=fast, foff="s89", final=False)
            if st >= 3 and st + NS2 < 16: issue(st + NS2)
            if st == 6 and fast: raw_flag(S, "s89")
        return
    if cfg.get("nosplit", False):
        pn = cfg.get("o_pacen", [6, 5, 5])
        allst = [(0, f) for f in range(8)] + [(1, f) for f in range(8)]
        c = 0
        for st in range(16):
            if st < 3:
                for (hh, f) in allst[c:c + pn[st]]: stores(hh, [f])
                c += pn[st]
            if st == 0 and cfg.get("stfirst", False):
                issue(2, "w"); issue(3, "w")
            if st == 3:
                S.wait_vm_tok("ost1")
                ST.stamp(real=cfg.get("realst", False))
                fast = cfg.get("fastflag", False)
                flag_store(S, "s[8:11]", "s88", "v12", "v[16:17]", fl="" if fast else " sc1")
                if fast == "late":
                    pass
                wg_poll("FL_POLL0", "0", 1, backup=fast, final=False)
                ST.stamp(real=cfg.get("realst", False))
                issue(4); issue(5); issue(6)
                if fast: raw_flag(S, "s88")
            if st + 1 < 16: S.wait_vm_tok(f"s{st+1}")
            if st == 0: S.wait(lgkm=0)
            ST.stamp()
            S.barrier()
            if st >= 3 and st + NS2 < 16: issue(st + NS2)
        return
    p0 = cfg.get("o_pace0", [3, 3, 2])
    p1 = cfg.get("o_pace1", [3, 3, 2])
    c0 = c1 = 0
    for st in range(16):
        if st < 3:
            stores(0, range(c0, c0 + p0[st])); c0 += p0[st]
        if st == 3:
            S.wait_vm_tok("ost0")
            ST.stamp()
            flag_store(S, "s[8:11]", "s88", "v12", "v[16:17]")
            wg_poll("FL_POLL0", "0", 1)
            ST.stamp()
            issue(4); issue(5); issue(6)
            stores(1, range(c1, c1 + p1[0])); c1 += p1[0]
        if st + 1 < 16: S.wait_vm_tok(f"s{st+1}")
        if st == 0: S.wait(lgkm=0)
        ST.stamp()
        S.barrier()
        if st == 5:
            S.wait_vm_tok("ost1")
            flag_store(S, "s[8:11]", "s89", "v12", "v[16:17]")
        if st == 6:
            wg_poll("FL_POLL1", "s90", 2)
            ST.stamp()
        if st >= 3 and st + NS2 < 16: issue(st + NS2)
        if st in (3, 4):
            stores(1, range(c1, c1 + p1[st - 2])); c1 += p1[st - 2]
    assert c0 == 8 and c1 == 8

def p2_compute(S, cfg, ST, dbg="s[68:71]", fused=False):
    cw = "s43"; l = "v1"
    T = [f"v{n}" for n in range(16, 24)]
    hh, gb, kx, c4, t0, t1, t2, t3 = T
    S.valu("v_lshrrev_b32", hh, 5, l)
    S.valu("v_bfe_u32", gb, l, 4, 1)
    S.valu("v_bfe_u32", kx, l, 2, 2)
    S.valu("v_and_b32", c4, 3, l)
    S.valu("v_and_b32", t0, 1, c4)
    S.valu("v_lshlrev_b32", t0, 4, t0)
    S.valu("v_lshrrev_b32", t1, 1, c4)
    S.valu("v_lshlrev_b32", t1, 3, t1)
    S.valu("v_or_b32", t0, t0, t1)
    S.valu("v_lshlrev_b32", t1, 5, gb)
    S.valu("v_or_b32", t0, t0, t1)
    S.valu("v_lshlrev_b32", t1, 2, hh)
    S.valu("v_add_u32", t1, t1, kx)
    S.valu("v_lshlrev_b32", t1, 8, t1)
    S.valu("v_add_u32", t0, t0, t1)
    S.salu("s_lshr_b32", "s44", cw, 1)
    S.salu("s_lshl_b32", "s44", "s44", 1)
    for a in range(2):
        S.valu("v_add_u32", t1, "s44", kx) if False else None
        S.salu("s_add_u32", "s45", "s44", a)
        S.valu("v_xor_b32", t1, "s45", kx)
        S.valu("v_lshlrev_b32", t1, 6, t1)
        S.valu("v_add_u32", v(2 + a), t0, t1)
        S.valu("v_add_u32", v(2 + a), 65536, v(2 + a))
        S.valu("v_add_u32", v(4 + a), 65536, v(2 + a))
    S.valu("v_lshlrev_b32", t0, 4, l)
    S.salu("s_and_b32", "s44", cw, 1)
    S.salu("s_lshl_b32", "s44", "s44", 13)
    S.valu("v_add_u32", "v6", "s44", t0)
    AB = [16, 24]; BB = [32, 40]; ACC = lambda a, b: 64 + 16 * (2 * a + b)
    def reads(ks):
        st, sk = ks // 4, ks % 4
        slot = st % NS2
        wrel = W2[slot] - 65536; hi = wrel // 65536; lo = wrel % 65536
        buf = ks % 2
        r = []
        def rb(b): return lambda: S.ds_read("ds_read_b128", v(BB[buf] + 4 * b, 4), "v6", O2[slot] + b * 4096 + sk * 1024)
        def ra(a, jj): return lambda: S.ds_read("ds_read_b64_tr_b16", v(AB[buf] + 4 * a + 2 * jj, 2), v(2 + a + 2 * hi), lo + sk * 4096 + jj * 2048)
        return [rb(0), ra(0, 0), ra(0, 1), rb(1), ra(1, 0), ra(1, 1)]
    def mf(ks):
        buf = ks % 2
        return [lambda a=a, b=b: S.mfma(v(ACC(a, b), 16), v(AB[buf] + 4 * a, 4), v(BB[buf] + 4 * b, 4), 0 if ks == 0 else v(ACC(a, b), 16))
                for (a, b) in ((0, 0), (0, 1), (1, 0), (1, 1))]
    ST.stamp()
    if fused: S.wait(lgkm=0)
    S.barrier()
    ST.stamp()
    PR = cfg.get("_probe")
    if PR: PR.mark()
    for f in reads(0): f()
    for ks in range(64):
        if ks % 4 == 3:
            S.wait(lgkm=0)
            S.barrier()
            ST.stamp()
            if PR and ks in (11, 15): PR.mark()
        fill = reads(ks + 1) if ks + 1 < 64 else []
        interleave(S, mf(ks), fill, 2)
    if PR: PR.mark()
    if cfg.get("xtag", False) and fused:
        ST.stamp()
        S.valu("v_mov_b32", "v10", 131072)
        S.ds_read("ds_read_b64", "v[8:9]", "v10", 8)
        S.valu("v_lshlrev_b32", "v11", 4, l)
        S.salu("s_lshl_b32", "s44", "s80", 2)
        S.salu("s_add_u32", "s44", "s44", cw)
        S.salu("s_lshl_b32", "s44", "s44", 12)
        for q in range(4):
            S.salu("s_cmp_eq_u32", "s80", q)
            S.branch("s_cbranch_scc1", f"P2_OWN{q}")
            S.salu("s_add_u32", "s45", "s44", q * 65536)
            S.nop(7)
            R = 128 + 12 * q
            pos = [0, 1, 2, 4, 5, 6, 8, 9]
            for i in range(8):
                S.valu("v_cvt_pk_bf16_f32", v(R + pos[i]), v(64 + 16 * q + 2 * i), v(64 + 16 * q + 2 * i + 1))
            for t in (3, 7, 10, 11):
                S.valu("v_mov_b32", v(R + t), "v8")
            for i in range(3):
                S.buf_store("buffer_store_dwordx4", v(R + 4 * i, 4), "v11", "s[56:59]", "s45", i * 1024, flags=" sc1")
            S.branch("s_branch", f"P2_N{q}")
            S.label(f"P2_OWN{q}")
            S.nop(15)
            for i in range(16):
                S.valu("v_mov_b32", v(48 + i), v(64 + 16 * q + i))
            S.label(f"P2_N{q}")
        ST.stamp()
        for i in range(3):
            S.salu("s_add_u32", "s45", "s80", i + 1)
            S.salu("s_and_b32", "s45", "s45", 3)
            S.salu("s_lshl_b32", "s46", "s80", 2)
            S.salu("s_add_u32", "s45", "s45", "s46")
            S.salu("s_lshl_b32", "s45", "s45", 2)
            S.salu("s_add_u32", "s45", "s45", cw)
            S.salu("s_lshl_b32", f"s{88 + i}", "s45", 12)
        D = 180
        if cfg.get("xpeer", False):
            S.salu("s_mov_b32", "s83", 0)
            S.salu("s_mov_b32", "s94", 0)
            S.label("P2_XP")
            S.raw("s_nop 4")
            for i in range(3):
                S.raw(f"s_bitcmp1_b32 s94, {i}")
                S.raw(f"s_cbranch_scc1 P2_XL{i}")
                for k_ in range(3):
                    S.raw(f"buffer_load_dwordx4 v[{D + 12 * i + 4 * k_}:{D + 12 * i + 4 * k_ + 3}], v11, s[56:59], s{88 + i} offen offset:{k_ * 1024} sc1")
                S.label(f"P2_XL{i}")
            S.raw("s_waitcnt vmcnt(0)")
            for i in range(3):
                S.raw(f"s_bitcmp1_b32 s94, {i}")
                S.raw(f"s_cbranch_scc1 P2_XC{i}")
                S.raw(f"v_cmp_eq_u32 vcc, v8, v{D + 12 * i + 3}")
                S.raw(f"v_cmp_eq_u32 s[86:87], v8, v{D + 12 * i + 7}")
                S.raw(f"v_cmp_eq_u32 s[92:93], v8, v{D + 12 * i + 11}")
                S.raw("s_nop 4")
                S.raw("s_and_b64 vcc, vcc, s[86:87]")
                S.raw("s_and_b64 vcc, vcc, s[92:93]")
                S.raw("s_cmp_eq_u64 vcc, exec")
                S.raw(f"s_cbranch_scc0 P2_XC{i}")
                S.raw(f"s_bitset1_b32 s94, {i}")
                S.label(f"P2_XC{i}")
            S.raw("s_cmp_eq_u32 s94, 7")
            S.raw("s_cbranch_scc1 P2_XDONE")
            S.raw("s_add_u32 s83, s83, 1")
            S.raw("s_cmp_gt_u32 s83, 200000")
            S.raw("s_cbranch_scc1 P2_XDONE")
            S.raw(f"s_sleep {cfg.get('x_sleep', 2)}")
            S.raw("s_branch P2_XP")
            S.label("P2_XDONE")
            S.branch("s_branch", "P2_TQ_OK")
        if not cfg.get("xfull", False):
            S.salu("s_mov_b32", "s83", 0)
            S.label("P2_TP")
            S.raw("s_nop 4")
            for i in range(3):
                S.raw(f"buffer_load_dwordx4 v[{D + 12 * i + 8}:{D + 12 * i + 11}], v11, s[56:59], s{88 + i} offen offset:2048 sc1")
            S.raw("s_waitcnt vmcnt(0)")
            S.raw(f"v_cmp_eq_u32 vcc, v8, v{D + 11}")
            S.raw(f"v_cmp_eq_u32 s[86:87], v8, v{D + 12 + 11}")
            S.raw(f"v_cmp_eq_u32 s[92:93], v8, v{D + 24 + 11}")
            S.raw("s_nop 4")
            S.raw("s_and_b64 vcc, vcc, s[86:87]")
            S.raw("s_and_b64 vcc, vcc, s[92:93]")
            S.raw("s_cmp_eq_u64 vcc, exec")
            S.raw("s_cbranch_scc1 P2_TP_OK")
            S.raw("s_add_u32 s83, s83, 1")
            S.raw("s_cmp_gt_u32 s83, 200000")
            S.raw("s_cbranch_scc1 P2_TP_OK")
            S.raw(f"s_sleep {cfg.get('x_sleep', 2)}")
            S.raw("s_branch P2_TP")
            S.label("P2_TP_OK")
            ST.stamp()
        S.salu("s_mov_b32", "s83", 0)
        S.label("P2_TQ")
        S.raw("s_nop 4")
        NQ = 3 if cfg.get("xfull", False) else 2
        for i in range(3):
            for k_ in range(NQ):
                S.raw(f"buffer_load_dwordx4 v[{D + 12 * i + 4 * k_}:{D + 12 * i + 4 * k_ + 3}], v11, s[56:59], s{88 + i} offen offset:{k_ * 1024} sc1")
        S.raw("s_waitcnt vmcnt(0)")
        S.raw("s_mov_b64 s[94:95], exec")
        for i in range(3):
            for k_ in range(NQ):
                S.raw(f"v_cmp_eq_u32 vcc, v8, v{D + 12 * i + 4 * k_ + 3}")
                S.raw("s_nop 4")
                S.raw("s_and_b64 s[94:95], s[94:95], vcc")
        S.raw("s_cmp_eq_u64 s[94:95], exec")
        S.raw("s_cbranch_scc1 P2_TQ_OK")
        S.raw("s_add_u32 s83, s83, 1")
        S.raw("s_cmp_gt_u32 s83, 200000")
        S.raw("s_cbranch_scc1 P2_TQ_OK")
        S.raw(f"s_sleep {cfg.get('x_sleep2', 1)}")
        S.raw("s_branch P2_TQ")
        S.label("P2_TQ_OK")
        S.salu("s_mov_b32", "s46", "0xffff0000")
        pos = [0, 1, 2, 4, 5, 6, 8, 9]
        for i in range(3):
            for k_ in range(8):
                src = v(D + 12 * i + pos[k_])
                S.valu("v_lshlrev_b32", "v16", 16, src)
                S.valu("v_and_b32", "v17", "s46", src)
                S.valu("v_add_f32", v(48 + 2 * k_), v(48 + 2 * k_), "v16")
                S.valu("v_add_f32", v(48 + 2 * k_ + 1), v(48 + 2 * k_ + 1), "v17")
        for k_ in range(8):
            S.valu("v_cvt_pk_bf16_f32", v(16 + k_), v(48 + 2 * k_), v(48 + 2 * k_ + 1))
    else:
        ST.stamp()
        xbf = cfg.get("xbf16", False)
        TB = 2048 if xbf else 4096
        S.valu("v_mov_b32", "v10", 0)
        S.buf_load("buffer_load_dwordx2", "v[8:9]", "v10", dbg, flags=" sc1")
        S.valu("v_lshlrev_b32", "v11", 4, l)
        S.salu("s_lshl_b32", "s44", "s80", 2)
        S.salu("s_add_u32", "s44", "s44", cw)
        S.salu("s_lshl_b32", "s44", "s44", 12)
        stf = cfg.get("p2_stfl", " sc1")
        for q in range(4):
            S.salu("s_cmp_eq_u32", "s80", q)
            S.branch("s_cbranch_scc1", f"P2_OWN{q}")
            S.salu("s_add_u32", "s45", "s44", q * 65536)
            if xbf:
                S.nop(7)
                for i in range(8):
                    S.valu("v_cvt_pk_bf16_f32", v(128 + 8 * q + i), v(64 + 16 * q + 2 * i), v(64 + 16 * q + 2 * i + 1))
                for i in range(2):
                    S.buf_store("buffer_store_dwordx4", v(128 + 8 * q + 4 * i, 4), "v11", "s[56:59]", "s45", i * 1024, flags=stf)
            else:
                for i in range(4):
                    S.buf_store("buffer_store_dwordx4", v(64 + 16 * q + 4 * i, 4), "v11", "s[56:59]", "s45", i * 1024, flags=stf)
            S.branch("s_branch", f"P2_N{q}")
            S.label(f"P2_OWN{q}")
            S.nop(15)
            for i in range(16):
                S.valu("v_mov_b32", v(48 + i), v(64 + 16 * q + i))
            S.label(f"P2_N{q}")
        S.wait(vm=0)
        ST.stamp()
        spin_nonce(S, dbg, "P2_NONCE", 8, "v10")
        S.salu("s_lshl_b32", "s45", "s80", 2)
        S.salu("s_add_u32", "s45", "s45", cw)
        S.salu("s_lshl_b32", "s45", "s45", 3)
        S.valu("v_mov_b32", "v12", "s84")
        S.valu("v_mov_b32", "v13", "s85")
        flag_store(S, "s[60:63]", "s45", "v10", "v[12:13]")
        S.valu("v_and_b32", "v14", 3, l)
        S.valu("v_lshlrev_b32", "v14", 5, "v14")
        S.salu("s_lshl_b32", "s45", cw, 3)
        poll(S, "P2_POLL", "s[60:63]", "v14", "s45", "v[8:9]", "v[12:13]", sleep=cfg.get("x_sleep", 4))
        ST.stamp()
        ldf = cfg.get("p2_ldfl", " sc1")
        for i in range(3):
            S.salu("s_add_u32", "s45", "s80", i + 1)
            S.salu("s_and_b32", "s45", "s45", 3)
            S.salu("s_lshl_b32", "s46", "s80", 2)
            S.salu("s_add_u32", "s45", "s45", "s46")
            S.salu("s_lshl_b32", "s45", "s45", 2)
            S.salu("s_add_u32", "s45", "s45", cw)
            S.salu("s_lshl_b32", "s45", "s45", 12)
            if xbf:
                for k in range(2):
                    S.buf_load("buffer_load_dwordx4", v(128 + 8 * i + 4 * k, 4), "v11", "s[56:59]", "s45", k * 1024, flags=ldf)
            else:
                for k in range(4):
                    S.buf_load("buffer_load_dwordx4", v(128 + 16 * i + 4 * k, 4), "v11", "s[56:59]", "s45", k * 1024, flags=ldf)
        if xbf:
            S.salu("s_mov_b32", "s46", "0xffff0000")
            for i in range(3):
                for k in range(8):
                    S.valu("v_lshlrev_b32", "v16", 16, v(128 + 8 * i + k))
                    S.valu("v_and_b32", "v17", "s46", v(128 + 8 * i + k))
                    S.valu("v_add_f32", v(48 + 2 * k), v(48 + 2 * k), "v16")
                    S.valu("v_add_f32", v(48 + 2 * k + 1), v(48 + 2 * k + 1), "v17")
        else:
            for i in range(3):
                for k in range(16):
                    S.valu("v_add_f32", v(48 + k), v(48 + k), v(128 + 16 * i + k))
        for k in range(8):
            S.valu("v_cvt_pk_bf16_f32", v(16 + k), v(48 + 2 * k), v(48 + 2 * k + 1))

    S.valu("v_and_b32", "v10", 31, l)
    S.valu("v_lshlrev_b32", "v10", 11, "v10")
    S.valu("v_lshrrev_b32", "v12", 5, l)
    S.valu("v_lshlrev_b32", "v12", 4, "v12")
    S.valu("v_add_u32", "v10", "v10", "v12")
    S.salu("s_and_b32", "s44", cw, 1)
    S.salu("s_lshl_b32", "s44", "s44", 1)
    S.salu("s_and_b32", "s45", "s80", 1)
    S.salu("s_add_u32", "s44", "s44", "s45")
    S.salu("s_lshl_b32", "s44", "s44", 16)
    S.salu("s_lshr_b32", "s45", cw, 1)
    S.salu("s_lshl_b32", "s45", "s45", 7)
    S.salu("s_add_u32", "s44", "s44", "s45")
    S.salu("s_lshr_b32", "s45", "s80", 1)
    S.salu("s_lshl_b32", "s45", "s45", 6)
    S.salu("s_add_u32", "s44", "s44", "s45")
    S.buf_store("buffer_store_dwordx4", "v[16:19]", "v10", "s[64:67]", "s44", 0)
    S.buf_store("buffer_store_dwordx4", "v[20:23]", "v10", "s[64:67]", "s44", 32)
    ST.stamp()
```

```python
import sys, argparse
from asmlib import *

NAME = "concat_heads__mha_block_cached__gqa_block_cached__near_ridge"

def interleave(S, mf, fill, per_gap, lead=0):
    fi = 0
    for _ in range(min(lead, len(fill))):
        fill[fi](); fi += 1
    for k, m in enumerate(mf):
        m()
        n = per_gap[k] if isinstance(per_gap, (list, tuple)) else per_gap
        for _ in range(n):
            if fi < len(fill):
                fill[fi](); fi += 1
    while fi < len(fill):
        fill[fi](); fi += 1

STAMP_BASE = 80
class Probe:
    regs = list(range(26, 36))
    def __init__(self, S, on):
        self.S = S; self.on = on; self.n = 0
    def mark(self):
        if not self.on or self.n >= len(self.regs): return
        S = self.S
        S.add(Inst("s_memrealtime s[92:93]", "smem", [], ["s92", "s93"]))
        S.wait(lgkm=0)
        S.salu("s_sub_u32", f"s{self.regs[self.n]}", "s92", "s96")
        self.n += 1
PROBE = [None]

class Stamper:
    allreal = False
    def __init__(self, S, on, vreg=None):
        self.S = S; self.on = on; self.n = 1; self.vreg = vreg
        if on:
            S.wait(lgkm=0)
            S.add(Inst(f"v_writelane_b32 v{vreg}, s98, 0", "valu", ["s98"], [f"v{vreg}"]))
    def stamp(self, real=False):
        if not self.on: return
        S = self.S
        op = "s_memrealtime" if (real or Stamper.allreal) else "s_memtime"
        S.add(Inst(f"{op} s[100:101]", "smem", [], ["s100", "s101"]))
        S.wait(lgkm=0)
        S.add(Inst(f"v_writelane_b32 v{self.vreg}, s100, {self.n}", "valu", ["s100"], [f"v{self.vreg}"]))
        self.n += 1
    def flush(self, region, vtmp=250):
        if not self.on: return
        S = self.S
        S.wait(vm=0, lgkm=0)
        S.smem("s[78:79]", "s[0:1]", 96)
        S.wait(lgkm=0)
        S.salu("s_add_u32", "s76", "s78", (64 << 20) + region * (1 << 20))
        S.salu("s_addc_u32", "s77", "s79", 0)
        S.salu("s_mov_b32", "s78", 1 << 20)
        S.salu("s_mov_b32", "s79", "0x20000")
        S.salu("s_lshl_b32", "s74", "s2", 11)
        S.salu("s_lshl_b32", "s75", "s43", 8)
        S.salu("s_add_u32", "s74", "s74", "s75")
        a = f"v{vtmp}"
        S.valu("v_mbcnt_lo_u32_b32", a, -1, 0)
        S.valu("v_mbcnt_hi_u32_b32", a, -1, a)
        S.valu("v_lshlrev_b32", a, 2, a)
        S.buf_store("buffer_store_dword", f"v{self.vreg}", a, "s[76:79]", "s74")
        S.wait(vm=0)

def load_ptrs(S, sel_sgpr_p):
    S.smem("s[16:31]", "s[0:1]", 0)
    S.smem("s[32:35]", "s[0:1]", 64)
    S.smem("s[36:37]", "s[0:1]", 80)
    S.smem("s[38:39]", "s[0:1]", 96)

def make_srd(S, srd, ptr_lo, ptr_hi, off_sgpr, total, off_hi=None):
    if isinstance(off_sgpr, int):
        S.salu("s_add_u32", s(srd), s(ptr_lo), off_sgpr)
        S.salu("s_addc_u32", s(srd + 1), s(ptr_hi), 0)
        S.salu("s_mov_b32", s(srd + 2), total - off_sgpr)
    else:
        S.salu("s_add_u32", s(srd), s(ptr_lo), off_sgpr)
        S.salu("s_addc_u32", s(srd + 1), s(ptr_hi), 0)
        S.salu("s_sub_u32", s(srd + 2), total, off_sgpr)
    S.salu("s_mov_b32", s(srd + 3), "0x20000")

NW = 4
NX = 2
WBASE = 65536
XBASE = WBASE + NW * 16384
KSLOT = [0, 16384, 32768, 49152]
VSLOT = [WBASE + 0 * 16384, WBASE + 1 * 16384, XBASE + 0 * 16384, WBASE + 2 * 16384]

def k1_prologue(S, cfg):
    S.salu("s_cmp_ge_u32", "s2", 256)
    S.branch("s_cbranch_scc1", "K1_DONE")
    if cfg.get("stamps", False):
        S.add(Inst(("s_memrealtime" if cfg.get("allreal") else "s_memtime") + " s[98:99]", "smem", [], ["s98", "s99"]))
    if cfg.get("probe", False):
        S.add(Inst("s_memrealtime s[96:97]", "smem", [], ["s96", "s97"]))
    load_ptrs(S, None)
    if cfg.get("fused", False):
        S.smem("s[4:5]", "s[0:1]", 88)
        S.salu("s_mov_b32", "s6", 256)
        S.salu("s_mov_b32", "s7", "0x20000")
    S.salu("s_and_b32", "s44", "s2", 7)
    S.salu("s_lshr_b32", "s45", "s2", 3)
    S.salu("s_lshr_b32", "s40", "s44", 2)
    S.salu("s_and_b32", "s44", "s44", 3)
    S.salu("s_lshl_b32", "s44", "s44", 2)
    S.salu("s_and_b32", "s41", "s45", 3)
    S.salu("s_add_u32", "s41", "s41", "s44")
    S.salu("s_lshr_b32", "s42", "s45", 2)
    S.salu("s_lshr_b32", "s12", "s2", 3)
    S.valu("v_lshrrev_b32", "v1", 6, "v0")
    S.valu("v_readfirstlane_b32", "s43", "v1")
    S.valu("v_and_b32", "v1", 63, "v0")
    if not cfg.get("fused", False):
        k1_ptrs(S, cfg, 1); k1_ptrs(S, cfg, 2)

def k1_ptrs(S, cfg, part):
    if part == 1:
        S.salu("s_cmp_eq_u32", "s40", 0)
        S.salu("s_cselect_b64", "s[16:17]", "s[16:17]", "s[26:27]")
        S.salu("s_cselect_b64", "s[22:23]", "s[22:23]", "s[32:33]")
        S.salu("s_cselect_b64", "s[18:19]", "s[18:19]", "s[28:29]")
        S.salu("s_cselect_b64", "s[20:21]", "s[20:21]", "s[30:31]")
        S.salu("s_cselect_b64", "s[24:25]", "s[24:25]", "s[34:35]")
        S.salu("s_lshl_b32", "s44", "s41", 9)
        make_srd(S, 48, 22, 23, "s44", 512 * 8192)
        S.salu("s_lshl_b32", "s44", "s42", 17)
        make_srd(S, 52, 16, 17, "s44", 1024 * 1024)
    else:
        S.salu("s_lshl_b32", "s44", "s42", 20)
        S.salu("s_lshl_b32", "s45", "s41", 14)
        S.salu("s_add_u32", "s44", "s44", "s45")
        make_srd(S, 56, 18, 19, "s44", 32 * 262144)
        make_srd(S, 60, 20, 21, "s44", 32 * 262144)
        S.salu("s_lshl_b32", "s45", "s40", 23)
        S.salu("s_add_u32", "s44", "s44", "s45")
        make_srd(S, 64, 38, 39, "s44", 2 * 32 * 262144)

def nonce_store(S):
    S.salu("s_or_b32", "s44", "s2", "s43")
    S.salu("s_cmp_lg_u32", "s44", 0)
    S.branch("s_cbranch_scc1", "F_NONONCE")
    S.add(Inst("s_memrealtime s[44:45]", "smem", [], ["s44", "s45"]))
    S.wait(lgkm=0)
    S.salu("s_or_b32", "s44", "s44", 1)
    S.valu("v_mov_b32", "v2", "s44")
    S.valu("v_mov_b32", "v3", "s45")
    S.valu("v_mov_b32", "v4", 0)
    S.buf_store("buffer_store_dwordx2", "v[2:3]", "v4", "s[4:7]", flags=" sc1")
    S.label("F_NONONCE")

def k1_fast(S, cfg):
    S.salu("s_sub_u32", "s44", "s43", 4)
    L = "v1"
    t0, t1, t2 = "v2", "v3", "v4"
    S.valu("v_lshrrev_b32", t0, 5, L)
    S.valu("v_and_b32", t1, 31, L)
    S.valu("v_lshlrev_b32", t2, 2, t0)
    S.valu("v_xor_b32", "v10", t1, t2)
    S.valu("v_lshlrev_b32", "v10", 4, "v10")
    S.valu("v_xor_b32", "v11", 128, "v10")
    S.valu("v_lshlrev_b32", t2, 13, t0)
    S.salu("s_lshl_b32", "s45", "s44", 16)
    S.valu("v_add_u32", t2, "s45", t2)
    S.valu("v_add_u32", "v10", "v10", t2)
    S.valu("v_add_u32", "v11", "v11", t2)
    S.valu("v_lshrrev_b32", t0, 3, L)
    S.valu("v_and_b32", t1, 7, L)
    S.valu("v_lshrrev_b32", t2, 4, L)
    S.valu("v_xor_b32", "v12", t1, t2)
    S.valu("v_lshlrev_b32", "v12", 4, "v12")
    S.valu("v_xor_b32", "v13", 64, "v12")
    S.valu("v_lshlrev_b32", t0, 10, t0)
    S.salu("s_lshl_b32", "s45", "s44", 15)
    S.valu("v_add_u32", t0, "s45", t0)
    S.valu("v_add_u32", "v12", "v12", t0)
    S.valu("v_add_u32", "v13", "v13", t0)
    S.salu("s_lshl_b32", "s47", "s44", 12)
    if cfg.get("rot", True):
        S.salu("s_and_b32", "s79", "s41", 3)
        S.salu("s_lshl_b32", "s79", "s79", 1)
        S.salu("s_add_u32", "s79", "s79", "s42")
        S.salu("s_and_b32", "s79", "s79", 7)
    else:
        S.salu("s_mov_b32", "s79", 0)
    if cfg.get("fused", False):
        k1_ptrs(S, cfg, 1)
    ldflags = cfg.get("ldflags", " nt")
    kvflags = cfg.get("kvflags", " nt")
    skip = cfg.get("skip", "")
    def dma(voff, srd, base, off, ldsbase, tok, flags):
        S.salu("s_add_u32", "m0", "s47", ldsbase)
        S.salu("s_add_u32", "s46", base, off)
        S.buf_dma(voff, srd, "s46", tok=tok, flags=flags)
    def issue_w(st):
        S.salu("s_add_u32", "s13", "s79", st // 2)
        S.salu("s_and_b32", "s13", "s13", 7)
        S.salu("s_lshl_b32", "s13", "s13", 19)
        for ii in range(4):
            dma("v10" if ii % 2 == 0 else "v11", "s[48:51]", "s13", (st % 2) * 262144 + ii * 16384,
                WBASE + (st % NW) * 16384 + ii * 1024, f"w{st}", cfg.get("ldflags0", ldflags) if st < 2 else ldflags)
    def issue_x(j):
        S.salu("s_add_u32", "s13", "s79", j)
        S.salu("s_and_b32", "s13", "s13", 7)
        S.salu("s_lshl_b32", "s13", "s13", 7)
        for ii in range(4):
            dma("v12" if ii % 2 == 0 else "v13", "s[52:55]", "s13", ii * 8192,
                XBASE + (j % NX) * 16384 + ii * 1024, f"x{j}", cfg.get("ldflags0", ldflags) if j < 2 else ldflags)
    if cfg.get("fused", False):
        issue_w(0); issue_x(0)
        k1_ptrs(S, cfg, 2)
        S.salu("s_sub_u32", "s44", "s43", 4)
    S.valu("v_lshrrev_b32", t2, 4, L)
    S.valu("v_and_b32", t1, 15, L)
    S.valu("v_lshlrev_b32", t0, 8, t2)
    S.salu("s_and_b32", "s45", "s44", 1)
    S.salu("s_lshl_b32", "s45", "s45", 12)
    S.salu("s_lshr_b32", "s46", "s44", 1)
    S.salu("s_lshl_b32", "s46", "s46", 18)
    S.salu("s_add_u32", "s45", "s45", "s46")
    S.valu("v_add_u32", t0, "s45", t0)
    S.valu("v_xor_b32", "v5", t1, t2)
    for ii in range(4):
        S.valu("v_xor_b32", v(14 + ii), 4 * ii, "v5")
        S.valu("v_lshlrev_b32", v(14 + ii), 4, v(14 + ii))
        S.valu("v_add_u32", v(14 + ii), v(14 + ii), t0)
        if ii: S.valu("v_add_u32", v(14 + ii), ii * 1024, v(14 + ii))
    S.valu("v_lshlrev_b32", "v5", 2, t2)
    S.valu("v_xor_b32", "v18", t1, "v5")
    S.valu("v_lshlrev_b32", "v18", 4, "v18")
    S.valu("v_add_u32", "v18", "v18", t0)
    S.salu("s_mov_b32", "s14", 0)
    def issue_k(cw):
        for ii in range(4):
            dma(v(14 + ii), "s[56:59]", "s14", 2 * (cw % 2) * 262144 + (cw // 2) * 8192, KSLOT[cw] + ii * 1024, "k", kvflags)
    VR = 32
    def issue_v(cw):
        for ii in range(4):
            S.salu("s_mov_b32", "s46", 2 * (cw % 2) * 262144 + (cw // 2) * 8192 + ii * 1024)
            S.buf_load("buffer_load_dwordx4", v(VR + 16 * cw + 4 * ii, 4), "v18", "s[60:63]", "s46", tok="v", flags=kvflags)
    S.valu("v_lshlrev_b32", "v19", 4, L)
    S.valu("v_add_u32", "v19", "s47", "v19")
    S.valu("v_add_u32", "v20", 65536, "v19")
    S.valu("v_add_u32", "v21", 131072, "v19")
    def write_v(cw):
        sb = VSLOT[cw]; areg = 19 + sb // 65536
        for ii in range(4):
            S.ds_write("ds_write_b128", v(areg), v(VR + 16 * cw + 4 * ii, 4), sb % 65536 + ii * 1024)

    def body(S, phase, ST):
        def issue(items):
            for it in items:
                if it[0] in skip: continue
                {"w": issue_w, "x": issue_x, "k": issue_k, "v": issue_v}[it[0]](it[1])
        sched = {b: [] for b in range(-2, 17)}
        sched[-2] = [("w", 0), ("x", 0), ("w", 1)] if not cfg.get("fused", False) else [("w", 1)]
        sched[-1] = [("w", 2), ("x", 1), ("w", 3)]
        for st in range(0, 16):
            if st + NW < 16: sched[st].append(("w", st + NW))
            if st % 2 == 1 and (st - 1) // 2 + NX < 8: sched[st].append(("x", (st - 1) // 2 + NX))
        items = [[("k", 0), ("k", 1)], [("k", 2), ("k", 3)], [("v", 0), ("v", 1)], [("v", 2), ("v", 3)]]
        if "btab8" in cfg:
            items8 = [("k", 0), ("k", 1), ("k", 2), ("k", 3), ("v", 0), ("v", 1), ("v", 2), ("v", 3)]
            b8 = cfg["btab8"]
            for bt, it in zip(b8, items8): sched[bt].append(it)
            bursts = [b8[0], b8[3], b8[5], b8[7]]
        elif "btab" in cfg:
            bursts = cfg["btab"][phase]
            for bt, its in zip(bursts, items):
                sched[bt] += its
        else:
            bursts = cfg.get("bursts", [0, 3, 6, 9])
            for bt, its in zip(bursts, items):
                sched[min(bt + phase, 11)] += its
        wr = {12: [0], 13: [1, 2], 14: [3]}
        lastv = max(bursts[2:]) if ("btab" in cfg or "btab8" in cfg) else 0
        if lastv >= 11:
            wr = {15: [0, 1, 2, 3]}
        issue(sched[-2])
        ST.stamp()
        S.wait_vm_tok("w0"); S.wait_vm_tok("x0")
        ST.stamp()
        S.barrier()
        issue(sched[-1])
        for st in range(16):
            if st + 1 < 16:
                S.wait_vm_tok(f"w{st+1}")
                S.wait_vm_tok(f"x{(st+1)//2}")
            else:
                S.wait_vm_tok("k")
            if st >= 13: S.wait(lgkm=0)
            ST.stamp()
            S.barrier()
            ST.stamp()
            issue(sched[st])
            for cw in wr.get(st, []):
                if "v" not in skip: write_v(cw)
            if cfg.get("fused", False) and st == cfg.get("wopf_at", 12):
                import k2b
                k2b.p2_srds(S)
                if cfg.get("wopf", True):
                    S.valu("v_lshrrev_b32", "v2", 1, L)
                    S.valu("v_lshlrev_b32", "v2", 10, "v2")
                    S.valu("v_and_b32", "v3", 1, L)
                    S.valu("v_lshlrev_b32", "v3", 7, "v3")
                    S.valu("v_add_u32", "v2", "v2", "v3")
                    S.salu("s_sub_u32", "s44", "s43", 4)
                    S.salu("s_lshl_b32", "s44", "s44", 15)
                    S.salu("s_lshl_b32", "s45", "s42", 17)
                    S.salu("s_add_u32", "s44", "s44", "s45")
                    S.buf_load("buffer_load_dword", "v24", "v2", "s[48:51]", "s44", flags=cfg.get("wopf_fl", ""))
        if cfg.get("b16", False):
            S.wait(lgkm=0)
            S.barrier()
        if cfg.get("fused", False):
            import k2b
            k2b.p2_loader_fused(S, cfg, ST)
        ST.stamp(real=True)
        ST.flush(0, 31)
        S.endpgm()
    return body

def k1_consumer(S, cfg):
    cw = "s43"
    l = "v1"
    if cfg.get("fused", False): nonce_store(S)
    T = [f"v{n}" for n in range(16, 32)]
    i_, hh, gb, kx, c4, t0, t1, t2 = T[:8]
    S.valu("v_and_b32", i_, 15, l)
    S.valu("v_lshrrev_b32", hh, 5, l)
    S.valu("v_bfe_u32", gb, l, 4, 1)
    S.valu("v_lshrrev_b32", kx, 2, i_)
    S.valu("v_and_b32", c4, 3, l)
    S.valu("v_and_b32", t0, 1, c4)
    S.valu("v_lshlrev_b32", t0, 4, t0)
    S.valu("v_lshrrev_b32", t1, 1, c4)
    S.valu("v_lshlrev_b32", t1, 3, t1)
    S.valu("v_or_b32", t0, t0, t1)
    S.valu("v_lshlrev_b32", t1, 5, gb)
    S.valu("v_or_b32", t0, t0, t1)
    S.valu("v_lshlrev_b32", t1, 3, hh)
    S.valu("v_add_u32", t1, t1, kx)
    S.valu("v_lshlrev_b32", t1, 9, t1)
    S.valu("v_add_u32", t0, t0, t1)
    S.salu("s_lshr_b32", "s44", cw, 1)
    S.salu("s_lshl_b32", "s44", "s44", 8)
    S.valu("v_add_u32", t0, "s44", t0)
    for t in range(4):
        S.valu("v_xor_b32", t1, t, kx)
        S.valu("v_lshlrev_b32", t1, 6, t1)
        S.valu("v_add_u32", v(2 + t), t0, t1)
        S.valu("v_add_u32", v(2 + t), WBASE, v(2 + t))
    S.valu("v_and_b32", t0, 31, l)
    S.valu("v_bfe_u32", t1, l, 1, 3)
    S.valu("v_xor_b32", t1, t1, hh)
    S.valu("v_lshlrev_b32", t0, 7, t0)
    S.salu("s_and_b32", "s44", cw, 1)
    S.salu("s_lshl_b32", "s44", "s44", 13)
    S.salu("s_add_u32", "s44", "s44", XBASE)
    S.valu("v_add_u32", t0, "s44", t0)
    for s4 in range(4):
        S.valu("v_xor_b32", t2, 2 * s4, t1)
        S.valu("v_lshlrev_b32", t2, 4, t2)
        S.valu("v_add_u32", v(10 + s4), t0, t2)
    S.salu("s_and_b32", "s44", cw, 1)
    S.salu("s_lshl_b32", "s44", "s44", 19)
    S.salu("s_lshr_b32", "s45", cw, 1)
    S.salu("s_lshl_b32", "s45", "s45", 13)
    S.salu("s_add_u32", "s70", "s44", "s45")
    S.salu("s_add_u32", "s71", "s70", 262144)
    S.salu("s_add_u32", "s72", "s70", 4096)
    S.salu("s_add_u32", "s73", "s71", 4096)
    def sel4(dst, vals):
        S.salu("s_mov_b32", dst, vals[0])
        for c in range(1, 4):
            S.salu("s_cmp_eq_u32", cw, c)
            S.salu("s_cselect_b32", dst, vals[c], dst)
    sel4("s74", KSLOT); sel4("s75", VSLOT)
    import math, struct
    c = (128 ** -0.5) * math.log2(math.e)
    S.salu("s_mov_b32", "s76", hex(struct.unpack("<I", struct.pack("<f", c))[0]))

    ABUF = [16, 32]; BBUF = [48, 56]
    ACC = lambda ib, t: 128 + 64 * ib + 16 * t
    def reads(ks):
        st, sub = ks // 2, ks % 2
        j, s4 = ks // 4, ks % 4
        slot = st % NW
        buf = ks % 2
        r = []
        def rb(ib):
            return lambda: S.ds_read("ds_read_b128", v(BBUF[buf] + 4 * ib, 4), v(10 + s4), (j % NX) * 16384 + ib * 4096)
        def ra(t, jj):
            base = 2 + t
            return lambda: S.ds_read("ds_read_b64_tr_b16", v(ABUF[buf] + 4 * t + 2 * jj, 2), v(base),
                                     (slot % 4) * 16384 + sub * 8192 + jj * 2048)
        r += [rb(0), ra(0, 0), ra(0, 1), rb(1), ra(1, 0), ra(1, 1), ra(2, 0), ra(2, 1), ra(3, 0), ra(3, 1)]
        return r
    def mfmas(ks, order):
        buf = ks % 2
        m = []
        for (t, ib) in order:
            first = (ks == 0)
            def f(t=t, ib=ib, first=first):
                S.mfma(v(ACC(ib, t), 16), v(ABUF[buf] + 4 * t, 4), v(BBUF[buf] + 4 * ib, 4), 0 if first else v(ACC(ib, t), 16))
            m.append(f)
        return m
    ST = Stamper(S, cfg.get("stamps", False), 15)
    PR = Probe(S, cfg.get("probe2", False)); PROBE[0] = PR
    ST.stamp()
    PR.mark()
    S.barrier()
    PR.mark()
    ST.stamp()
    for f in reads(0): f()
    std = [(0, 0), (0, 1), (1, 0), (1, 1), (2, 0), (2, 1), (3, 0), (3, 1)]
    last = [(0, 0), (1, 0), (2, 0), (3, 0), (0, 1), (1, 1), (2, 1), (3, 1)]
    def kv_addr_code():
        c = []
        a = lambda *x, **k: c.append(lambda: S.valu(*x, **k))
        a("v_and_b32", "v0", 15, l)
        a("v_lshrrev_b32", "v14", 5, l)
        a("v_xor_b32", "v0", "v0", "v14")
        a("v_lshlrev_b32", "v0", 4, "v0")
        a("v_and_b32", "v2", 31, l)
        a("v_lshlrev_b32", "v2", 8, "v2")
        a("v_add_u32", "v2", "s74", "v2")
        a("v_or_b32", "v2", "v2", "v0")
        for cidx in range(1, 8):
            a("v_xor_b32", v(2 + cidx), (2 * cidx) << 4, "v2")
        return c
    def v_addr_code():
        c = []
        a = lambda *x, **k: c.append(lambda: S.valu(*x, **k))
        a("v_bfe_u32", "v0", l, 2, 2)
        a("v_lshrrev_b32", "v14", 5, l)
        a("v_lshlrev_b32", "v14", 2, "v14")
        a("v_add_u32", "v14", "v14", "v0")
        a("v_lshlrev_b32", "v14", 8, "v14")
        a("v_add_u32", "v14", "s75", "v14")
        a("v_bfe_u32", "v10", l, 4, 1)
        a("v_lshlrev_b32", "v10", 5, "v10")
        a("v_add_u32", "v14", "v14", "v10")
        a("v_and_b32", "v10", 3, l)
        a("v_lshlrev_b32", "v10", 3, "v10")
        a("v_add_u32", "v14", "v14", "v10")
        a("v_lshlrev_b32", "v0", 6, "v0")
        for tp in range(4):
            a("v_xor_b32", v(10 + tp), tp << 6, "v0")
            a("v_add_u32", v(10 + tp), v(10 + tp), "v14")
        return c

    K0, QB0, QB1, K1 = 96, 64, 16, 144
    S0, S1 = 128, 176
    P0, P1 = 48, 56
    V0, V1 = 96, 144
    def kreads(ib, base):
        r = []
        for t in range(4):
            for u in range(2):
                cidx = 2 * t + u
                r.append(lambda cidx=cidx: S.ds_read("ds_read_b128", v(base + 4 * cidx, 4), v(2 + cidx), ib * 8192))
        return r
    def vreads(ib, base):
        r = []
        for u in range(2):
            for tp in range(4):
                for jj in range(2):
                    r.append(lambda tp=tp, u=u, jj=jj: S.ds_read("ds_read_b64_tr_b16", v(base + 4 * (2 * tp + u) + 2 * jj, 2),
                                                                v(10 + tp), ib * 8192 + u * 4096 + jj * 2048))
        return r

    for ks in range(32):
        sub = ks % 2
        if ks % 2 == 0: ST.stamp()
        if sub == 1:
            S.wait(lgkm=0)
            S.barrier()
        fill = []
        if cfg.get("nocompute", False) and ks + 1 < 32:
            continue
        if ks + 1 < 32:
            fill += reads(ks + 1)
            interleave(S, mfmas(ks, std), fill, 2)
        else:
            fill += kv_addr_code() + kreads(0, K0) + v_addr_code()
            interleave(S, mfmas(ks, last), fill, [8, 8, 4, 4, 6, 6, 6, 6])

    def cvt(dst, src, n):
        return [lambda i=i: S.valu("v_cvt_pk_bf16_f32", v(dst + i), v(src + 2 * i), v(src + 2 * i + 1)) for i in range(n)]
    def smf(acc, kb, qb):
        m = []
        for cidx in range(8):
            m.append(lambda cidx=cidx: S.mfma(v(acc, 16), v(kb + 4 * cidx, 4), v(qb + 4 * cidx, 4), 0 if cidx == 0 else v(acc, 16)))
        return m
    def softmax(acc, pdst, tm):
        c = []
        a = lambda *x, **k: c.append(lambda: S.valu(*x, **k))
        m, m2, t, t2 = [v(tm + i) for i in range(4)]
        a("v_max3_f32", m, v(acc), v(acc + 1), v(acc + 2))
        a("v_max3_f32", m2, v(acc + 3), v(acc + 4), v(acc + 5))
        a("v_max3_f32", m, m, v(acc + 6), v(acc + 7))
        a("v_max3_f32", m2, m2, v(acc + 8), v(acc + 9))
        a("v_max3_f32", m, m, v(acc + 10), v(acc + 11))
        a("v_max3_f32", m2, m2, v(acc + 12), v(acc + 13))
        a("v_max3_f32", m, m, v(acc + 14), v(acc + 15))
        a("v_max_f32", m, m, m2)
        a("v_mov_b32", m2, m)
        a("v_permlane32_swap_b32", m2, m)
        a("v_max_f32", m, m, m2)
        a("v_mul_f32", m, "s76", m)
        for r in range(16):
            a("v_fma_f32", v(acc + r), v(acc + r), "s76", "-" + m)
        for r in range(16):
            a("v_exp_f32", v(acc + r), v(acc + r))
        a("v_add_f32", t, v(acc), v(acc + 1))
        a("v_add_f32", t2, v(acc + 2), v(acc + 3))
        for r in range(4, 16, 2):
            a("v_add_f32", t, t, v(acc + r))
            a("v_add_f32", t2, t2, v(acc + r + 1))
        a("v_add_f32", t, t, t2)
        a("v_mov_b32", t2, t)
        a("v_permlane32_swap_b32", t2, t)
        a("v_add_f32", t, t, t2)
        a("v_rcp_f32", t, t)
        for r in range(16):
            a("v_mul_f32", v(acc + r), v(acc + r), t)
        for r in range(8):
            a("v_cvt_pk_bf16_f32", v(pdst + r), v(acc + 2 * r), v(acc + 2 * r + 1))
        return c
    def pvmf(otiles, vb, pb):
        m = []
        for u in range(2):
            for tp in range(4):
                m.append(lambda tp=tp, u=u: S.mfma(v(otiles[tp], 16), v(vb + 4 * (2 * tp + u), 4), v(pb + 4 * u, 4),
                                                   0 if u == 0 else v(otiles[tp], 16)))
        return m
    stflags = cfg.get("stflags", "")
    def ostore(otiles, tmp, so_lo, so_hi):
        c = []
        for tp in range(4):
            for r2 in range(2):
                f = 2 * tp + r2
                d = tmp + 4 * f
                for i in range(4):
                    c.append(lambda d=d, i=i, tp=tp, r2=r2: S.valu("v_cvt_pk_bf16_f32", v(d + i), v(otiles[tp] + 8 * r2 + 2 * i),
                                                                 v(otiles[tp] + 8 * r2 + 2 * i + 1)))
                c.append(lambda d=d, f=f: S.buf_store("buffer_store_dwordx4", v(d, 4), "v0", "s[64:67]",
                                                      so_lo if f < 4 else so_hi, (f % 4) * 1024, flags=stflags))
        return c
    ST.stamp()
    PR.mark()
    O0 = [192, 208, 224, 240]
    O1 = [64, 80, 16, 32]
    if cfg.get("attn2", False):
        c0 = cvt(QB0, ACC(0, 0), 32); c1 = cvt(QB1, ACC(1, 0), 32)
        s0 = smf(S0, K0, QB0); s1 = smf(S1, K1, QB1)
        for f in c0[:8]: f()
        k1r = kreads(1, K1)
        fill = c0[8:] + k1r + c1
        interleave(S, s0, fill, [8, 1, 8, 1, 8, 6, 6, 6])
        if cfg.get("fused", False):
            S.wait(lgkm=0)
            S.barrier()
        ST.stamp()
        sm0 = softmax(S0, P0, 2); sm1 = softmax(S1, P1, 6)
        v0r = vreads(0, V0); v1r = vreads(1, V1)
        interleave(S, s1, v0r + sm0[:30], [4, 4, 4, 4, 6, 8, 8, 8])
        a_, b_ = sm0[30:], sm1
        for f in v1r[:0]: f()
        i = j = 0
        while i < len(a_) or j < len(b_):
            if i < len(a_): a_[i](); i += 1
            if j < len(b_) and (i >= 10 or i >= len(a_)): b_[j](); j += 1
            if i >= len(a_): break
        interleave(S, pvmf(O0, V0, P0), v1r + b_[j:], 8)
    else:
        for f in cvt(QB0, ACC(0, 0), 32): f()
        interleave(S, smf(S0, K0, QB0), kreads(1, K1) + cvt(QB1, ACC(1, 0), 32), 5)
        if cfg.get("b16", False): S.barrier()
        if cfg.get("fused", False):
            S.wait(lgkm=0)
            S.barrier()
        ST.stamp()
        sm0 = softmax(S0, P0, 2)
        interleave(S, smf(S1, K1, QB1), vreads(0, V0) + sm0[:40], [2, 2, 2, 2, 2, 2, 2, 2])
        for f in sm0[40:]: f()
        sm1 = softmax(S1, P1, 6)
        interleave(S, pvmf(O0, V0, P0), vreads(1, V1) + sm1, 8)
    S.valu("v_lshlrev_b32", "v0", 4, l)
    if cfg.get("fused", False):
        import k2b
        S.salu("s_lshr_b32", "s44", cw, 1)
        S.salu("s_lshl_b32", "s44", "s44", 15)
        S.salu("s_and_b32", "s45", cw, 1)
        S.salu("s_lshl_b32", "s45", "s45", 13)
        S.salu("s_add_u32", "s44", "s44", "s45")
        S.valu("v_add_u32", "v0", "s44", "v0")
        def owrite(otiles, tmp, ib):
            c = []
            for tp in range(4):
                for r2 in range(2):
                    f = 2 * tp + r2
                    d = tmp + 4 * f
                    for i in range(4):
                        c.append(lambda d=d, i=i, tp=tp, r2=r2: S.valu("v_cvt_pk_bf16_f32", v(d + i), v(otiles[tp] + 8 * r2 + 2 * i),
                                                                     v(otiles[tp] + 8 * r2 + 2 * i + 1)))
                    c.append(lambda d=d, f=f: S.ds_write("ds_write_b128", "v0", v(d, 4), (f // 4) * 16384 + ib * 4096 + (f % 4) * 1024))
            return c
        interleave(S, pvmf(O1, V1, P1), owrite(O0, 96, 0), 5)
        for f in owrite(O1, 128, 1): f()
        ST.stamp()
        k2b.p2_srds(S)
        cfg["_probe"] = PR if cfg.get("probe2", False) else None
        k2b.p2_compute(S, cfg, ST, dbg="s[4:7]", fused=True)
        if cfg.get("probe", False):
            S.wait(vm=0)
            S.add(Inst("s_memrealtime s[92:93]", "smem", [], ["s92", "s93"]))
            S.add(Inst("s_getreg_b32 s94, hwreg(HW_REG_XCC_ID)", "salu", [], ["s94"]))
            S.wait(lgkm=0)
            S.salu("s_sub_u32", "s93", "s92", "s96")
            if cfg.get("probe2", False):
                S.salu("s_cmp_lg_u32", "s2", cfg.get("probe_wg", 0))
                S.branch("s_cbranch_scc1", "PRB_N")
                S.salu("s_cmp_lg_u32", "s43", 0)
                S.branch("s_cbranch_scc1", "PRB_N")
                S.valu("v_mov_b32", "v4", 0)
                for i in range(PR.n):
                    S.valu("v_mov_b32", "v2", f"s{PR.regs[i]}")
                    S.buf_store("buffer_store_dword", "v2", "v4", "s[4:7]", "0", 8 + 4 * i)
                    S.nop(2)
                S.valu("v_mov_b32", "v2", "s93")
                S.buf_store("buffer_store_dword", "v2", "v4", "s[4:7]", "0", 8 + 4 * PR.n)
                S.branch("s_branch", "PRB_N")
            S.salu("s_mul_i32", "s44", "s2", 7282)
            S.salu("s_lshr_b32", "s44", "s44", 16)
            S.salu("s_mul_i32", "s45", "s44", 9)
            S.salu("s_cmp_lg_u32", "s45", "s2")
            S.branch("s_cbranch_scc1", "PRB_N")
            S.salu("s_cmp_lg_u32", "s43", 0)
            S.branch("s_cbranch_scc1", "PRB_N")
            S.salu("s_cmp_gt_u32", "s44", 5)
            S.branch("s_cbranch_scc1", "PRB_N")
            S.salu("s_lshl_b32", "s44", "s44", 3)
            S.salu("s_add_u32", "s44", "s44", 8)
            S.valu("v_mov_b32", "v2", "s93")
            S.valu("v_mov_b32", "v3", "s94")
            S.valu("v_mov_b32", "v4", 0)
            S.buf_store("buffer_store_dwordx2", "v[2:3]", "v4", "s[4:7]", "s44")
            S.label("PRB_N")
        ST.flush(0, 14)
        S.endpgm()
        return
    interleave(S, pvmf(O1, V1, P1), ostore(O0, 96, "s70", "s72"), 5)
    for f in ostore(O1, 128, "s71", "s73"): f()
    ST.stamp()
    if cfg.get("stamps", False):
        S.wait(vm=0)
        ST.stamp()
    ST.flush(0, 14)
    S.endpgm()

def gen_k1(cfg):
    P = Stream("k1pro"); k1_prologue(P, cfg)
    P.salu("s_cmp_ge_u32", "s43", 4)
    P.branch("s_cbranch_scc1", "K1_FAST")
    parts = []
    X = Stream(); k1_consumer(X, cfg)
    A = Stream(); A.ins = list(P.ins) + X.ins
    parts.append(render(A.finalize()))
    nph = cfg.get("nphase", 1)
    Lc = Stream()
    body = k1_fast(Lc, cfg)
    setup = list(Lc.ins)
    if nph > 1:
        if cfg.get("phase_src", "idx") == "p":
            Lc.salu("s_mov_b32", "s15", "s40")
        elif cfg.get("phase_src") == "xcd":
            Lc.salu("s_and_b32", "s15", "s2", nph - 1)
        else:
            Lc.salu("s_lshr_b32", "s15", "s12", cfg.get("phase_shift", 0))
            Lc.salu("s_and_b32", "s15", "s15", nph - 1)
        for ph in range(1, nph):
            Lc.salu("s_cmp_eq_u32", "s15", ph)
            Lc.branch("s_cbranch_scc1", f"K1_PH{ph}")
    head = list(Lc.ins)
    for ph in range(nph):
        Lc.ins = []
        Stream.sfx = f"_p{ph}"
        ST = Stamper(Lc, cfg.get("stamps", False), 30)
        ST.stamp(); ST.stamp(real=True)
        body(Lc, ph, ST)
        lab = f"K1_PH{ph}"
        A = Stream(); A.ins = list(P.ins) + [Inst("K1_FAST:", "label")] + head + [Inst(lab + ":", "label")] + list(Lc.ins)
        f = A.finalize()
        key = "K1_FAST:" if ph == 0 else lab + ":"
        idx = [k for k, i in enumerate(f) if i.kind == "label" and i.text == key][0]
        parts.append(render(f[idx:]))
    return "\n".join(parts) + "\nK1_DONE:\n    s_endpgm\n"

def gen_k2(cfg):
    S = Stream("k2")
    D = cfg.get("k2_depth", 4)
    R = D + 1
    S.salu("s_cmp_ge_u32", "s2", 256)
    S.branch("s_cbranch_scc1", "K2_DONE")
    if cfg.get("stamps", False):
        S.add(Inst(("s_memrealtime" if cfg.get("allreal") else "s_memtime") + " s[98:99]", "smem", [], ["s98", "s99"]))
    S.smem("s[16:17]", "s[0:1]", 32)
    S.smem("s[18:19]", "s[0:1]", 72)
    S.smem("s[36:37]", "s[0:1]", 80)
    S.smem("s[38:39]", "s[0:1]", 96)
    S.salu("s_and_b32", "s44", "s2", 7)
    S.salu("s_lshr_b32", "s45", "s2", 3)
    S.salu("s_lshr_b32", "s40", "s44", 2)
    S.salu("s_and_b32", "s44", "s44", 3)
    S.salu("s_lshl_b32", "s44", "s44", 2)
    S.salu("s_lshr_b32", "s41", "s45", 3)
    S.salu("s_add_u32", "s41", "s41", "s44")
    S.salu("s_and_b32", "s42", "s45", 7)
    S.valu("v_lshrrev_b32", "v1", 6, "v0")
    S.valu("v_readfirstlane_b32", "s43", "v1")
    S.valu("v_and_b32", "v1", 63, "v0")
    S.salu("s_cmp_eq_u32", "s40", 0)
    S.salu("s_cselect_b64", "s[16:17]", "s[16:17]", "s[18:19]")
    S.salu("s_lshl_b32", "s44", "s42", 7)
    S.salu("s_lshl_b32", "s45", "s43", 19)
    S.salu("s_add_u32", "s44", "s44", "s45")
    make_srd(S, 48, 16, 17, "s44", 4096 * 1024)
    S.salu("s_lshl_b32", "s44", "s40", 23)
    S.salu("s_lshl_b32", "s45", "s41", 19)
    S.salu("s_add_u32", "s44", "s44", "s45")
    S.salu("s_lshl_b32", "s45", "s43", 15)
    S.salu("s_add_u32", "s44", "s44", "s45")
    make_srd(S, 52, 38, 39, "s44", 2 * 32 * 262144)
    S.salu("s_lshl_b32", "s44", "s41", 17)
    S.salu("s_lshl_b32", "s45", "s40", 10)
    S.salu("s_add_u32", "s44", "s44", "s45")
    S.salu("s_lshl_b32", "s45", "s42", 7)
    S.salu("s_add_u32", "s44", "s44", "s45")
    make_srd(S, 56, 36, 37, "s44", 1024 * 2048)
    l = "v1"
    S.valu("v_lshrrev_b32", "v3", 3, l)
    S.valu("v_bfe_u32", "v4", l, 4, 1)
    S.valu("v_lshlrev_b32", "v4", 2, "v4")
    S.valu("v_and_b32", "v5", 7, l)
    S.valu("v_xor_b32", "v4", "v4", "v5")
    S.valu("v_lshlrev_b32", "v4", 4, "v4")
    S.valu("v_lshlrev_b32", "v3", 10, "v3")
    S.valu("v_add_u32", "v2", "v3", "v4")
    S.valu("v_lshlrev_b32", "v3", 4, l)
    S.salu("s_mul_i32", "s46", "s43", R * 2048)
    S.valu("v_bfe_u32", "v6", l, 2, 2)
    S.valu("v_lshrrev_b32", "v7", 5, l)
    S.valu("v_lshlrev_b32", "v7", 2, "v7")
    S.valu("v_add_u32", "v7", "v7", "v6")
    S.valu("v_lshlrev_b32", "v7", 7, "v7")
    S.valu("v_add_u32", "v7", "s46", "v7")
    S.valu("v_bfe_u32", "v8", l, 4, 1)
    S.valu("v_lshlrev_b32", "v8", 5, "v8")
    S.valu("v_add_u32", "v7", "v7", "v8")
    S.valu("v_and_b32", "v8", 3, l)
    S.valu("v_lshlrev_b32", "v8", 3, "v8")
    S.valu("v_add_u32", "v7", "v7", "v8")
    S.valu("v_bfe_u32", "v6", l, 3, 1)
    S.valu("v_lshlrev_b32", "v6", 6, "v6")
    S.valu("v_add_u32", "v4", "v7", "v6")
    S.valu("v_xor_b32", "v6", 64, "v6")
    S.valu("v_add_u32", "v5", "v7", "v6")
    if cfg.get("k2_rot", True):
        S.salu("s_lshl_b32", "s60", "s42", 2)
        S.salu("s_and_b32", "s61", "s41", 3)
        S.salu("s_lshl_b32", "s61", "s61", 3)
        S.salu("s_add_u32", "s60", "s60", "s61")
    else:
        S.salu("s_mov_b32", "s60", 0)
    OB = 16
    NOB = D + 1
    AB = OB + 8 * NOB
    ACC = 128
    assert AB + 16 <= ACC
    ldflags = cfg.get("k2_ldflags", "")
    def issue(n):
        slot = n % R
        fw = cfg.get("k2_wfl0", " nt") if n < 8 else ldflags
        fo = cfg.get("k2_ofl0", "") if n < 4 else ldflags
        S.salu("s_add_u32", "s62", "s60", n)
        S.salu("s_and_b32", "s62", "s62", 31)
        S.salu("s_lshl_b32", "s63", "s62", 14)
        for e in range(2):
            S.salu("s_add_u32", "m0", "s46", slot * 2048 + e * 1024)
            S.salu("s_add_u32", "s47", "s63", e * 8192)
            S.buf_dma("v2", "s[48:51]", "s47", tok=f"w{n}", flags=fw)
        ob = OB + 8 * (n % NOB)
        S.salu("s_lshl_b32", "s63", "s62", 10)
        for ib in range(2):
            S.salu("s_add_u32", "s47", "s63", ib * 262144)
            S.buf_load("buffer_load_dwordx4", v(ob + 4 * ib, 4), "v3", "s[52:55]", "s47", tok=f"o{n}", flags=fo)
    def areads(n):
        slot = n % R
        ab = AB + 8 * (n % 2)
        S.wait_vm_tok(f"w{n}")
        for nt2 in range(2):
            for jj in range(2):
                S.ds_read("ds_read_b64_tr_b16", v(ab + 4 * nt2 + 2 * jj, 2), v(4 + nt2), slot * 2048 + jj * 1024)
    NS = 32
    ST = Stamper(S, cfg.get("stamps", False), 10)
    ST.stamp(); ST.stamp(real=True)
    for n in range(D): issue(n)
    areads(0)
    ST.stamp()
    for n in range(NS):
        ab = AB + 8 * (n % 2); ob = OB + 8 * (n % NOB)
        def mf(nt2, ib):
            S.mfma(v(ACC + 32 * nt2 + 16 * ib, 16), v(ab + 4 * nt2, 4), v(ob + 4 * ib, 4),
                   0 if n == 0 else v(ACC + 32 * nt2 + 16 * ib, 16))
        if n % 4 == 0: ST.stamp()
        mf(0, 0)
        if n + D < NS: issue(n + D)
        mf(0, 1)
        if n + 1 < NS: areads(n + 1)
        mf(1, 0)
        mf(1, 1)
    ST.stamp()
    S.barrier()
    ST.stamp()
    S.salu("s_mul_i32", "s46", "s43", 17408)
    S.valu("v_and_b32", "v6", 31, l)
    S.valu("v_mul_u32_u24", "v6", 272, "v6")
    S.valu("v_lshrrev_b32", "v7", 5, l)
    S.valu("v_lshlrev_b32", "v7", 4, "v7")
    S.valu("v_add_u32", "v6", "v6", "v7")
    S.valu("v_add_u32", "v6", "s46", "v6")
    for nt2 in range(2):
        for ib in range(2):
            for q in range(4):
                S.ds_write("ds_write_b128", "v6", v(ACC + 32 * nt2 + 16 * ib + 4 * q, 4), ib * 32 * 272 + (32 * nt2 + 8 * q) * 4)
    S.wait(lgkm=0)
    S.barrier()
    S.valu("v_lshrrev_b32", "v6", 3, "v0")
    S.valu("v_and_b32", "v7", 7, "v0")
    S.valu("v_mul_u32_u24", "v8", 272, "v6")
    S.valu("v_lshlrev_b32", "v9", 5, "v7")
    S.valu("v_add_u32", "v8", "v8", "v9")
    S.valu("v_add_u32", "v9", 69632, "v8")
    for w in range(8):
        base = "v8" if w < 4 else "v9"
        S.ds_read("ds_read_b128", v(16 + 8 * w, 4), base, (w % 4) * 17408)
        S.ds_read("ds_read_b128", v(16 + 8 * w + 4, 4), base, (w % 4) * 17408 + 16)
    for w in range(1, 8):
        for i in range(8):
            S.valu("v_add_f32", v(16 + i), v(16 + i), v(16 + 8 * w + i))
    for i in range(4):
        S.valu("v_cvt_pk_bf16_f32", v(12 + i), v(16 + 2 * i), v(16 + 2 * i + 1))
    S.valu("v_lshlrev_b32", "v6", 11, "v6")
    S.valu("v_lshlrev_b32", "v7", 4, "v7")
    S.valu("v_add_u32", "v6", "v6", "v7")
    S.buf_store("buffer_store_dwordx4", "v[12:15]", "v6", "s[56:59]")
    if cfg.get("stamps", False):
        S.wait(vm=0)
        ST.stamp(); ST.stamp(real=True)
    ST.flush(1, 11)
    S.endpgm()
    txt = render(S.finalize()) + "\nK2_DONE:\n    s_endpgm\n"
    lds = max(8 * R * 2048, 8 * 17408)
    return txt, lds

def gen_k2b(cfg):
    import k2b
    P = Stream("k2bpro")
    P.salu("s_cmp_ge_u32", "s2", 256)
    P.branch("s_cbranch_scc1", "K2B_DONE")
    if cfg.get("stamps", False):
        P.add(Inst("s_memtime s[98:99]", "smem", [], ["s98", "s99"]))
    P.smem("s[24:25]", "s[0:1]", 32)
    P.smem("s[26:27]", "s[0:1]", 72)
    P.smem("s[36:37]", "s[0:1]", 80)
    P.smem("s[68:69]", "s[0:1]", 88)
    P.smem("s[38:39]", "s[0:1]", 96)
    P.salu("s_and_b32", "s44", "s2", 7)
    P.salu("s_lshr_b32", "s12", "s2", 3)
    P.salu("s_lshr_b32", "s40", "s44", 2)
    P.salu("s_and_b32", "s44", "s44", 3)
    P.salu("s_lshl_b32", "s44", "s44", 2)
    P.salu("s_and_b32", "s41", "s12", 3)
    P.salu("s_add_u32", "s41", "s41", "s44")
    P.salu("s_lshr_b32", "s42", "s12", 2)
    P.valu("v_lshrrev_b32", "v1", 6, "v0")
    P.valu("v_readfirstlane_b32", "s43", "v1")
    P.valu("v_and_b32", "v1", 63, "v0")
    P.salu("s_cmp_eq_u32", "s40", 0)
    P.salu("s_cselect_b64", "s[24:25]", "s[24:25]", "s[26:27]")
    P.salu("s_mov_b32", "s70", 256)
    P.salu("s_mov_b32", "s71", "0x20000")
    k2b.p2_srds(P)
    P.salu("s_and_b32", "s79", "s41", 3)
    P.salu("s_lshl_b32", "s79", "s79", 1)
    P.salu("s_add_u32", "s79", "s79", "s42")
    P.salu("s_and_b32", "s79", "s79", 7)
    if not cfg.get("p2_rot", True): P.salu("s_mov_b32", "s79", 0)
    P.salu("s_or_b32", "s44", "s2", "s43")
    P.salu("s_cmp_lg_u32", "s44", 0)
    P.branch("s_cbranch_scc1", "K2B_NONONCE")
    P.add(Inst("s_memrealtime s[44:45]", "smem", [], ["s44", "s45"]))
    P.wait(lgkm=0)
    P.salu("s_or_b32", "s44", "s44", 1)
    P.valu("v_mov_b32", "v2", "s44")
    P.valu("v_mov_b32", "v3", "s45")
    P.valu("v_mov_b32", "v4", 0)
    P.buf_store("buffer_store_dwordx2", "v[2:3]", "v4", "s[68:71]", flags=" sc1")
    P.label("K2B_NONONCE")
    if cfg.get("clkprobe", False):
        P.add(Inst("s_memtime s[90:91]", "smem", [], ["s90", "s91"]))
        P.add(Inst("s_memrealtime s[92:93]", "smem", [], ["s92", "s93"]))
        P.wait(lgkm=0)
    P.salu("s_cmp_ge_u32", "s43", 4)
    P.branch("s_cbranch_scc1", "K2B_LOAD")
    parts = []
    X = Stream(); ST = Stamper(X, cfg.get("stamps", False), 15)
    k2b.p2_compute(X, cfg, ST)
    if cfg.get("clkprobe", False):
        X.wait(vm=0)
        X.add(Inst("s_memtime s[94:95]", "smem", [], ["s94", "s95"]))
        X.add(Inst("s_memrealtime s[96:97]", "smem", [], ["s96", "s97"]))
        X.wait(lgkm=0)
        X.salu("s_sub_u32", "s94", "s94", "s90")
        X.salu("s_sub_u32", "s96", "s96", "s92")
        X.salu("s_or_b32", "s44", "s2", "s43")
        X.salu("s_cmp_lg_u32", "s44", 0)
        X.branch("s_cbranch_scc1", "K2B_NOPROBE")
        X.valu("v_mov_b32", "v2", "s94")
        X.valu("v_mov_b32", "v3", "s96")
        X.valu("v_mov_b32", "v4", 8)
        X.buf_store("buffer_store_dwordx2", "v[2:3]", "v4", "s[68:71]")
        X.label("K2B_NOPROBE")
    ST.flush(1, 14); X.endpgm()
    A = Stream(); A.ins = list(P.ins) + X.ins
    parts.append(render(A.finalize()))
    X = Stream(); ST = Stamper(X, cfg.get("stamps", False), 30)
    k2b.p2_loader(X, cfg, ST)
    ST.flush(1, 31); X.endpgm()
    A = Stream(); A.ins = list(P.ins) + [Inst("K2B_LOAD:", "label")] + X.ins
    f = A.finalize()
    idx = [k for k, i in enumerate(f) if i.kind == "label" and i.text == "K2B_LOAD:"][0]
    parts.append(render(f[idx:]))
    return "\n".join(parts) + "\nK2B_DONE:\n    s_endpgm\n"

def kernel_wrap(label, body):
    return f""".globl {label}
.p2align 8
.type {label},@function
{label}:
{body}
"""
def desc(label, vgpr, sgpr):
    return f""".p2align 6
.amdhsa_kernel {label}
  .amdhsa_next_free_vgpr {vgpr}
  .amdhsa_next_free_sgpr {sgpr}
  .amdhsa_accum_offset {vgpr}
  .amdhsa_group_segment_fixed_size 0
  .amdhsa_kernarg_size 104
  .amdhsa_user_sgpr_count 2
  .amdhsa_user_sgpr_kernarg_segment_ptr 1
  .amdhsa_system_sgpr_workgroup_id_x 1
.end_amdhsa_kernel
"""

def generate(cfg):
    Stamper.allreal = bool(cfg.get("allreal"))
    if cfg.get("launches") == ["fused"]: cfg["fused"] = True
    k1 = gen_k1(cfg)
    k2, lds2 = gen_k2(cfg)
    hdr = []
    order = cfg.get("launches", ["k1", "k2b"])
    for k in order:
        if k == "k1": hdr.append(f"; @launch kernel=attn_k1_kernel grid=(256,1,1) block=(512,1,1) lds=163840")
        if k == "k2": hdr.append(f"; @launch kernel=attn_k2_kernel grid=(256,1,1) block=(512,1,1) lds={lds2}")
        if k == "fused": hdr.append(f"; @launch kernel=attn_k1_kernel grid=(256,1,1) block=(512,1,1) lds=163840")
        if k == "nop": hdr.append(f"; @launch kernel=attn_nop_kernel grid=(256,1,1) block=(64,1,1) lds=0")
        if k == "k2b": hdr.append(f"; @launch kernel=attn_k2b_kernel grid=(256,1,1) block=(512,1,1) lds=131072")
    txt = "\n".join(hdr) + "\n"
    txt += '.amdgcn_target "amdgcn-amd-amdhsa--gfx950"\n.text\n'
    ks = []
    if "k1" in order or "fused" in order: ks.append(("attn_k1_kernel", k1, 256))
    if "k2" in order: ks.append(("attn_k2_kernel", k2, 192))
    if "k2b" in order: ks.append(("attn_k2b_kernel", gen_k2b(cfg), 256))
    if "nop" in order: ks.append(("attn_nop_kernel", "    s_endpgm\n", 8))
    for (n, b, vg) in ks: txt += kernel_wrap(n, b)
    txt += '.section .rodata,"a"\n'
    for (n, b, vg) in ks: txt += desc(n, vg, 102)
    return txt

if __name__ == "__main__":
    import json
    cfg = {}
    out = f"cdna_kernels/{NAME}.s"
    for a in sys.argv[1:]:
        if a.startswith("-o"): out = a[2:]
        else:
            k, val = a.split("=", 1)
            try: val = json.loads(val)
            except Exception: pass
            cfg[k] = val
    open(out, "w").write(generate(cfg))
    print("wrote", out)
```

```python
import re

def _expand(r):
    m = re.fullmatch(r"([vsa])\[(\d+):(\d+)\]", r)
    if m:
        return [f"{m.group(1)}{i}" for i in range(int(m.group(2)), int(m.group(3)) + 1)]
    return [r]

def regs(*rs):
    out = []
    for r in rs:
        if r is None: continue
        if isinstance(r, (list, tuple, set)):
            out += regs(*r)
        elif isinstance(r, str):
            if re.fullmatch(r"[vsa]\d+|[vsa]\[\d+:\d+\]|vcc|m0|exec|scc", r):
                if r == "vcc": out += ["vcc"]
                else: out += _expand(r)
    return out

def v(a, n=1):
    return f"v{a}" if n == 1 else f"v[{a}:{a+n-1}]"
def s(a, n=1):
    return f"s{a}" if n == 1 else f"s[{a}:{a+n-1}]"

TRANS = ("v_exp_f32", "v_log_f32", "v_rcp_f32", "v_rsq_f32", "v_sqrt_f32", "v_sin_f32", "v_cos_f32")

class Inst:
    __slots__ = ("text", "kind", "rd", "wr", "tok", "passes", "srcc", "note", "ab")
    def __init__(self, text, kind, rd=(), wr=(), tok=None, passes=0, srcc=(), ab=()):
        self.text = text; self.kind = kind
        self.rd = set(rd); self.wr = set(wr); self.tok = tok
        self.passes = passes; self.srcc = set(srcc); self.ab = set(ab)

class Stream:
    def __init__(self, name=""):
        self.name = name
        self.ins = []
    def add(self, i):
        self.ins.append(i); return i
    def raw(self, text):
        return self.add(Inst(text, "raw"))
    sfx = ""
    def _l(self, l):
        return l + Stream.sfx if l.startswith("FL_") else l
    def label(self, l):
        return self.add(Inst(self._l(l) + ":", "label"))
    def comment(self, c):
        return self.add(Inst("; " + c, "comment"))
    def salu(self, op, dst, *srcs, extra=""):
        wr = regs(dst)
        rd = regs(*srcs)
        txt = f"{op} " + ", ".join([str(dst)] + [str(x) for x in srcs]) + extra
        if op.startswith("s_cmp"):
            rd = regs(dst, *srcs); wr = ["scc"]
        return self.add(Inst(txt, "salu", rd, wr))
    def smem(self, dst, base, off):
        n = len(regs(dst))
        op = {1: "s_load_dword", 2: "s_load_dwordx2", 4: "s_load_dwordx4", 8: "s_load_dwordx8", 16: "s_load_dwordx16"}[n]
        return self.add(Inst(f"{op} {dst}, {base}, {off}", "smem", regs(base), regs(dst)))
    def valu(self, op, dst, *srcs, extra=""):
        wr = regs(dst)
        rd = regs(*[str(x).lstrip("-").replace("abs(", "").rstrip(")") for x in srcs])
        kind = "valu"
        base = op.replace("_e32", "").replace("_e64", "")
        if base in TRANS: kind = "trans"
        if base.startswith("v_fmac") or base.startswith("v_pk_fmac"): rd += wr
        if base.startswith("v_cndmask") and len(srcs) == 2: rd += ["vcc"]
        if base.startswith("v_readfirstlane") or base.startswith("v_readlane"): kind = "readlane"
        if base.startswith("v_permlane"):
            kind = "permlane"; rd += wr; wr += regs(*srcs)
        if base.startswith("v_cmp") and dst == "vcc": wr = ["vcc"]
        txt = f"{op} " + ", ".join([str(dst)] + [str(x) for x in srcs]) + extra
        return self.add(Inst(txt, kind, rd, wr))
    def mfma(self, d, a, b, c, shape="32x32x16"):
        passes = 8 if shape == "32x32x16" else 4
        txt = f"v_mfma_f32_{shape}_bf16 {d}, {a}, {b}, {c}"
        rc = regs(c) if isinstance(c, str) else []
        return self.add(Inst(txt, "mfma", regs(a, b) + rc, regs(d), passes=passes, srcc=rc, ab=regs(a, b)))
    def ds_read(self, op, dst, addr, offset=0, tok=None):
        assert 0 <= offset < 65536, offset
        o = f" offset:{offset}" if offset else ""
        return self.add(Inst(f"{op} {dst}, {addr}{o}", "ds_read", regs(addr), regs(dst), tok=tok))
    def ds_write(self, op, addr, data, offset=0, tok=None):
        assert 0 <= offset < 65536, offset
        o = f" offset:{offset}" if offset else ""
        return self.add(Inst(f"{op} {addr}, {data}{o}", "ds_write", regs(addr, data), [], tok=tok))
    def buf_load(self, op, dst, voff, srd, soff="0", offset=0, flags="", tok=None):
        assert 0 <= offset < 4096
        o = f" offset:{offset}" if offset else ""
        return self.add(Inst(f"{op} {dst}, {voff}, {srd}, {soff} offen{o}{flags}", "vm_load",
                             regs(voff, srd, soff), regs(dst), tok=tok))
    def buf_dma(self, voff, srd, soff="0", offset=0, flags="", tok=None, op="buffer_load_dwordx4"):
        assert 0 <= offset < 4096
        o = f" offset:{offset}" if offset else ""
        return self.add(Inst(f"{op} {voff}, {srd}, {soff} offen{o}{flags} lds", "dma",
                             regs(voff, srd, soff) + ["m0"], [], tok=tok))
    def buf_store(self, op, data, voff, srd, soff="0", offset=0, flags="", tok=None):
        assert 0 <= offset < 4096
        o = f" offset:{offset}" if offset else ""
        return self.add(Inst(f"{op} {data}, {voff}, {srd}, {soff} offen{o}{flags}", "vm_store",
                             regs(data, voff, srd, soff), [], tok=tok, ab=regs(data)))
    def glob_load(self, dst, voff, sbase):
        return self.add(Inst(f"global_load_dword {dst}, {voff}, {sbase}", "vm_load", regs(voff, sbase), regs(dst)))
    def barrier(self):
        return self.add(Inst("s_barrier", "barrier"))
    def nop(self, n):
        return self.add(Inst(f"s_nop {n}", "nop", passes=n + 1))
    def wait_vm_tok(self, tok):
        return self.add(Inst("", "wait_vm_tok", tok=tok))
    def wait_lgkm_tok(self, tok):
        return self.add(Inst("", "wait_lgkm_tok", tok=tok))
    def wait(self, vm=None, lgkm=None):
        t = []
        if vm is not None: t.append(f"vmcnt({vm})")
        if lgkm is not None: t.append(f"lgkmcnt({lgkm})")
        i = Inst("s_waitcnt " + " ".join(t), "wait"); i.ab = (vm, lgkm)
        return self.add(i)
    def branch(self, op, target):
        return self.add(Inst(f"{op} {self._l(target)}", "branch", ["scc"] if "scc" in op else []))
    def endpgm(self):
        return self.add(Inst("s_endpgm", "end"))
    def setprio(self, p):
        return self.add(Inst(f"s_setprio {p}", "salu"))

    def finalize(self, auto_wait=True):
        out = self._insert_waits(self.ins) if auto_wait else list(self.ins)
        out = self._insert_nops(out)
        return out

    def _insert_waits(self, ins):
        out = []
        lg = []
        vm = []
        def do_wait(nv, nl):
            nonlocal lg, vm
            t = []
            if nv is not None:
                nv = min(nv, 63)
                if nv < len(vm): t.append(f"vmcnt({nv})"); vm = vm[len(vm) - nv:] if nv > 0 else []
            if nl is not None:
                nl = min(nl, 15)
                if nl < len(lg): t.append(f"lgkmcnt({nl})"); lg = lg[len(lg) - nl:] if nl > 0 else []
            if t:
                out.append(Inst("s_waitcnt " + " ".join(t), "wait"))
        for i in ins:
            if i.kind == "wait_vm_tok":
                idx = [k for k, (w, tok) in enumerate(vm) if tok == i.tok]
                if idx: do_wait(len(vm) - 1 - idx[-1], None)
                continue
            if i.kind == "wait_lgkm_tok":
                idx = [k for k, (w, tok) in enumerate(lg) if tok == i.tok]
                if idx: do_wait(None, len(lg) - 1 - idx[-1])
                continue
            if i.kind == "wait":
                nv, nl = i.ab
                if nv is not None: vm = vm[len(vm) - nv:] if 0 < nv < len(vm) else ([] if nv == 0 else vm)
                if nl is not None: lg = lg[len(lg) - nl:] if 0 < nl < len(lg) else ([] if nl == 0 else lg)
                out.append(i); continue
            if i.kind in ("label", "branch"):
                out.append(i); continue
            touched = i.rd | i.wr
            nl = nv = None
            for k, (w, tok) in enumerate(lg):
                if w & touched: nl = len(lg) - 1 - k
            for k, (w, tok) in enumerate(vm):
                if w & touched: nv = len(vm) - 1 - k
            if any(tok == "SMEM" for (w, tok) in lg) and nl is not None:
                nl = 0
            if nl is not None or nv is not None:
                do_wait(nv, nl)
            out.append(i)
            if i.kind in ("ds_read", "ds_write"):
                lg.append((set(i.wr), i.tok))
            elif i.kind == "smem":
                lg.append((set(i.wr), "SMEM"))
            elif i.kind in ("vm_load", "vm_store", "dma"):
                vm.append((set(i.wr), i.tok))
        return out

    def _insert_nops(self, ins):
        out = []
        def states(i):
            if i.kind in ("comment", "label"): return 0
            if i.kind == "nop": return i.passes
            return 1
        VALUISH = ("valu", "trans", "readlane", "permlane")
        for i in ins:
            if i.kind in ("comment", "label", "raw", "nop", "wait", "barrier", "branch", "end"):
                out.append(i); continue
            need = 0
            d = 0
            for p in reversed(out):
                if d > 24: break
                req = 0
                if p.kind == "mfma":
                    P = p.passes
                    big = {4: 8, 8: 12}[P]; mid = {4: 6, 8: 10}[P]; war = {4: 3, 8: 7}[P]
                    if i.kind == "mfma":
                        if p.wr & i.ab: req = max(req, big)
                        if p.wr & i.srcc:
                            if not (p.wr == i.srcc and p.passes == i.passes): req = max(req, mid)
                        if (p.wr & i.wr) and not (p.wr & i.srcc): req = max(req, mid)
                    else:
                        if p.wr & (i.rd | i.wr): req = max(req, big)
                        if i.kind in VALUISH and (p.srcc & i.wr): req = max(req, war)
                        if i.kind in ("ds_read", "vm_load") and (p.srcc & i.wr): req = max(req, war)
                elif p.kind in VALUISH:
                    vw = {r for r in p.wr if r[0] == "v" and r != "vcc"}
                    sw = {r for r in p.wr if r[0] == "s" or r == "vcc"}
                    if i.kind == "mfma" and (vw & i.rd): req = max(req, 2)
                    if i.kind == "permlane" and (vw & i.rd): req = max(req, 2)
                    if i.kind == "readlane" and (vw & i.rd): req = max(req, 1)
                    if p.kind == "trans" and i.kind in VALUISH and i.kind != "trans" and (vw & i.rd): req = max(req, 1)
                    if p.kind == "trans" and i.kind == "trans" and (vw & i.rd): req = max(req, 1)
                    if i.kind in ("vm_load", "vm_store", "dma") and (sw & i.rd): req = max(req, 5)
                    if i.kind in VALUISH and (sw & i.rd): req = max(req, 2)
                    if i.kind in ("salu", "smem") and (sw & i.rd): req = max(req, 4)
                    if "dpp" in i.text and (vw & i.rd): req = max(req, 2)
                elif p.kind == "salu":
                    if "m0" in p.wr and i.kind == "dma": req = max(req, 1)
                elif p.kind == "vm_store":
                    if len(p.ab) >= 3 and (p.ab & i.wr): req = max(req, 2)
                need = max(need, req - d)
                d += states(p)
            while need > 0:
                n = min(need, 16)
                out.append(Inst(f"s_nop {n-1}", "nop", passes=n)); need -= n
            out.append(i)
        return out

def audit(insts, name=""):
    open_t = {}
    warns = []
    for idx, i in enumerate(insts):
        if i.kind == "label":
            open_t.pop(i.text[:-1], None)
        elif i.kind == "branch" and ("cbranch" in i.text):
            tgt = i.text.split()[-1]
            if any(j.kind == "label" and j.text[:-1] == tgt for j in insts[idx + 1:]):
                open_t[tgt] = idx
        elif open_t and i.kind in ("wait", "ds_read", "ds_write", "vm_load", "vm_store", "dma", "smem"):
            warns.append((sorted(open_t), i.text))
    return warns

def render(insts):
    lines = []
    for i in insts:
        if i.kind in ("label",): lines.append(i.text)
        else: lines.append("    " + i.text)
    return "\n".join(lines)
```

```python
from asmlib import *

NS2 = 4
O2 = [0, 16384, 32768, 49152]
W2 = [114688, 147456, 65536, 81920]
PB_OFF = 32 << 20
FL_OFF = 56 << 20

def interleave(S, mf, fill, per_gap, lead=0):
    fi = 0
    for _ in range(min(lead, len(fill))):
        fill[fi](); fi += 1
    for k, m in enumerate(mf):
        m()
        n = per_gap[k] if isinstance(per_gap, (list, tuple)) else per_gap
        for _ in range(n):
            if fi < len(fill):
                fill[fi](); fi += 1
    while fi < len(fill):
        fill[fi](); fi += 1

def add64(S, dlo, plo, phi, off):
    S.salu("s_add_u32", s(dlo), s(plo), off)
    S.salu("s_addc_u32", s(dlo + 1), s(phi), 0)

def srd(S, r, plo, phi, off, total):
    add64(S, r, plo, phi, off)
    if isinstance(off, int): S.salu("s_mov_b32", s(r + 2), total - off)
    else: S.salu("s_sub_u32", s(r + 2), total, off)
    S.salu("s_mov_b32", s(r + 3), "0x20000")

def p2_srds(S):
    S.salu("s_lshr_b32", "s80", "s41", 2)
    S.salu("s_and_b32", "s81", "s41", 3)
    S.salu("s_lshl_b32", "s44", "s80", 20)
    S.salu("s_lshl_b32", "s45", "s81", 8)
    S.salu("s_add_u32", "s44", "s44", "s45")
    srd(S, 48, 24, 25, "s44", 4096 * 1024)
    S.salu("s_lshl_b32", "s44", "s40", 23)
    S.salu("s_lshl_b32", "s45", "s42", 20)
    S.salu("s_add_u32", "s44", "s44", "s45")
    S.salu("s_lshl_b32", "s45", "s80", 16)
    S.salu("s_add_u32", "s44", "s44", "s45")
    srd(S, 52, 38, 39, "s44", 16 << 20)
    S.salu("s_lshl_b32", "s82", "s40", 3)
    S.salu("s_add_u32", "s82", "s82", "s42")
    S.salu("s_lshl_b32", "s82", "s82", 2)
    S.salu("s_add_u32", "s82", "s82", "s81")
    S.salu("s_lshl_b32", "s44", "s82", 18)
    S.salu("s_add_u32", "s44", "s44", PB_OFF)
    srd(S, 56, 38, 39, "s44", PB_OFF + (16 << 20))
    S.salu("s_lshl_b32", "s44", "s82", 7)
    S.salu("s_add_u32", "s44", "s44", FL_OFF)
    srd(S, 60, 38, 39, "s44", FL_OFF + (128 << 10))
    S.salu("s_lshl_b32", "s44", "s42", 18)
    S.salu("s_lshl_b32", "s45", "s40", 10)
    S.salu("s_add_u32", "s44", "s44", "s45")
    S.salu("s_lshl_b32", "s45", "s81", 8)
    S.salu("s_add_u32", "s44", "s44", "s45")
    srd(S, 64, 36, 37, "s44", 1024 * 2048)

def p2_loader_setup(S, cfg, rot_sgpr, fusedorder=False):
    L = "v1"; t0, t1, t2 = "v2", "v3", "v4"
    S.salu("s_sub_u32", "s44", "s43", 4)
    S.valu("v_lshrrev_b32", t2, 4, L)
    S.valu("v_and_b32", t1, 15, L)
    S.valu("v_lshlrev_b32", t0, 2, t2)
    S.valu("v_xor_b32", t1, t1, t0)
    S.valu("v_lshlrev_b32", t1, 4, t1)
    S.valu("v_lshlrev_b32", t0, 10, t2)
    S.valu("v_add_u32", "v10", t0, t1)
    S.salu("s_lshl_b32", "s45", "s44", 14)
    S.valu("v_add_u32", "v10", "s45", "v10")
    S.valu("v_lshlrev_b32", "v11", 4, L)
    S.salu("s_lshl_b32", "s45", "s44", 18)
    S.valu("v_add_u32", "v11", "s45", "v11")
    S.salu("s_lshl_b32", "s47", "s44", 12)
    fw0 = cfg.get("p2_wfl0", ""); fw = cfg.get("p2_wfl", "")
    fo0 = cfg.get("p2_ofl0", ""); fo = cfg.get("p2_ofl", "")
    def issue(st, part="wo"):
        j, half = st // 2, st % 2
        if fusedorder:
            add = [0, 1, 2, 4, 6, 3, 5, 7][j]
        else:
            add = j
        S.salu("s_add_u32", "s13", rot_sgpr, add)
        S.salu("s_and_b32", "s13", "s13", 7)
        slot = st % NS2
        if "w" in part:
            S.salu("s_lshl_b32", "s14", "s13", 17)
            for ii in range(4):
                S.salu("s_add_u32", "m0", "s47", W2[slot] + ii * 1024)
                S.salu("s_add_u32", "s46", "s14", half * 65536 + ii * 4096)
                S.buf_dma("v10", "s[48:51]", "s46", tok=f"s{st}", flags=fw0 if st < 2 else fw)
        if "o" in part:
            S.salu("s_lshl_b32", "s14", "s13", 13)
            for ii in range(4):
                S.salu("s_add_u32", "m0", "s47", O2[slot] + ii * 1024)
                S.salu("s_add_u32", "s46", "s14", half * 4096 + ii * 1024)
                S.buf_dma("v11", "s[52:55]", "s46", tok=f"s{st}", flags=fo0 if st < 4 else fo)
    return issue

def p2_loader(S, cfg, ST, rot_sgpr="s79"):
    issue = p2_loader_setup(S, cfg, rot_sgpr)
    issue(0); issue(1)
    S.wait_vm_tok("s0")
    ST.stamp()
    S.barrier()
    issue(2); issue(3)
    for st in range(16):
        if st + 1 < 16: S.wait_vm_tok(f"s{st+1}")
        ST.stamp()
        S.barrier()
        if st + NS2 < 16: issue(st + NS2)

FLO_OFF = FL_OFF + (1 << 20)

def spin_nonce(S, dbg, lab, vr=8, vz="v10"):
    S.salu("s_mov_b32", "s83", 0)
    S.label(lab)
    S.valu("v_readfirstlane_b32", "s84", v(vr))
    S.valu("v_readfirstlane_b32", "s85", v(vr + 1))
    S.nop(3)
    S.salu("s_or_b32", "s86", "s84", "s85")
    S.salu("s_cmp_lg_u32", "s86", 0)
    S.branch("s_cbranch_scc1", lab + "_OK")
    S.salu("s_add_u32", "s83", "s83", 1)
    S.salu("s_cmp_gt_u32", "s83", 200000)
    S.branch("s_cbranch_scc1", lab + "_OK")
    S.raw("s_sleep 4")
    S.buf_load("buffer_load_dwordx2", v(vr, 2), vz, dbg, flags=" sc1")
    S.wait(vm=0)
    S.branch("s_branch", lab)
    S.label(lab + "_OK")

def flag_store(S, srd_, off_sgpr, vz, vn, L="v1", fl=" sc1"):
    S.valu("v_cmp_eq_u32", "vcc", 0, L)
    S.salu("s_mov_b64", "s[86:87]", "exec")
    S.add(Inst("s_and_b64 exec, exec, vcc", "salu", ["vcc"], ["exec"]))
    S.buf_store("buffer_store_dwordx2", vn, vz, srd_, off_sgpr, flags=fl)
    S.add(Inst("s_mov_b64 exec, s[86:87]", "salu", [], ["exec"]))

def poll(S, lab, srd_, voff, soff, vtmp, vn, sleep=1, raw=False):
    S.salu("s_mov_b32", "s83", 0)
    S.label(lab)
    if raw:
        S.raw("s_nop 4")
        S.raw(f"buffer_load_dwordx2 {vtmp}, {voff}, {srd_}, {soff} offen sc1")
        S.raw("s_waitcnt vmcnt(0)")
    else:
        S.buf_load("buffer_load_dwordx2", vtmp, voff, srd_, soff, flags=" sc1")
        S.wait(vm=0)
    S.valu("v_cmp_eq_u64", "vcc", vtmp, vn)
    S.nop(4)
    S.add(Inst("s_cmp_eq_u64 vcc, exec", "salu", ["vcc"], ["scc"]))
    S.branch("s_cbranch_scc1", lab + "_OK")
    S.salu("s_add_u32", "s83", "s83", 1)
    S.salu("s_cmp_gt_u32", "s83", 200000)
    S.branch("s_cbranch_scc1", lab + "_OK")
    S.raw(f"s_sleep {sleep}")
    S.branch("s_branch", lab)
    S.label(lab + "_OK")

def raw_flag(S, off_sgpr):
    S.raw("v_cmp_eq_u32 vcc, 0, v1")
    S.raw("s_mov_b64 s[86:87], exec")
    S.raw("s_nop 3")
    S.raw("s_and_b64 exec, exec, vcc")
    S.raw(f"buffer_store_dwordx2 v[16:17], v12, s[8:11], {off_sgpr} offen sc1")
    S.raw("s_mov_b64 exec, s[86:87]")

def loader_attn_setup(S, cfg):
    import math, struct
    l = "v1"
    VS = cfg["_vslot"]
    S.salu("s_sub_u32", "s44", "s43", 4)
    S.salu("s_mov_b32", "s45", VS[0])
    for c in range(1, 4):
        S.salu("s_cmp_eq_u32", "s44", c)
        S.salu("s_cselect_b32", "s45", VS[c], "s45")
    S.valu("v_bfe_u32", "v189", l, 2, 2)
    S.valu("v_lshrrev_b32", "v190", 5, l)
    S.valu("v_lshlrev_b32", "v190", 2, "v190")
    S.valu("v_add_u32", "v190", "v190", "v189")
    S.valu("v_lshlrev_b32", "v190", 8, "v190")
    S.valu("v_add_u32", "v190", "s45", "v190")
    S.valu("v_bfe_u32", "v191", l, 4, 1)
    S.valu("v_lshlrev_b32", "v191", 5, "v191")
    S.valu("v_add_u32", "v190", "v190", "v191")
    S.valu("v_and_b32", "v191", 3, l)
    S.valu("v_lshlrev_b32", "v191", 3, "v191")
    S.valu("v_add_u32", "v190", "v190", "v191")
    S.valu("v_lshlrev_b32", "v189", 6, "v189")
    for tp in range(4):
        S.valu("v_xor_b32", v(184 + tp), tp << 6, "v189")
        S.valu("v_add_u32", v(184 + tp), v(184 + tp), "v190")
    S.valu("v_lshlrev_b32", "v188", 4, l)
    S.salu("s_lshr_b32", "s45", "s44", 1)
    S.salu("s_lshl_b32", "s45", "s45", 15)
    S.salu("s_and_b32", "s46", "s44", 1)
    S.salu("s_lshl_b32", "s46", "s46", 13)
    S.salu("s_add_u32", "s45", "s45", "s46")
    S.valu("v_add_u32", "v188", "s45", "v188")
    c = (128 ** -0.5) * math.log2(math.e)
    S.salu("s_mov_b32", "s76", hex(struct.unpack("<I", struct.pack("<f", c))[0]))

def loader_attn_vreads(S, cfg):
    VF = 144
    for u in range(2):
        for tp in range(4):
            for jj in range(2):
                S.ds_read("ds_read_b64_tr_b16", v(VF + 4 * (2 * tp + u) + 2 * jj, 2), v(184 + tp), 8192 + u * 4096 + jj * 2048)

def loader_attn(S, cfg):
    SA, VF, PB, OA, OP = 128, 144, 176, 192, 96
    a = lambda *x, **k: S.valu(*x, **k)
    S.barrier()
    for i in range(4):
        S.ds_read("ds_read_b128", v(SA + 4 * i, 4), "v188", 4096 + i * 1024)
    acc = SA
    m, m2, t, t2 = "v180", "v181", "v182", "v183"
    m, m2, t, t2 = "v189", "v190", "v191", "v9"
    a("v_max3_f32", m, v(acc), v(acc + 1), v(acc + 2))
    a("v_max3_f32", m2, v(acc + 3), v(acc + 4), v(acc + 5))
    a("v_max3_f32", t, v(acc + 6), v(acc + 7), v(acc + 8))
    a("v_max3_f32", t2, v(acc + 9), v(acc + 10), v(acc + 11))
    a("v_max3_f32", m, m, v(acc + 12), v(acc + 13))
    a("v_max3_f32", m2, m2, v(acc + 14), v(acc + 15))
    a("v_max3_f32", m, m, t, t2)
    a("v_max_f32", m, m, m2)
    a("v_mov_b32", m2, m)
    a("v_permlane32_swap_b32", m2, m)
    a("v_max_f32", m, m, m2)
    a("v_mul_f32", m, "s76", m)
    for r in range(16): a("v_fma_f32", v(acc + r), v(acc + r), "s76", "-" + m)
    for r in range(16): a("v_exp_f32", v(acc + r), v(acc + r))
    a("v_add_f32", t, v(acc), v(acc + 1))
    a("v_add_f32", t2, v(acc + 2), v(acc + 3))
    a("v_add_f32", m, v(acc + 4), v(acc + 5))
    a("v_add_f32", m2, v(acc + 6), v(acc + 7))
    for r in range(8, 16, 4):
        a("v_add_f32", t, t, v(acc + r))
        a("v_add_f32", t2, t2, v(acc + r + 1))
        a("v_add_f32", m, m, v(acc + r + 2))
        a("v_add_f32", m2, m2, v(acc + r + 3))
    a("v_add_f32", t, t, t2)
    a("v_add_f32", m, m, m2)
    a("v_add_f32", t, t, m)
    a("v_mov_b32", t2, t)
    a("v_permlane32_swap_b32", t2, t)
    a("v_add_f32", t, t, t2)
    a("v_rcp_f32", t, t)
    for r in range(8):
        a("v_mul_f32", v(acc + 2 * r), v(acc + 2 * r), t)
        a("v_mul_f32", v(acc + 2 * r + 1), v(acc + 2 * r + 1), t)
        a("v_cvt_pk_bf16_f32", v(PB + r), v(acc + 2 * r), v(acc + 2 * r + 1))
    def pv(tp, u): return lambda: S.mfma(v(OA + 16 * tp, 16), v(VF + 4 * (2 * tp + u), 4), v(PB + 4 * u, 4), 0 if u == 0 else v(OA + 16 * tp, 16))
    for f in (pv(0, 0), pv(1, 0), pv(0, 1), pv(1, 1), pv(2, 0), pv(3, 0), pv(2, 1), pv(3, 1)): f()
    for tp in range(4):
        for r2 in range(2):
            f = 2 * tp + r2
            for i in range(4):
                a("v_cvt_pk_bf16_f32", v(OP + 4 * f + i), v(OA + 16 * tp + 8 * r2 + 2 * i), v(OA + 16 * tp + 8 * r2 + 2 * i + 1))
            S.ds_write("ds_write_b128", "v188", v(OP + 4 * f, 4), (f // 4) * 16384 + 4096 + (f % 4) * 1024)
    S.wait(lgkm=0)

def p2_loader_fused(S, cfg, ST):
    L = "v1"
    early = cfg.get("early_bs", False)
    if early:
        if cfg.get("attn3", False): loader_attn_setup(S, cfg)
        S.wait(lgkm=0)
        S.barrier()
        if cfg.get("attn3", False): loader_attn_vreads(S, cfg)
    S.salu("s_lshl_b32", "s44", "s40", 2)
    S.salu("s_add_u32", "s44", "s44", "s80")
    S.salu("s_lshl_b32", "s44", "s44", 3)
    S.salu("s_add_u32", "s44", "s44", "s42")
    S.salu("s_lshl_b32", "s44", "s44", 8)
    S.salu("s_add_u32", "s44", "s44", FLO_OFF)
    srd(S, 8, 38, 39, "s44", FLO_OFF + (256 << 10))
    S.salu("s_lshl_b32", "s79", "s81", 1)
    issue = p2_loader_setup(S, cfg, "s79", True)
    issue(0, "w"); issue(1, "w")
    S.valu("v_mov_b32", "v12", 0)
    S.buf_load("buffer_load_dwordx2", "v[14:15]", "v12", "s[4:7]", flags=" sc1", tok="nonce")
    S.valu("v_and_b32", "v18", 15, L)
    S.valu("v_lshlrev_b32", "v18", 3, "v18")
    S.valu("v_lshlrev_b32", "v19", 4, L)
    S.salu("s_sub_u32", "s44", "s43", 4)
    S.salu("s_lshl_b32", "s45", "s44", 12)
    S.valu("v_add_u32", "v20", "s45", "v19")
    S.salu("s_lshl_b32", "s15", "s81", 14)
    S.salu("s_lshl_b32", "s45", "s44", 18)
    S.salu("s_add_u32", "s15", "s15", "s45")
    S.salu("s_lshl_b32", "s88", "s81", 2)
    S.salu("s_add_u32", "s88", "s88", "s44")
    S.salu("s_lshl_b32", "s88", "s88", 3)
    S.salu("s_add_u32", "s89", "s88", 128)
    S.salu("s_mov_b32", "s90", 128)
    S.valu("v_mov_b32", "v21", 131072)
    def wg_poll(lab, soff, val, backup=False, foff="s88", final=True):
        S.salu("s_cmp_lg_u32", "s43", 4)
        S.branch("s_cbranch_scc1", lab + "_W")
        S.salu("s_mov_b32", "s83", 0)
        S.label(lab)
        S.raw("s_nop 4")
        S.raw(f"buffer_load_dwordx2 v[14:15], v18, s[8:11], {soff} offen sc1")
        S.raw("s_waitcnt vmcnt(0)")
        S.valu("v_cmp_eq_u64", "vcc", "v[14:15]", "v[16:17]")
        S.nop(4)
        S.add(Inst("s_cmp_eq_u64 vcc, exec", "salu", ["vcc"], ["scc"]))
        S.branch("s_cbranch_scc1", lab + "_OK")
        S.salu("s_add_u32", "s83", "s83", 1)
        if backup:
            S.salu("s_cmp_lg_u32", "s83", cfg.get("backup_after", 8))
            S.branch("s_cbranch_scc1", lab + "_NB")
            raw_flag(S, foff)
            S.label(lab + "_NB")
        S.salu("s_cmp_gt_u32", "s83", 200000)
        S.branch("s_cbranch_scc1", lab + "_OK")
        S.raw(f"s_sleep {cfg.get('o_sleep', 4)}")
        S.branch("s_branch", lab)
        S.label(lab + "_OK")
        S.valu("v_mov_b32", "v22", val)
        S.ds_write("ds_write_b32", "v21", "v22")
        S.wait(lgkm=0)
        S.branch("s_branch", lab + "_D")
        S.label(lab + "_W")
        S.salu("s_mov_b32", "s83", 0)
        S.label(lab + "_L")
        S.ds_read("ds_read_b32", "v22", "v21")
        S.wait(lgkm=0)
        S.valu("v_readfirstlane_b32", "s86", "v22")
        S.nop(3)
        S.salu("s_cmp_ge_u32", "s86", val)
        S.branch("s_cbranch_scc1", lab + "_D")
        S.salu("s_add_u32", "s83", "s83", 1)
        if backup:
            S.salu("s_cmp_lg_u32", "s83", cfg.get("backup_after_l", 40))
            S.branch("s_cbranch_scc1", lab + "_NB2")
            raw_flag(S, foff)
            S.label(lab + "_NB2")
        S.salu("s_cmp_gt_u32", "s83", 4000000)
        S.branch("s_cbranch_scc1", lab + "_D")
        S.raw("s_sleep 1")
        S.branch("s_branch", lab + "_L")
        S.label(lab + "_D")
        if backup and final:
            raw_flag(S, foff)
    ST.stamp()
    if not early:
        S.wait(lgkm=0)
        if cfg.get("attn3", False):
            loader_attn_setup(S, cfg)
        S.barrier()
        if cfg.get("attn3", False): loader_attn_vreads(S, cfg)
    if cfg.get("attn3", False):
        loader_attn(S, cfg)
    S.wait(vm=0)
    spin_nonce(S, "s[4:7]", "FL_NONCE", 14, "v12")
    S.valu("v_mov_b32", "v16", "s84")
    S.valu("v_mov_b32", "v17", "s85")
    S.barrier()
    ST.stamp(real=cfg.get("realst", False))
    S.valu("v_mov_b32", "v22", 0)
    S.ds_write("ds_write_b32", "v21", "v22")
    S.ds_write("ds_write_b64", "v21", "v[16:17]", 8)
    if not (cfg.get("stfirst", False) or cfg.get("split2", False)):
        issue(2, "w"); issue(3, "w")
    stf = cfg.get("stflags", " sc1")
    for hh in range(2):
        for f in range(8):
            S.ds_read("ds_read_b128", v(32 + 32 * hh + 4 * f, 4), "v20", (2 * hh + f // 4) * 16384 + (f % 4) * 1024)
    def stores(hh, fs):
        for f in fs:
            S.salu("s_add_u32", "s46", "s15", hh * 8192 + (f // 4) * 4096)
            S.buf_store("buffer_store_dwordx4", v(32 + 32 * hh + 4 * f, 4), "v19", "s[52:55]", "s46", (f % 4) * 1024, flags=stf, tok=f"ost{hh}")
    if cfg.get("split2", False):
        fast = cfg.get("fastflag", False)
        stores(0, range(8))
        issue(2, "w"); issue(3, "w")
        for st in range(16):
            if st == 3:
                S.wait_vm_tok("ost0")
                ST.stamp(real=cfg.get("realst", False))
                flag_store(S, "s[8:11]", "s88", "v12", "v[16:17]", fl="" if fast else " sc1")
                stores(1, range(8))
                wg_poll("FL_POLL0", "0", 1, backup=fast, foff="s88", final=False)
                ST.stamp(real=cfg.get("realst", False))
                S.wait_vm_tok("ost1")
                flag_store(S, "s[8:11]", "s89", "v12", "v[16:17]", fl="" if fast else " sc1")
                issue(4); issue(5); issue(6)
                if fast:
                    raw_flag(S, "s88")
            if st + 1 < 16: S.wait_vm_tok(f"s{st+1}")
            if st == 0: S.wait(lgkm=0)
            ST.stamp()
            S.barrier()
            if st == 6:
                wg_poll("FL_POLL1", "s90", 2, backup=fast, foff="s89", final=False)
            if st >= 3 and st + NS2 < 16: issue(st + NS2)
            if st == 6 and fast: raw_flag(S, "s89")
        return
    if cfg.get("nosplit", False):
        pn = cfg.get("o_pacen", [6, 5, 5])
        allst = [(0, f) for f in range(8)] + [(1, f) for f in range(8)]
        c = 0
        for st in range(16):
            if st < 3:
                for (hh, f) in allst[c:c + pn[st]]: stores(hh, [f])
                c += pn[st]
            if st == 0 and cfg.get("stfirst", False):
                issue(2, "w"); issue(3, "w")
            if st == 3:
                S.wait_vm_tok("ost1")
                ST.stamp(real=cfg.get("realst", False))
                fast = cfg.get("fastflag", False)
                flag_store(S, "s[8:11]", "s88", "v12", "v[16:17]", fl="" if fast else " sc1")
                if fast == "late":
                    pass
                wg_poll("FL_POLL0", "0", 1, backup=fast, final=False)
                ST.stamp(real=cfg.get("realst", False))
                issue(4); issue(5); issue(6)
                if fast: raw_flag(S, "s88")
            if st + 1 < 16: S.wait_vm_tok(f"s{st+1}")
            if st == 0: S.wait(lgkm=0)
            ST.stamp()
            S.barrier()
            if st >= 3 and st + NS2 < 16: issue(st + NS2)
        return
    p0 = cfg.get("o_pace0", [3, 3, 2])
    p1 = cfg.get("o_pace1", [3, 3, 2])
    c0 = c1 = 0
    for st in range(16):
        if st < 3:
            stores(0, range(c0, c0 + p0[st])); c0 += p0[st]
        if st == 3:
            S.wait_vm_tok("ost0")
            ST.stamp()
            flag_store(S, "s[8:11]", "s88", "v12", "v[16:17]")
            wg_poll("FL_POLL0", "0", 1)
            ST.stamp()
            issue(4); issue(5); issue(6)
            stores(1, range(c1, c1 + p1[0])); c1 += p1[0]
        if st + 1 < 16: S.wait_vm_tok(f"s{st+1}")
        if st == 0: S.wait(lgkm=0)
        ST.stamp()
        S.barrier()
        if st == 5:
            S.wait_vm_tok("ost1")
            flag_store(S, "s[8:11]", "s89", "v12", "v[16:17]")
        if st == 6:
            wg_poll("FL_POLL1", "s90", 2)
            ST.stamp()
        if st >= 3 and st + NS2 < 16: issue(st + NS2)
        if st in (3, 4):
            stores(1, range(c1, c1 + p1[st - 2])); c1 += p1[st - 2]
    assert c0 == 8 and c1 == 8

def p2_compute(S, cfg, ST, dbg="s[68:71]", fused=False):
    cw = "s43"; l = "v1"
    T = [f"v{n}" for n in range(16, 24)]
    hh, gb, kx, c4, t0, t1, t2, t3 = T
    S.valu("v_lshrrev_b32", hh, 5, l)
    S.valu("v_bfe_u32", gb, l, 4, 1)
    S.valu("v_bfe_u32", kx, l, 2, 2)
    S.valu("v_and_b32", c4, 3, l)
    S.valu("v_and_b32", t0, 1, c4)
    S.valu("v_lshlrev_b32", t0, 4, t0)
    S.valu("v_lshrrev_b32", t1, 1, c4)
    S.valu("v_lshlrev_b32", t1, 3, t1)
    S.valu("v_or_b32", t0, t0, t1)
    S.valu("v_lshlrev_b32", t1, 5, gb)
    S.valu("v_or_b32", t0, t0, t1)
    S.valu("v_lshlrev_b32", t1, 2, hh)
    S.valu("v_add_u32", t1, t1, kx)
    S.valu("v_lshlrev_b32", t1, 8, t1)
    S.valu("v_add_u32", t0, t0, t1)
    S.salu("s_lshr_b32", "s44", cw, 1)
    S.salu("s_lshl_b32", "s44", "s44", 1)
    for a in range(2):
        S.valu("v_add_u32", t1, "s44", kx) if False else None
        S.salu("s_add_u32", "s45", "s44", a)
        S.valu("v_xor_b32", t1, "s45", kx)
        S.valu("v_lshlrev_b32", t1, 6, t1)
        S.valu("v_add_u32", v(2 + a), t0, t1)
        S.valu("v_add_u32", v(2 + a), 65536, v(2 + a))
        S.valu("v_add_u32", v(4 + a), 65536, v(2 + a))
    S.valu("v_lshlrev_b32", t0, 4, l)
    S.salu("s_and_b32", "s44", cw, 1)
    S.salu("s_lshl_b32", "s44", "s44", 13)
    S.valu("v_add_u32", "v6", "s44", t0)
    AB = [16, 24]; BB = [32, 40]; ACC = lambda a, b: 64 + 16 * (2 * a + b)
    def reads(ks):
        st, sk = ks // 4, ks % 4
        slot = st % NS2
        wrel = W2[slot] - 65536; hi = wrel // 65536; lo = wrel % 65536
        buf = ks % 2
        r = []
        def rb(b): return lambda: S.ds_read("ds_read_b128", v(BB[buf] + 4 * b, 4), "v6", O2[slot] + b * 4096 + sk * 1024)
        def ra(a, jj): return lambda: S.ds_read("ds_read_b64_tr_b16", v(AB[buf] + 4 * a + 2 * jj, 2), v(2 + a + 2 * hi), lo + sk * 4096 + jj * 2048)
        return [rb(0), ra(0, 0), ra(0, 1), rb(1), ra(1, 0), ra(1, 1)]
    def mf(ks):
        buf = ks % 2
        return [lambda a=a, b=b: S.mfma(v(ACC(a, b), 16), v(AB[buf] + 4 * a, 4), v(BB[buf] + 4 * b, 4), 0 if ks == 0 else v(ACC(a, b), 16))
                for (a, b) in ((0, 0), (0, 1), (1, 0), (1, 1))]
    ST.stamp()
    if fused: S.wait(lgkm=0)
    S.barrier()
    ST.stamp()
    PR = cfg.get("_probe")
    if PR: PR.mark()
    for f in reads(0): f()
    for ks in range(64):
        if ks % 4 == 3:
            S.wait(lgkm=0)
            S.barrier()
            ST.stamp()
            if PR and ks in (11, 15): PR.mark()
        fill = reads(ks + 1) if ks + 1 < 64 else []
        interleave(S, mf(ks), fill, 2)
    if PR: PR.mark()
    if cfg.get("xtag", False) and fused:
        ST.stamp()
        S.valu("v_mov_b32", "v10", 131072)
        S.ds_read("ds_read_b64", "v[8:9]", "v10", 8)
        S.valu("v_lshlrev_b32", "v11", 4, l)
        S.salu("s_lshl_b32", "s44", "s80", 2)
        S.salu("s_add_u32", "s44", "s44", cw)
        S.salu("s_lshl_b32", "s44", "s44", 12)
        S.wait(lgkm=0)
        for q in range(4):
            S.salu("s_cmp_eq_u32", "s80", q)
            S.branch("s_cbranch_scc1", f"P2_OWN{q}")
            S.salu("s_add_u32", "s45", "s44", q * 65536)
            S.nop(7)
            R = 128 + 12 * q
            pos = [0, 1, 2, 4, 5, 6, 8, 9]
            for i in range(8):
                S.valu("v_cvt_pk_bf16_f32", v(R + pos[i]), v(64 + 16 * q + 2 * i), v(64 + 16 * q + 2 * i + 1))
            for t in (3, 7, 10, 11):
                S.valu("v_mov_b32", v(R + t), "v8")
            for i in range(3):
                S.buf_store("buffer_store_dwordx4", v(R + 4 * i, 4), "v11", "s[56:59]", "s45", i * 1024, flags=" sc1")
            S.branch("s_branch", f"P2_N{q}")
            S.label(f"P2_OWN{q}")
            S.nop(15)
            for i in range(16):
                S.valu("v_mov_b32", v(48 + i), v(64 + 16 * q + i))
            S.label(f"P2_N{q}")
        ST.stamp()
        for i in range(3):
            S.salu("s_add_u32", "s45", "s80", i + 1)
            S.salu("s_and_b32", "s45", "s45", 3)
            S.salu("s_lshl_b32", "s46", "s80", 2)
            S.salu("s_add_u32", "s45", "s45", "s46")
            S.salu("s_lshl_b32", "s45", "s45", 2)
            S.salu("s_add_u32", "s45", "s45", cw)
            S.salu("s_lshl_b32", f"s{88 + i}", "s45", 12)
        D = 180
        if cfg.get("xpeer", False):
            S.salu("s_mov_b32", "s83", 0)
            S.salu("s_mov_b32", "s94", 0)
            S.label("P2_XP")
            S.raw("s_nop 4")
            for i in range(3):
                S.raw(f"s_bitcmp1_b32 s94, {i}")
                S.raw(f"s_cbranch_scc1 P2_XL{i}")
                for k_ in range(3):
                    S.raw(f"buffer_load_dwordx4 v[{D + 12 * i + 4 * k_}:{D + 12 * i + 4 * k_ + 3}], v11, s[56:59], s{88 + i} offen offset:{k_ * 1024} sc1")
                S.label(f"P2_XL{i}")
            S.raw("s_waitcnt vmcnt(0)")
            for i in range(3):
                S.raw(f"s_bitcmp1_b32 s94, {i}")
                S.raw(f"s_cbranch_scc1 P2_XC{i}")
                S.raw(f"v_cmp_eq_u32 vcc, v8, v{D + 12 * i + 3}")
                S.raw(f"v_cmp_eq_u32 s[86:87], v8, v{D + 12 * i + 7}")
                S.raw(f"v_cmp_eq_u32 s[92:93], v8, v{D + 12 * i + 11}")
                S.raw("s_nop 4")
                S.raw("s_and_b64 vcc, vcc, s[86:87]")
                S.raw("s_and_b64 vcc, vcc, s[92:93]")
                S.raw("s_cmp_eq_u64 vcc, exec")
                S.raw(f"s_cbranch_scc0 P2_XC{i}")
                S.raw(f"s_bitset1_b32 s94, {i}")
                S.label(f"P2_XC{i}")
            S.raw("s_cmp_eq_u32 s94, 7")
            S.raw("s_cbranch_scc1 P2_XDONE")
            S.raw("s_add_u32 s83, s83, 1")
            S.raw("s_cmp_gt_u32 s83, 200000")
            S.raw("s_cbranch_scc1 P2_XDONE")
            S.raw(f"s_sleep {cfg.get('x_sleep', 2)}")
            S.raw("s_branch P2_XP")
            S.label("P2_XDONE")
            S.branch("s_branch", "P2_TQ_OK")
        if not cfg.get("xfull", False):
            S.salu("s_mov_b32", "s83", 0)
            S.label("P2_TP")
            S.raw("s_nop 4")
            for i in range(3):
                S.raw(f"buffer_load_dwordx4 v[{D + 12 * i + 8}:{D + 12 * i + 11}], v11, s[56:59], s{88 + i} offen offset:2048 sc1")
            S.raw("s_waitcnt vmcnt(0)")
            S.raw(f"v_cmp_eq_u32 vcc, v8, v{D + 11}")
            S.raw(f"v_cmp_eq_u32 s[86:87], v8, v{D + 12 + 11}")
            S.raw(f"v_cmp_eq_u32 s[92:93], v8, v{D + 24 + 11}")
            S.raw("s_nop 4")
            S.raw("s_and_b64 vcc, vcc, s[86:87]")
            S.raw("s_and_b64 vcc, vcc, s[92:93]")
            S.raw("s_cmp_eq_u64 vcc, exec")
            S.raw("s_cbranch_scc1 P2_TP_OK")
            S.raw("s_add_u32 s83, s83, 1")
            S.raw("s_cmp_gt_u32 s83, 200000")
            S.raw("s_cbranch_scc1 P2_TP_OK")
            S.raw(f"s_sleep {cfg.get('x_sleep', 2)}")
            S.raw("s_branch P2_TP")
            S.label("P2_TP_OK")
            ST.stamp()
        S.salu("s_mov_b32", "s83", 0)
        S.label("P2_TQ")
        S.raw("s_nop 4")
        NQ = 3 if cfg.get("xfull", False) else 2
        for i in range(3):
            for k_ in range(NQ):
                S.raw(f"buffer_load_dwordx4 v[{D + 12 * i + 4 * k_}:{D + 12 * i + 4 * k_ + 3}], v11, s[56:59], s{88 + i} offen offset:{k_ * 1024} sc1")
        S.raw("s_waitcnt vmcnt(0)")
        S.raw("s_mov_b64 s[94:95], exec")
        for i in range(3):
            for k_ in range(NQ):
                S.raw(f"v_cmp_eq_u32 vcc, v8, v{D + 12 * i + 4 * k_ + 3}")
                S.raw("s_nop 4")
                S.raw("s_and_b64 s[94:95], s[94:95], vcc")
        S.raw("s_cmp_eq_u64 s[94:95], exec")
        S.raw("s_cbranch_scc1 P2_TQ_OK")
        S.raw("s_add_u32 s83, s83, 1")
        S.raw("s_cmp_gt_u32 s83, 200000")
        S.raw("s_cbranch_scc1 P2_TQ_OK")
        S.raw(f"s_sleep {cfg.get('x_sleep2', 1)}")
        S.raw("s_branch P2_TQ")
        S.label("P2_TQ_OK")
        S.salu("s_mov_b32", "s46", "0xffff0000")
        pos = [0, 1, 2, 4, 5, 6, 8, 9]
        for i in range(3):
            for k_ in range(8):
                src = v(D + 12 * i + pos[k_])
                S.valu("v_lshlrev_b32", "v16", 16, src)
                S.valu("v_and_b32", "v17", "s46", src)
                S.valu("v_add_f32", v(48 + 2 * k_), v(48 + 2 * k_), "v16")
                S.valu("v_add_f32", v(48 + 2 * k_ + 1), v(48 + 2 * k_ + 1), "v17")
        for k_ in range(8):
            S.valu("v_cvt_pk_bf16_f32", v(16 + k_), v(48 + 2 * k_), v(48 + 2 * k_ + 1))
    else:
        ST.stamp()
        xbf = cfg.get("xbf16", False)
        TB = 2048 if xbf else 4096
        S.valu("v_mov_b32", "v10", 0)
        S.buf_load("buffer_load_dwordx2", "v[8:9]", "v10", dbg, flags=" sc1")
        S.valu("v_lshlrev_b32", "v11", 4, l)
        S.salu("s_lshl_b32", "s44", "s80", 2)
        S.salu("s_add_u32", "s44", "s44", cw)
        S.salu("s_lshl_b32", "s44", "s44", 12)
        stf = cfg.get("p2_stfl", " sc1")
        for q in range(4):
            S.salu("s_cmp_eq_u32", "s80", q)
            S.branch("s_cbranch_scc1", f"P2_OWN{q}")
            S.salu("s_add_u32", "s45", "s44", q * 65536)
            if xbf:
                S.nop(7)
                for i in range(8):
                    S.valu("v_cvt_pk_bf16_f32", v(128 + 8 * q + i), v(64 + 16 * q + 2 * i), v(64 + 16 * q + 2 * i + 1))
                for i in range(2):
                    S.buf_store("buffer_store_dwordx4", v(128 + 8 * q + 4 * i, 4), "v11", "s[56:59]", "s45", i * 1024, flags=stf)
            else:
                for i in range(4):
                    S.buf_store("buffer_store_dwordx4", v(64 + 16 * q + 4 * i, 4), "v11", "s[56:59]", "s45", i * 1024, flags=stf)
            S.branch("s_branch", f"P2_N{q}")
            S.label(f"P2_OWN{q}")
            S.nop(15)
            for i in range(16):
                S.valu("v_mov_b32", v(48 + i), v(64 + 16 * q + i))
            S.label(f"P2_N{q}")
        S.wait(vm=0)
        ST.stamp()
        spin_nonce(S, dbg, "P2_NONCE", 8, "v10")
        S.salu("s_lshl_b32", "s45", "s80", 2)
        S.salu("s_add_u32", "s45", "s45", cw)
        S.salu("s_lshl_b32", "s45", "s45", 3)
        S.valu("v_mov_b32", "v12", "s84")
        S.valu("v_mov_b32", "v13", "s85")
        flag_store(S, "s[60:63]", "s45", "v10", "v[12:13]")
        S.valu("v_and_b32", "v14", 3, l)
        S.valu("v_lshlrev_b32", "v14", 5, "v14")
        S.salu("s_lshl_b32", "s45", cw, 3)
        poll(S, "P2_POLL", "s[60:63]", "v14", "s45", "v[8:9]", "v[12:13]", sleep=cfg.get("x_sleep", 4))
        ST.stamp()
        ldf = cfg.get("p2_ldfl", " sc1")
        for i in range(3):
            S.salu("s_add_u32", "s45", "s80", i + 1)
            S.salu("s_and_b32", "s45", "s45", 3)
            S.salu("s_lshl_b32", "s46", "s80", 2)
            S.salu("s_add_u32", "s45", "s45", "s46")
            S.salu("s_lshl_b32", "s45", "s45", 2)
            S.salu("s_add_u32", "s45", "s45", cw)
            S.salu("s_lshl_b32", "s45", "s45", 12)
            if xbf:
                for k in range(2):
                    S.buf_load("buffer_load_dwordx4", v(128 + 8 * i + 4 * k, 4), "v11", "s[56:59]", "s45", k * 1024, flags=ldf)
            else:
                for k in range(4):
                    S.buf_load("buffer_load_dwordx4", v(128 + 16 * i + 4 * k, 4), "v11", "s[56:59]", "s45", k * 1024, flags=ldf)
        if xbf:
            S.salu("s_mov_b32", "s46", "0xffff0000")
            for i in range(3):
                for k in range(8):
                    S.valu("v_lshlrev_b32", "v16", 16, v(128 + 8 * i + k))
                    S.valu("v_and_b32", "v17", "s46", v(128 + 8 * i + k))
                    S.valu("v_add_f32", v(48 + 2 * k), v(48 + 2 * k), "v16")
                    S.valu("v_add_f32", v(48 + 2 * k + 1), v(48 + 2 * k + 1), "v17")
        else:
            for i in range(3):
                for k in range(16):
                    S.valu("v_add_f32", v(48 + k), v(48 + k), v(128 + 16 * i + k))
        for k in range(8):
            S.valu("v_cvt_pk_bf16_f32", v(16 + k), v(48 + 2 * k), v(48 + 2 * k + 1))

    S.valu("v_and_b32", "v10", 31, l)
    S.valu("v_lshlrev_b32", "v10", 11, "v10")
    S.valu("v_lshrrev_b32", "v12", 5, l)
    S.valu("v_lshlrev_b32", "v12", 4, "v12")
    S.valu("v_add_u32", "v10", "v10", "v12")
    S.salu("s_and_b32", "s44", cw, 1)
    S.salu("s_lshl_b32", "s44", "s44", 1)
    S.salu("s_and_b32", "s45", "s80", 1)
    S.salu("s_add_u32", "s44", "s44", "s45")
    S.salu("s_lshl_b32", "s44", "s44", 16)
    S.salu("s_lshr_b32", "s45", cw, 1)
    S.salu("s_lshl_b32", "s45", "s45", 7)
    S.salu("s_add_u32", "s44", "s44", "s45")
    S.salu("s_lshr_b32", "s45", "s80", 1)
    S.salu("s_lshl_b32", "s45", "s45", 6)
    S.salu("s_add_u32", "s44", "s44", "s45")
    S.buf_store("buffer_store_dwordx4", "v[16:19]", "v10", "s[64:67]", "s44", 0, flags=cfg.get("outfl", ""))
    S.buf_store("buffer_store_dwordx4", "v[20:23]", "v10", "s[64:67]", "s44", 32, flags=cfg.get("outfl", ""))
    ST.stamp()
```

```python
import sys, argparse
from asmlib import *

NAME = "concat_heads__mha_block_cached__gqa_block_cached__near_ridge"

def interleave(S, mf, fill, per_gap, lead=0):
    fi = 0
    for _ in range(min(lead, len(fill))):
        fill[fi](); fi += 1
    for k, m in enumerate(mf):
        m()
        n = per_gap[k] if isinstance(per_gap, (list, tuple)) else per_gap
        for _ in range(n):
            if fi < len(fill):
                fill[fi](); fi += 1
    while fi < len(fill):
        fill[fi](); fi += 1

STAMP_BASE = 80
class Probe:
    regs = list(range(26, 36))
    def __init__(self, S, on):
        self.S = S; self.on = on; self.n = 0
    def mark(self):
        if not self.on or self.n >= len(self.regs): return
        S = self.S
        S.add(Inst("s_memrealtime s[92:93]", "smem", [], ["s92", "s93"]))
        S.wait(lgkm=0)
        S.salu("s_sub_u32", f"s{self.regs[self.n]}", "s92", "s96")
        self.n += 1
PROBE = [None]

class Stamper:
    allreal = False
    def __init__(self, S, on, vreg=None):
        self.S = S; self.on = on; self.n = 1; self.vreg = vreg
        if on:
            S.wait(lgkm=0)
            S.add(Inst(f"v_writelane_b32 v{vreg}, s98, 0", "valu", ["s98"], [f"v{vreg}"]))
    def stamp(self, real=False):
        if not self.on: return
        S = self.S
        op = "s_memrealtime" if (real or Stamper.allreal) else "s_memtime"
        S.add(Inst(f"{op} s[100:101]", "smem", [], ["s100", "s101"]))
        S.wait(lgkm=0)
        S.add(Inst(f"v_writelane_b32 v{self.vreg}, s100, {self.n}", "valu", ["s100"], [f"v{self.vreg}"]))
        self.n += 1
    def flush(self, region, vtmp=250):
        if not self.on: return
        S = self.S
        S.wait(vm=0, lgkm=0)
        S.smem("s[78:79]", "s[0:1]", 96)
        S.wait(lgkm=0)
        S.salu("s_add_u32", "s76", "s78", (64 << 20) + region * (1 << 20))
        S.salu("s_addc_u32", "s77", "s79", 0)
        S.salu("s_mov_b32", "s78", 1 << 20)
        S.salu("s_mov_b32", "s79", "0x20000")
        S.salu("s_lshl_b32", "s74", "s2", 11)
        S.salu("s_lshl_b32", "s75", "s43", 8)
        S.salu("s_add_u32", "s74", "s74", "s75")
        a = f"v{vtmp}"
        S.valu("v_mbcnt_lo_u32_b32", a, -1, 0)
        S.valu("v_mbcnt_hi_u32_b32", a, -1, a)
        S.valu("v_lshlrev_b32", a, 2, a)
        S.buf_store("buffer_store_dword", f"v{self.vreg}", a, "s[76:79]", "s74")
        S.wait(vm=0)

def load_ptrs(S, sel_sgpr_p):
    S.smem("s[16:31]", "s[0:1]", 0)
    S.smem("s[32:35]", "s[0:1]", 64)
    S.smem("s[36:37]", "s[0:1]", 80)
    S.smem("s[38:39]", "s[0:1]", 96)

def make_srd(S, srd, ptr_lo, ptr_hi, off_sgpr, total, off_hi=None):
    if isinstance(off_sgpr, int):
        S.salu("s_add_u32", s(srd), s(ptr_lo), off_sgpr)
        S.salu("s_addc_u32", s(srd + 1), s(ptr_hi), 0)
        S.salu("s_mov_b32", s(srd + 2), total - off_sgpr)
    else:
        S.salu("s_add_u32", s(srd), s(ptr_lo), off_sgpr)
        S.salu("s_addc_u32", s(srd + 1), s(ptr_hi), 0)
        S.salu("s_sub_u32", s(srd + 2), total, off_sgpr)
    S.salu("s_mov_b32", s(srd + 3), "0x20000")

NW = 4
NX = 2
WBASE = 65536
XBASE = WBASE + NW * 16384
KSLOT = [0, 16384, 32768, 49152]
VSLOT = [WBASE + 0 * 16384, WBASE + 1 * 16384, XBASE + 0 * 16384, WBASE + 2 * 16384]

def k1_prologue(S, cfg):
    S.salu("s_cmp_ge_u32", "s2", 256)
    S.branch("s_cbranch_scc1", "K1_DONE")
    if cfg.get("stamps", False):
        S.add(Inst(("s_memrealtime" if cfg.get("allreal") else "s_memtime") + " s[98:99]", "smem", [], ["s98", "s99"]))
    if cfg.get("probe", False):
        S.add(Inst("s_memrealtime s[96:97]", "smem", [], ["s96", "s97"]))
    load_ptrs(S, None)
    if cfg.get("fused", False):
        S.smem("s[4:5]", "s[0:1]", 88)
        S.salu("s_mov_b32", "s6", 256)
        S.salu("s_mov_b32", "s7", "0x20000")
    S.salu("s_and_b32", "s44", "s2", 7)
    S.salu("s_lshr_b32", "s45", "s2", 3)
    S.salu("s_lshr_b32", "s40", "s44", 2)
    S.salu("s_and_b32", "s44", "s44", 3)
    S.salu("s_lshl_b32", "s44", "s44", 2)
    S.salu("s_and_b32", "s41", "s45", 3)
    S.salu("s_add_u32", "s41", "s41", "s44")
    S.salu("s_lshr_b32", "s42", "s45", 2)
    S.salu("s_lshr_b32", "s12", "s2", 3)
    S.valu("v_lshrrev_b32", "v1", 6, "v0")
    S.valu("v_readfirstlane_b32", "s43", "v1")
    S.valu("v_and_b32", "v1", 63, "v0")
    if not cfg.get("fused", False):
        k1_ptrs(S, cfg, 1); k1_ptrs(S, cfg, 2)

def k1_ptrs(S, cfg, part):
    if part == 1:
        S.salu("s_cmp_eq_u32", "s40", 0)
        S.salu("s_cselect_b64", "s[16:17]", "s[16:17]", "s[26:27]")
        S.salu("s_cselect_b64", "s[22:23]", "s[22:23]", "s[32:33]")
        S.salu("s_cselect_b64", "s[18:19]", "s[18:19]", "s[28:29]")
        S.salu("s_cselect_b64", "s[20:21]", "s[20:21]", "s[30:31]")
        S.salu("s_cselect_b64", "s[24:25]", "s[24:25]", "s[34:35]")
        S.salu("s_lshl_b32", "s44", "s41", 9)
        make_srd(S, 48, 22, 23, "s44", 512 * 8192)
        S.salu("s_lshl_b32", "s44", "s42", 17)
        make_srd(S, 52, 16, 17, "s44", 1024 * 1024)
    else:
        S.salu("s_lshl_b32", "s44", "s42", 20)
        S.salu("s_lshl_b32", "s45", "s41", 14)
        S.salu("s_add_u32", "s44", "s44", "s45")
        make_srd(S, 56, 18, 19, "s44", 32 * 262144)
        make_srd(S, 60, 20, 21, "s44", 32 * 262144)
        S.salu("s_lshl_b32", "s45", "s40", 23)
        S.salu("s_add_u32", "s44", "s44", "s45")
        make_srd(S, 64, 38, 39, "s44", 2 * 32 * 262144)

def nonce_store(S):
    S.salu("s_or_b32", "s44", "s2", "s43")
    S.salu("s_cmp_lg_u32", "s44", 0)
    S.branch("s_cbranch_scc1", "F_NONONCE")
    S.add(Inst("s_memrealtime s[44:45]", "smem", [], ["s44", "s45"]))
    S.wait(lgkm=0)
    S.salu("s_or_b32", "s44", "s44", 1)
    S.valu("v_mov_b32", "v2", "s44")
    S.valu("v_mov_b32", "v3", "s45")
    S.valu("v_mov_b32", "v4", 0)
    S.buf_store("buffer_store_dwordx2", "v[2:3]", "v4", "s[4:7]", flags=" sc1")
    S.label("F_NONONCE")
    S.raw("s_waitcnt lgkmcnt(0)")

def k1_fast(S, cfg):
    S.salu("s_sub_u32", "s44", "s43", 4)
    L = "v1"
    t0, t1, t2 = "v2", "v3", "v4"
    S.valu("v_lshrrev_b32", t0, 5, L)
    S.valu("v_and_b32", t1, 31, L)
    S.valu("v_lshlrev_b32", t2, 2, t0)
    S.valu("v_xor_b32", "v10", t1, t2)
    S.valu("v_lshlrev_b32", "v10", 4, "v10")
    S.valu("v_xor_b32", "v11", 128, "v10")
    S.valu("v_lshlrev_b32", t2, 13, t0)
    S.salu("s_lshl_b32", "s45", "s44", 16)
    S.valu("v_add_u32", t2, "s45", t2)
    S.valu("v_add_u32", "v10", "v10", t2)
    S.valu("v_add_u32", "v11", "v11", t2)
    S.valu("v_lshrrev_b32", t0, 3, L)
    S.valu("v_and_b32", t1, 7, L)
    S.valu("v_lshrrev_b32", t2, 4, L)
    S.valu("v_xor_b32", "v12", t1, t2)
    S.valu("v_lshlrev_b32", "v12", 4, "v12")
    S.valu("v_xor_b32", "v13", 64, "v12")
    S.valu("v_lshlrev_b32", t0, 10, t0)
    S.salu("s_lshl_b32", "s45", "s44", 15)
    S.valu("v_add_u32", t0, "s45", t0)
    S.valu("v_add_u32", "v12", "v12", t0)
    S.valu("v_add_u32", "v13", "v13", t0)
    S.salu("s_lshl_b32", "s47", "s44", 12)
    if cfg.get("rot", True):
        S.salu("s_and_b32", "s79", "s41", 3)
        S.salu("s_lshl_b32", "s79", "s79", 1)
        S.salu("s_add_u32", "s79", "s79", "s42")
        S.salu("s_and_b32", "s79", "s79", 7)
    else:
        S.salu("s_mov_b32", "s79", 0)
    if cfg.get("fused", False):
        k1_ptrs(S, cfg, 1)
    ldflags = cfg.get("ldflags", " nt")
    kvflags = cfg.get("kvflags", " nt")
    skip = cfg.get("skip", "")
    def dma(voff, srd, base, off, ldsbase, tok, flags):
        S.salu("s_add_u32", "m0", "s47", ldsbase)
        S.salu("s_add_u32", "s46", base, off)
        S.buf_dma(voff, srd, "s46", tok=tok, flags=flags)
    def issue_w(st):
        S.salu("s_add_u32", "s13", "s79", st // 2)
        S.salu("s_and_b32", "s13", "s13", 7)
        S.salu("s_lshl_b32", "s13", "s13", 19)
        for ii in range(4):
            dma("v10" if ii % 2 == 0 else "v11", "s[48:51]", "s13", (st % 2) * 262144 + ii * 16384,
                WBASE + (st % NW) * 16384 + ii * 1024, f"w{st}", cfg.get("ldflags0", ldflags) if st < 2 else ldflags)
    def issue_x(j):
        S.salu("s_add_u32", "s13", "s79", j)
        S.salu("s_and_b32", "s13", "s13", 7)
        S.salu("s_lshl_b32", "s13", "s13", 7)
        for ii in range(4):
            dma("v12" if ii % 2 == 0 else "v13", "s[52:55]", "s13", ii * 8192,
                XBASE + (j % NX) * 16384 + ii * 1024, f"x{j}", cfg.get("ldflags0", ldflags) if j < 2 else ldflags)
    if cfg.get("fused", False):
        issue_w(0); issue_x(0)
        k1_ptrs(S, cfg, 2)
        S.salu("s_sub_u32", "s44", "s43", 4)
    S.valu("v_lshrrev_b32", t2, 4, L)
    S.valu("v_and_b32", t1, 15, L)
    S.valu("v_lshlrev_b32", t0, 8, t2)
    S.salu("s_and_b32", "s45", "s44", 1)
    S.salu("s_lshl_b32", "s45", "s45", 12)
    S.salu("s_lshr_b32", "s46", "s44", 1)
    S.salu("s_lshl_b32", "s46", "s46", 18)
    S.salu("s_add_u32", "s45", "s45", "s46")
    S.valu("v_add_u32", t0, "s45", t0)
    S.valu("v_xor_b32", "v5", t1, t2)
    for ii in range(4):
        S.valu("v_xor_b32", v(14 + ii), 4 * ii, "v5")
        S.valu("v_lshlrev_b32", v(14 + ii), 4, v(14 + ii))
        S.valu("v_add_u32", v(14 + ii), v(14 + ii), t0)
        if ii: S.valu("v_add_u32", v(14 + ii), ii * 1024, v(14 + ii))
    S.valu("v_lshlrev_b32", "v5", 2, t2)
    S.valu("v_xor_b32", "v18", t1, "v5")
    S.valu("v_lshlrev_b32", "v18", 4, "v18")
    S.valu("v_add_u32", "v18", "v18", t0)
    S.salu("s_mov_b32", "s14", 0)
    def issue_k(cw):
        for ii in range(4):
            dma(v(14 + ii), "s[56:59]", "s14", 2 * (cw % 2) * 262144 + (cw // 2) * 8192, KSLOT[cw] + ii * 1024, "k", kvflags)
    VR = 32
    def issue_v(cw):
        for ii in range(4):
            S.salu("s_mov_b32", "s46", 2 * (cw % 2) * 262144 + (cw // 2) * 8192 + ii * 1024)
            S.buf_load("buffer_load_dwordx4", v(VR + 16 * cw + 4 * ii, 4), "v18", "s[60:63]", "s46", tok="v", flags=kvflags)
    S.valu("v_lshlrev_b32", "v19", 4, L)
    S.valu("v_add_u32", "v19", "s47", "v19")
    S.valu("v_add_u32", "v20", 65536, "v19")
    S.valu("v_add_u32", "v21", 131072, "v19")
    def write_v(cw):
        sb = VSLOT[cw]; areg = 19 + sb // 65536
        for ii in range(4):
            S.ds_write("ds_write_b128", v(areg), v(VR + 16 * cw + 4 * ii, 4), sb % 65536 + ii * 1024)

    def body(S, phase, ST):
        def issue(items):
            for it in items:
                if it[0] in skip: continue
                {"w": issue_w, "x": issue_x, "k": issue_k, "v": issue_v}[it[0]](it[1])
        sched = {b: [] for b in range(-2, 17)}
        sched[-2] = [("w", 0), ("x", 0), ("w", 1)] if not cfg.get("fused", False) else [("w", 1)]
        sched[-1] = [("w", 2), ("x", 1), ("w", 3)]
        for st in range(0, 16):
            if st + NW < 16: sched[st].append(("w", st + NW))
            if st % 2 == 1 and (st - 1) // 2 + NX < 8: sched[st].append(("x", (st - 1) // 2 + NX))
        items = [[("k", 0), ("k", 1)], [("k", 2), ("k", 3)], [("v", 0), ("v", 1)], [("v", 2), ("v", 3)]]
        if "btab8" in cfg:
            items8 = [("k", 0), ("k", 1), ("k", 2), ("k", 3), ("v", 0), ("v", 1), ("v", 2), ("v", 3)]
            b8 = cfg["btab8"]
            if isinstance(b8[0], list): b8 = b8[phase]
            for bt, it in zip(b8, items8): sched[bt].append(it)
            bursts = [b8[0], b8[3], b8[5], b8[7]]
        elif "btab" in cfg:
            bursts = cfg["btab"][phase]
            for bt, its in zip(bursts, items):
                sched[bt] += its
        else:
            bursts = cfg.get("bursts", [0, 3, 6, 9])
            for bt, its in zip(bursts, items):
                sched[min(bt + phase, 11)] += its
        wr = {12: [0], 13: [1, 2], 14: [3]}
        lastv = max(bursts[2:]) if ("btab" in cfg or "btab8" in cfg) else 0
        if lastv >= 11:
            wr = {15: [0, 1, 2, 3]}
        issue(sched[-2])
        ST.stamp()
        S.wait_vm_tok("w0"); S.wait_vm_tok("x0")
        ST.stamp()
        S.barrier()
        issue(sched[-1])
        for st in range(16):
            if st + 1 < 16:
                S.wait_vm_tok(f"w{st+1}")
                S.wait_vm_tok(f"x{(st+1)//2}")
            else:
                S.wait_vm_tok("k")
            if st >= 13: S.wait(lgkm=0)
            ST.stamp()
            S.barrier()
            ST.stamp()
            issue(sched[st])
            for cw in wr.get(st, []):
                if "v" not in skip: write_v(cw)
            if cfg.get("fused", False) and st == cfg.get("wopf_at", 12):
                import k2b
                k2b.p2_srds(S)
                if cfg.get("wopf", True):
                    S.valu("v_lshrrev_b32", "v2", 1, L)
                    S.valu("v_lshlrev_b32", "v2", 10, "v2")
                    S.valu("v_and_b32", "v3", 1, L)
                    S.valu("v_lshlrev_b32", "v3", 7, "v3")
                    S.valu("v_add_u32", "v2", "v2", "v3")
                    S.salu("s_sub_u32", "s44", "s43", 4)
                    S.salu("s_lshl_b32", "s44", "s44", 15)
                    S.salu("s_lshl_b32", "s45", "s42", 17)
                    S.salu("s_add_u32", "s44", "s44", "s45")
                    S.buf_load("buffer_load_dword", "v24", "v2", "s[48:51]", "s44", flags=cfg.get("wopf_fl", ""))
        if cfg.get("b16", False):
            S.wait(lgkm=0)
            S.barrier()
        if cfg.get("fused", False):
            import k2b
            k2b.p2_loader_fused(S, cfg, ST)
        ST.stamp(real=True)
        ST.flush(0, 31)
        S.endpgm()
    return body

def k1_consumer(S, cfg):
    cw = "s43"
    l = "v1"
    if cfg.get("fused", False): nonce_store(S)
    T = [f"v{n}" for n in range(16, 32)]
    i_, hh, gb, kx, c4, t0, t1, t2 = T[:8]
    S.valu("v_and_b32", i_, 15, l)
    S.valu("v_lshrrev_b32", hh, 5, l)
    S.valu("v_bfe_u32", gb, l, 4, 1)
    S.valu("v_lshrrev_b32", kx, 2, i_)
    S.valu("v_and_b32", c4, 3, l)
    S.valu("v_and_b32", t0, 1, c4)
    S.valu("v_lshlrev_b32", t0, 4, t0)
    S.valu("v_lshrrev_b32", t1, 1, c4)
    S.valu("v_lshlrev_b32", t1, 3, t1)
    S.valu("v_or_b32", t0, t0, t1)
    S.valu("v_lshlrev_b32", t1, 5, gb)
    S.valu("v_or_b32", t0, t0, t1)
    S.valu("v_lshlrev_b32", t1, 3, hh)
    S.valu("v_add_u32", t1, t1, kx)
    S.valu("v_lshlrev_b32", t1, 9, t1)
    S.valu("v_add_u32", t0, t0, t1)
    S.salu("s_lshr_b32", "s44", cw, 1)
    S.salu("s_lshl_b32", "s44", "s44", 8)
    S.valu("v_add_u32", t0, "s44", t0)
    for t in range(4):
        S.valu("v_xor_b32", t1, t, kx)
        S.valu("v_lshlrev_b32", t1, 6, t1)
        S.valu("v_add_u32", v(2 + t), t0, t1)
        S.valu("v_add_u32", v(2 + t), WBASE, v(2 + t))
    S.valu("v_and_b32", t0, 31, l)
    S.valu("v_bfe_u32", t1, l, 1, 3)
    S.valu("v_xor_b32", t1, t1, hh)
    S.valu("v_lshlrev_b32", t0, 7, t0)
    S.salu("s_and_b32", "s44", cw, 1)
    S.salu("s_lshl_b32", "s44", "s44", 13)
    S.salu("s_add_u32", "s44", "s44", XBASE)
    S.valu("v_add_u32", t0, "s44", t0)
    for s4 in range(4):
        S.valu("v_xor_b32", t2, 2 * s4, t1)
        S.valu("v_lshlrev_b32", t2, 4, t2)
        S.valu("v_add_u32", v(10 + s4), t0, t2)
    S.salu("s_and_b32", "s44", cw, 1)
    S.salu("s_lshl_b32", "s44", "s44", 19)
    S.salu("s_lshr_b32", "s45", cw, 1)
    S.salu("s_lshl_b32", "s45", "s45", 13)
    S.salu("s_add_u32", "s70", "s44", "s45")
    S.salu("s_add_u32", "s71", "s70", 262144)
    S.salu("s_add_u32", "s72", "s70", 4096)
    S.salu("s_add_u32", "s73", "s71", 4096)
    def sel4(dst, vals):
        S.salu("s_mov_b32", dst, vals[0])
        for c in range(1, 4):
            S.salu("s_cmp_eq_u32", cw, c)
            S.salu("s_cselect_b32", dst, vals[c], dst)
    sel4("s74", KSLOT); sel4("s75", VSLOT)
    import math, struct
    c = (128 ** -0.5) * math.log2(math.e)
    S.salu("s_mov_b32", "s76", hex(struct.unpack("<I", struct.pack("<f", c))[0]))

    ABUF = [16, 32]; BBUF = [48, 56]
    ACC = lambda ib, t: 128 + 64 * ib + 16 * t
    def reads(ks):
        st, sub = ks // 2, ks % 2
        j, s4 = ks // 4, ks % 4
        slot = st % NW
        buf = ks % 2
        r = []
        def rb(ib):
            return lambda: S.ds_read("ds_read_b128", v(BBUF[buf] + 4 * ib, 4), v(10 + s4), (j % NX) * 16384 + ib * 4096)
        def ra(t, jj):
            base = 2 + t
            return lambda: S.ds_read("ds_read_b64_tr_b16", v(ABUF[buf] + 4 * t + 2 * jj, 2), v(base),
                                     (slot % 4) * 16384 + sub * 8192 + jj * 2048)
        r += [rb(0), ra(0, 0), ra(0, 1), rb(1), ra(1, 0), ra(1, 1), ra(2, 0), ra(2, 1), ra(3, 0), ra(3, 1)]
        return r
    def mfmas(ks, order):
        buf = ks % 2
        m = []
        for (t, ib) in order:
            first = (ks == 0)
            def f(t=t, ib=ib, first=first):
                S.mfma(v(ACC(ib, t), 16), v(ABUF[buf] + 4 * t, 4), v(BBUF[buf] + 4 * ib, 4), 0 if first else v(ACC(ib, t), 16))
            m.append(f)
        return m
    if cfg.get("fused", False) and cfg.get("early_srd", True):
        import k2b
        k2b.p2_srds(S)
    ST = Stamper(S, cfg.get("stamps", False), 15)
    PR = Probe(S, cfg.get("probe2", False)); PROBE[0] = PR
    ST.stamp()
    PR.mark()
    S.barrier()
    PR.mark()
    ST.stamp()
    for f in reads(0): f()
    std = [(0, 0), (0, 1), (1, 0), (1, 1), (2, 0), (2, 1), (3, 0), (3, 1)]
    last = [(0, 0), (1, 0), (2, 0), (3, 0), (0, 1), (1, 1), (2, 1), (3, 1)]
    def kv_addr_code():
        c = []
        a = lambda *x, **k: c.append(lambda: S.valu(*x, **k))
        a("v_and_b32", "v0", 15, l)
        a("v_lshrrev_b32", "v14", 5, l)
        a("v_xor_b32", "v0", "v0", "v14")
        a("v_lshlrev_b32", "v0", 4, "v0")
        a("v_and_b32", "v2", 31, l)
        a("v_lshlrev_b32", "v2", 8, "v2")
        a("v_add_u32", "v2", "s74", "v2")
        a("v_or_b32", "v2", "v2", "v0")
        for cidx in range(1, 8):
            a("v_xor_b32", v(2 + cidx), (2 * cidx) << 4, "v2")
        return c
    def v_addr_code():
        c = []
        a = lambda *x, **k: c.append(lambda: S.valu(*x, **k))
        a("v_bfe_u32", "v0", l, 2, 2)
        a("v_lshrrev_b32", "v14", 5, l)
        a("v_lshlrev_b32", "v14", 2, "v14")
        a("v_add_u32", "v14", "v14", "v0")
        a("v_lshlrev_b32", "v14", 8, "v14")
        a("v_add_u32", "v14", "s75", "v14")
        a("v_bfe_u32", "v10", l, 4, 1)
        a("v_lshlrev_b32", "v10", 5, "v10")
        a("v_add_u32", "v14", "v14", "v10")
        a("v_and_b32", "v10", 3, l)
        a("v_lshlrev_b32", "v10", 3, "v10")
        a("v_add_u32", "v14", "v14", "v10")
        a("v_lshlrev_b32", "v0", 6, "v0")
        for tp in range(4):
            a("v_xor_b32", v(10 + tp), tp << 6, "v0")
            a("v_add_u32", v(10 + tp), v(10 + tp), "v14")
        return c

    K0, QB0, QB1, K1 = 96, 64, 16, 144
    S0, S1 = 128, 176
    P0, P1 = 48, 56
    V0, V1 = 96, 144
    def kreads(ib, base):
        r = []
        for t in range(4):
            for u in range(2):
                cidx = 2 * t + u
                r.append(lambda cidx=cidx: S.ds_read("ds_read_b128", v(base + 4 * cidx, 4), v(2 + cidx), ib * 8192))
        return r
    def vreads(ib, base):
        r = []
        for u in range(2):
            for tp in range(4):
                for jj in range(2):
                    r.append(lambda tp=tp, u=u, jj=jj: S.ds_read("ds_read_b64_tr_b16", v(base + 4 * (2 * tp + u) + 2 * jj, 2),
                                                                v(10 + tp), ib * 8192 + u * 4096 + jj * 2048))
        return r

    for ks in range(32):
        sub = ks % 2
        if ks % 2 == 0: ST.stamp()
        if sub == 1:
            S.wait(lgkm=0)
            S.barrier()
        fill = []
        if cfg.get("nocompute", False) and ks + 1 < 32:
            continue
        if ks + 1 < 32:
            fill += reads(ks + 1)
            interleave(S, mfmas(ks, std), fill, 2)
        else:
            fill += kv_addr_code() + kreads(0, K0) + v_addr_code()
            interleave(S, mfmas(ks, last), fill, [8, 8, 4, 4, 6, 6, 6, 6])

    def cvt(dst, src, n):
        return [lambda i=i: S.valu("v_cvt_pk_bf16_f32", v(dst + i), v(src + 2 * i), v(src + 2 * i + 1)) for i in range(n)]
    def smf(acc, kb, qb):
        m = []
        for cidx in range(8):
            m.append(lambda cidx=cidx: S.mfma(v(acc, 16), v(kb + 4 * cidx, 4), v(qb + 4 * cidx, 4), 0 if cidx == 0 else v(acc, 16)))
        return m
    def softmax(acc, pdst, tm):
        c = []
        a = lambda *x, **k: c.append(lambda: S.valu(*x, **k))
        m, m2, t, t2 = [v(tm + i) for i in range(4)]
        a("v_max3_f32", m, v(acc), v(acc + 1), v(acc + 2))
        a("v_max3_f32", m2, v(acc + 3), v(acc + 4), v(acc + 5))
        a("v_max3_f32", m, m, v(acc + 6), v(acc + 7))
        a("v_max3_f32", m2, m2, v(acc + 8), v(acc + 9))
        a("v_max3_f32", m, m, v(acc + 10), v(acc + 11))
        a("v_max3_f32", m2, m2, v(acc + 12), v(acc + 13))
        a("v_max3_f32", m, m, v(acc + 14), v(acc + 15))
        a("v_max_f32", m, m, m2)
        a("v_mov_b32", m2, m)
        a("v_permlane32_swap_b32", m2, m)
        a("v_max_f32", m, m, m2)
        a("v_mul_f32", m, "s76", m)
        for r in range(16):
            a("v_fma_f32", v(acc + r), v(acc + r), "s76", "-" + m)
        for r in range(16):
            a("v_exp_f32", v(acc + r), v(acc + r))
        a("v_add_f32", t, v(acc), v(acc + 1))
        a("v_add_f32", t2, v(acc + 2), v(acc + 3))
        for r in range(4, 16, 2):
            a("v_add_f32", t, t, v(acc + r))
            a("v_add_f32", t2, t2, v(acc + r + 1))
        a("v_add_f32", t, t, t2)
        a("v_mov_b32", t2, t)
        a("v_permlane32_swap_b32", t2, t)
        a("v_add_f32", t, t, t2)
        a("v_rcp_f32", t, t)
        for r in range(16):
            a("v_mul_f32", v(acc + r), v(acc + r), t)
        for r in range(8):
            a("v_cvt_pk_bf16_f32", v(pdst + r), v(acc + 2 * r), v(acc + 2 * r + 1))
        return c
    def pvmf(otiles, vb, pb):
        m = []
        for u in range(2):
            for tp in range(4):
                m.append(lambda tp=tp, u=u: S.mfma(v(otiles[tp], 16), v(vb + 4 * (2 * tp + u), 4), v(pb + 4 * u, 4),
                                                   0 if u == 0 else v(otiles[tp], 16)))
        return m
    stflags = cfg.get("stflags", "")
    def ostore(otiles, tmp, so_lo, so_hi):
        c = []
        for tp in range(4):
            for r2 in range(2):
                f = 2 * tp + r2
                d = tmp + 4 * f
                for i in range(4):
                    c.append(lambda d=d, i=i, tp=tp, r2=r2: S.valu("v_cvt_pk_bf16_f32", v(d + i), v(otiles[tp] + 8 * r2 + 2 * i),
                                                                 v(otiles[tp] + 8 * r2 + 2 * i + 1)))
                c.append(lambda d=d, f=f: S.buf_store("buffer_store_dwordx4", v(d, 4), "v0", "s[64:67]",
                                                      so_lo if f < 4 else so_hi, (f % 4) * 1024, flags=stflags))
        return c
    ST.stamp()
    PR.mark()
    O0 = [192, 208, 224, 240]
    O1 = [64, 80, 16, 32]
    if cfg.get("attn3", False):
        c0 = cvt(QB0, ACC(0, 0), 32); c1 = cvt(QB1, ACC(1, 0), 32)
        s0 = smf(S0, K0, QB0); s1 = smf(S1, K1, QB1)
        for f in c0[:8]: f()
        interleave(S, s0, c0[8:] + kreads(1, K1) + c1, [8, 1, 8, 1, 8, 6, 6, 6])
        S.wait(lgkm=0)
        S.barrier()
        ST.stamp()
        sm0 = softmax(S0, P0, 2)
        v0r = vreads(0, V0)
        S.valu("v_lshlrev_b32", "v0", 4, l)
        S.salu("s_lshr_b32", "s44", cw, 1)
        S.salu("s_lshl_b32", "s44", "s44", 15)
        S.salu("s_and_b32", "s45", cw, 1)
        S.salu("s_lshl_b32", "s45", "s45", 13)
        S.salu("s_add_u32", "s44", "s44", "s45")
        S.valu("v_add_u32", "v0", "s44", "v0")
        interleave(S, s1, v0r + sm0[:34], [4, 4, 4, 6, 8, 8, 8, 8])
        for i in range(4):
            S.ds_write("ds_write_b128", "v0", v(S1 + 4 * i, 4), 4096 + i * 1024)
        for f in sm0[34:50]: f()
        S.wait(lgkm=0)
        S.barrier()
        ST.stamp()
        for f in sm0[50:]: f()
        def owrite3(otiles, tmp, ib, tps):
            c = []
            for tp in tps:
                for r2 in range(2):
                    f = 2 * tp + r2
                    d = tmp + 4 * f
                    for i in range(4):
                        c.append(lambda d=d, i=i, tp=tp, r2=r2: S.valu("v_cvt_pk_bf16_f32", v(d + i), v(otiles[tp] + 8 * r2 + 2 * i), v(otiles[tp] + 8 * r2 + 2 * i + 1)))
                    c.append(lambda d=d, f=f: S.ds_write("ds_write_b128", "v0", v(d, 4), (f // 4) * 16384 + ib * 4096 + (f % 4) * 1024))
            return c
        def pv(tp, u): return lambda: S.mfma(v(O0[tp], 16), v(V0 + 4 * (2 * tp + u), 4), v(P0 + 4 * u, 4), 0 if u == 0 else v(O0[tp], 16))
        for f in (pv(0, 0), pv(1, 0), pv(0, 1), pv(1, 1)): f()
        interleave(S, [pv(2, 0), pv(3, 0), pv(2, 1), pv(3, 1)], owrite3(O0, 64, 0, [0]), [0, 3, 3, 4])
        for f in owrite3(O0, 64, 0, [1, 2, 3]): f()
        ST.stamp()
        import k2b
        if not cfg.get("early_srd", True): k2b.p2_srds(S)
        cfg["_probe"] = PR if cfg.get("probe2", False) else None
        k2b.p2_compute(S, cfg, ST, dbg="s[4:7]", fused=True)
        ST.flush(0, 14)
        S.endpgm()
        return
    if cfg.get("attn2", False):
        c0 = cvt(QB0, ACC(0, 0), 32); c1 = cvt(QB1, ACC(1, 0), 32)
        s0 = smf(S0, K0, QB0); s1 = smf(S1, K1, QB1)
        for f in c0[:8]: f()
        k1r = kreads(1, K1)
        fill = c0[8:] + k1r + c1
        interleave(S, s0, fill, [8, 1, 8, 1, 8, 6, 6, 6])
        if cfg.get("fused", False):
            S.wait(lgkm=0)
            S.barrier()
        ST.stamp()
        sm0 = softmax(S0, P0, 2); sm1 = softmax(S1, P1, 6)
        v0r = vreads(0, V0); v1r = vreads(1, V1)
        interleave(S, s1, v0r + sm0[:30], [4, 4, 4, 4, 6, 8, 8, 8])
        a_, b_ = sm0[30:], sm1
        for f in v1r[:0]: f()
        i = j = 0
        while i < len(a_) or j < len(b_):
            if i < len(a_): a_[i](); i += 1
            if j < len(b_) and (i >= 10 or i >= len(a_)): b_[j](); j += 1
            if i >= len(a_): break
        interleave(S, pvmf(O0, V0, P0), v1r + b_[j:], 8)
    else:
        for f in cvt(QB0, ACC(0, 0), 32): f()
        interleave(S, smf(S0, K0, QB0), kreads(1, K1) + cvt(QB1, ACC(1, 0), 32), 5)
        if cfg.get("b16", False): S.barrier()
        if cfg.get("fused", False):
            S.wait(lgkm=0)
            S.barrier()
        ST.stamp()
        sm0 = softmax(S0, P0, 2)
        interleave(S, smf(S1, K1, QB1), vreads(0, V0) + sm0[:40], [2, 2, 2, 2, 2, 2, 2, 2])
        for f in sm0[40:]: f()
        sm1 = softmax(S1, P1, 6)
        interleave(S, pvmf(O0, V0, P0), vreads(1, V1) + sm1, 8)
    S.valu("v_lshlrev_b32", "v0", 4, l)
    if cfg.get("fused", False):
        import k2b
        S.salu("s_lshr_b32", "s44", cw, 1)
        S.salu("s_lshl_b32", "s44", "s44", 15)
        S.salu("s_and_b32", "s45", cw, 1)
        S.salu("s_lshl_b32", "s45", "s45", 13)
        S.salu("s_add_u32", "s44", "s44", "s45")
        S.valu("v_add_u32", "v0", "s44", "v0")
        def owrite(otiles, tmp, ib):
            c = []
            for tp in range(4):
                for r2 in range(2):
                    f = 2 * tp + r2
                    d = tmp + 4 * f
                    for i in range(4):
                        c.append(lambda d=d, i=i, tp=tp, r2=r2: S.valu("v_cvt_pk_bf16_f32", v(d + i), v(otiles[tp] + 8 * r2 + 2 * i),
                                                                     v(otiles[tp] + 8 * r2 + 2 * i + 1)))
                    c.append(lambda d=d, f=f: S.ds_write("ds_write_b128", "v0", v(d, 4), (f // 4) * 16384 + ib * 4096 + (f % 4) * 1024))
            return c
        interleave(S, pvmf(O1, V1, P1), owrite(O0, 96, 0), 5)
        for f in owrite(O1, 128, 1): f()
        ST.stamp()
        if not cfg.get("early_srd", True): k2b.p2_srds(S)
        cfg["_probe"] = PR if cfg.get("probe2", False) else None
        k2b.p2_compute(S, cfg, ST, dbg="s[4:7]", fused=True)
        if cfg.get("probe", False):
            S.wait(vm=0)
            S.add(Inst("s_memrealtime s[92:93]", "smem", [], ["s92", "s93"]))
            S.add(Inst("s_getreg_b32 s94, hwreg(HW_REG_XCC_ID)", "salu", [], ["s94"]))
            S.wait(lgkm=0)
            S.salu("s_sub_u32", "s93", "s92", "s96")
            if cfg.get("probe2", False):
                S.salu("s_cmp_lg_u32", "s2", cfg.get("probe_wg", 0))
                S.branch("s_cbranch_scc1", "PRB_N")
                S.salu("s_cmp_lg_u32", "s43", 0)
                S.branch("s_cbranch_scc1", "PRB_N")
                S.valu("v_mov_b32", "v4", 0)
                for i in range(PR.n):
                    S.valu("v_mov_b32", "v2", f"s{PR.regs[i]}")
                    S.buf_store("buffer_store_dword", "v2", "v4", "s[4:7]", "0", 8 + 4 * i)
                    S.nop(2)
                S.valu("v_mov_b32", "v2", "s93")
                S.buf_store("buffer_store_dword", "v2", "v4", "s[4:7]", "0", 8 + 4 * PR.n)
                S.branch("s_branch", "PRB_N")
            S.salu("s_mul_i32", "s44", "s2", 7282)
            S.salu("s_lshr_b32", "s44", "s44", 16)
            S.salu("s_mul_i32", "s45", "s44", 9)
            S.salu("s_cmp_lg_u32", "s45", "s2")
            S.branch("s_cbranch_scc1", "PRB_N")
            S.salu("s_cmp_lg_u32", "s43", 0)
            S.branch("s_cbranch_scc1", "PRB_N")
            S.salu("s_cmp_gt_u32", "s44", 5)
            S.branch("s_cbranch_scc1", "PRB_N")
            S.salu("s_lshl_b32", "s44", "s44", 3)
            S.salu("s_add_u32", "s44", "s44", 8)
            S.valu("v_mov_b32", "v2", "s93")
            S.valu("v_mov_b32", "v3", "s94")
            S.valu("v_mov_b32", "v4", 0)
            S.buf_store("buffer_store_dwordx2", "v[2:3]", "v4", "s[4:7]", "s44")
            S.label("PRB_N")
        ST.flush(0, 14)
        S.endpgm()
        return
    interleave(S, pvmf(O1, V1, P1), ostore(O0, 96, "s70", "s72"), 5)
    for f in ostore(O1, 128, "s71", "s73"): f()
    ST.stamp()
    if cfg.get("stamps", False):
        S.wait(vm=0)
        ST.stamp()
    ST.flush(0, 14)
    S.endpgm()

def gen_k1(cfg):
    P = Stream("k1pro"); k1_prologue(P, cfg)
    P.salu("s_cmp_ge_u32", "s43", 4)
    P.branch("s_cbranch_scc1", "K1_FAST")
    parts = []
    X = Stream(); k1_consumer(X, cfg)
    A = Stream(); A.ins = list(P.ins) + X.ins
    fin = A.finalize()
    if cfg.get("audit"):
        for w in audit(fin): print("AUDIT compute:", w)
    parts.append(render(fin))
    nph = cfg.get("nphase", 1)
    Lc = Stream()
    body = k1_fast(Lc, cfg)
    setup = list(Lc.ins)
    if nph > 1:
        if cfg.get("phase_src", "idx") == "p":
            Lc.salu("s_mov_b32", "s15", "s40")
        elif cfg.get("phase_src") == "xcd":
            Lc.salu("s_and_b32", "s15", "s2", nph - 1)
        else:
            Lc.salu("s_lshr_b32", "s15", "s12", cfg.get("phase_shift", 0))
            Lc.salu("s_and_b32", "s15", "s15", nph - 1)
        for ph in range(1, nph):
            Lc.salu("s_cmp_eq_u32", "s15", ph)
            Lc.branch("s_cbranch_scc1", f"K1_PH{ph}")
    head = list(Lc.ins)
    for ph in range(nph):
        Lc.ins = []
        Stream.sfx = f"_p{ph}"
        ST = Stamper(Lc, cfg.get("stamps", False), 30)
        ST.stamp(); ST.stamp(real=True)
        body(Lc, ph, ST)
        lab = f"K1_PH{ph}"
        A = Stream(); A.ins = list(P.ins) + [Inst("K1_FAST:", "label")] + head + [Inst(lab + ":", "label")] + list(Lc.ins)
        f = A.finalize()
        if cfg.get("audit"):
            i0 = [k for k, i in enumerate(f) if i.kind == "label" and i.text == "K1_FAST:"][0]
            for w in audit(f[i0:]): print("AUDIT loader:", w)
        key = "K1_FAST:" if ph == 0 else lab + ":"
        idx = [k for k, i in enumerate(f) if i.kind == "label" and i.text == key][0]
        parts.append(render(f[idx:]))
    return "\n".join(parts) + "\nK1_DONE:\n    s_endpgm\n"

def gen_k2(cfg):
    S = Stream("k2")
    D = cfg.get("k2_depth", 4)
    R = D + 1
    S.salu("s_cmp_ge_u32", "s2", 256)
    S.branch("s_cbranch_scc1", "K2_DONE")
    if cfg.get("stamps", False):
        S.add(Inst(("s_memrealtime" if cfg.get("allreal") else "s_memtime") + " s[98:99]", "smem", [], ["s98", "s99"]))
    S.smem("s[16:17]", "s[0:1]", 32)
    S.smem("s[18:19]", "s[0:1]", 72)
    S.smem("s[36:37]", "s[0:1]", 80)
    S.smem("s[38:39]", "s[0:1]", 96)
    S.salu("s_and_b32", "s44", "s2", 7)
    S.salu("s_lshr_b32", "s45", "s2", 3)
    S.salu("s_lshr_b32", "s40", "s44", 2)
    S.salu("s_and_b32", "s44", "s44", 3)
    S.salu("s_lshl_b32", "s44", "s44", 2)
    S.salu("s_lshr_b32", "s41", "s45", 3)
    S.salu("s_add_u32", "s41", "s41", "s44")
    S.salu("s_and_b32", "s42", "s45", 7)
    S.valu("v_lshrrev_b32", "v1", 6, "v0")
    S.valu("v_readfirstlane_b32", "s43", "v1")
    S.valu("v_and_b32", "v1", 63, "v0")
    S.salu("s_cmp_eq_u32", "s40", 0)
    S.salu("s_cselect_b64", "s[16:17]", "s[16:17]", "s[18:19]")
    S.salu("s_lshl_b32", "s44", "s42", 7)
    S.salu("s_lshl_b32", "s45", "s43", 19)
    S.salu("s_add_u32", "s44", "s44", "s45")
    make_srd(S, 48, 16, 17, "s44", 4096 * 1024)
    S.salu("s_lshl_b32", "s44", "s40", 23)
    S.salu("s_lshl_b32", "s45", "s41", 19)
    S.salu("s_add_u32", "s44", "s44", "s45")
    S.salu("s_lshl_b32", "s45", "s43", 15)
    S.salu("s_add_u32", "s44", "s44", "s45")
    make_srd(S, 52, 38, 39, "s44", 2 * 32 * 262144)
    S.salu("s_lshl_b32", "s44", "s41", 17)
    S.salu("s_lshl_b32", "s45", "s40", 10)
    S.salu("s_add_u32", "s44", "s44", "s45")
    S.salu("s_lshl_b32", "s45", "s42", 7)
    S.salu("s_add_u32", "s44", "s44", "s45")
    make_srd(S, 56, 36, 37, "s44", 1024 * 2048)
    l = "v1"
    S.valu("v_lshrrev_b32", "v3", 3, l)
    S.valu("v_bfe_u32", "v4", l, 4, 1)
    S.valu("v_lshlrev_b32", "v4", 2, "v4")
    S.valu("v_and_b32", "v5", 7, l)
    S.valu("v_xor_b32", "v4", "v4", "v5")
    S.valu("v_lshlrev_b32", "v4", 4, "v4")
    S.valu("v_lshlrev_b32", "v3", 10, "v3")
    S.valu("v_add_u32", "v2", "v3", "v4")
    S.valu("v_lshlrev_b32", "v3", 4, l)
    S.salu("s_mul_i32", "s46", "s43", R * 2048)
    S.valu("v_bfe_u32", "v6", l, 2, 2)
    S.valu("v_lshrrev_b32", "v7", 5, l)
    S.valu("v_lshlrev_b32", "v7", 2, "v7")
    S.valu("v_add_u32", "v7", "v7", "v6")
    S.valu("v_lshlrev_b32", "v7", 7, "v7")
    S.valu("v_add_u32", "v7", "s46", "v7")
    S.valu("v_bfe_u32", "v8", l, 4, 1)
    S.valu("v_lshlrev_b32", "v8", 5, "v8")
    S.valu("v_add_u32", "v7", "v7", "v8")
    S.valu("v_and_b32", "v8", 3, l)
    S.valu("v_lshlrev_b32", "v8", 3, "v8")
    S.valu("v_add_u32", "v7", "v7", "v8")
    S.valu("v_bfe_u32", "v6", l, 3, 1)
    S.valu("v_lshlrev_b32", "v6", 6, "v6")
    S.valu("v_add_u32", "v4", "v7", "v6")
    S.valu("v_xor_b32", "v6", 64, "v6")
    S.valu("v_add_u32", "v5", "v7", "v6")
    if cfg.get("k2_rot", True):
        S.salu("s_lshl_b32", "s60", "s42", 2)
        S.salu("s_and_b32", "s61", "s41", 3)
        S.salu("s_lshl_b32", "s61", "s61", 3)
        S.salu("s_add_u32", "s60", "s60", "s61")
    else:
        S.salu("s_mov_b32", "s60", 0)
    OB = 16
    NOB = D + 1
    AB = OB + 8 * NOB
    ACC = 128
    assert AB + 16 <= ACC
    ldflags = cfg.get("k2_ldflags", "")
    def issue(n):
        slot = n % R
        fw = cfg.get("k2_wfl0", " nt") if n < 8 else ldflags
        fo = cfg.get("k2_ofl0", "") if n < 4 else ldflags
        S.salu("s_add_u32", "s62", "s60", n)
        S.salu("s_and_b32", "s62", "s62", 31)
        S.salu("s_lshl_b32", "s63", "s62", 14)
        for e in range(2):
            S.salu("s_add_u32", "m0", "s46", slot * 2048 + e * 1024)
            S.salu("s_add_u32", "s47", "s63", e * 8192)
            S.buf_dma("v2", "s[48:51]", "s47", tok=f"w{n}", flags=fw)
        ob = OB + 8 * (n % NOB)
        S.salu("s_lshl_b32", "s63", "s62", 10)
        for ib in range(2):
            S.salu("s_add_u32", "s47", "s63", ib * 262144)
            S.buf_load("buffer_load_dwordx4", v(ob + 4 * ib, 4), "v3", "s[52:55]", "s47", tok=f"o{n}", flags=fo)
    def areads(n):
        slot = n % R
        ab = AB + 8 * (n % 2)
        S.wait_vm_tok(f"w{n}")
        for nt2 in range(2):
            for jj in range(2):
                S.ds_read("ds_read_b64_tr_b16", v(ab + 4 * nt2 + 2 * jj, 2), v(4 + nt2), slot * 2048 + jj * 1024)
    NS = 32
    ST = Stamper(S, cfg.get("stamps", False), 10)
    ST.stamp(); ST.stamp(real=True)
    for n in range(D): issue(n)
    areads(0)
    ST.stamp()
    for n in range(NS):
        ab = AB + 8 * (n % 2); ob = OB + 8 * (n % NOB)
        def mf(nt2, ib):
            S.mfma(v(ACC + 32 * nt2 + 16 * ib, 16), v(ab + 4 * nt2, 4), v(ob + 4 * ib, 4),
                   0 if n == 0 else v(ACC + 32 * nt2 + 16 * ib, 16))
        if n % 4 == 0: ST.stamp()
        mf(0, 0)
        if n + D < NS: issue(n + D)
        mf(0, 1)
        if n + 1 < NS: areads(n + 1)
        mf(1, 0)
        mf(1, 1)
    ST.stamp()
    S.barrier()
    ST.stamp()
    S.salu("s_mul_i32", "s46", "s43", 17408)
    S.valu("v_and_b32", "v6", 31, l)
    S.valu("v_mul_u32_u24", "v6", 272, "v6")
    S.valu("v_lshrrev_b32", "v7", 5, l)
    S.valu("v_lshlrev_b32", "v7", 4, "v7")
    S.valu("v_add_u32", "v6", "v6", "v7")
    S.valu("v_add_u32", "v6", "s46", "v6")
    for nt2 in range(2):
        for ib in range(2):
            for q in range(4):
                S.ds_write("ds_write_b128", "v6", v(ACC + 32 * nt2 + 16 * ib + 4 * q, 4), ib * 32 * 272 + (32 * nt2 + 8 * q) * 4)
    S.wait(lgkm=0)
    S.barrier()
    S.valu("v_lshrrev_b32", "v6", 3, "v0")
    S.valu("v_and_b32", "v7", 7, "v0")
    S.valu("v_mul_u32_u24", "v8", 272, "v6")
    S.valu("v_lshlrev_b32", "v9", 5, "v7")
    S.valu("v_add_u32", "v8", "v8", "v9")
    S.valu("v_add_u32", "v9", 69632, "v8")
    for w in range(8):
        base = "v8" if w < 4 else "v9"
        S.ds_read("ds_read_b128", v(16 + 8 * w, 4), base, (w % 4) * 17408)
        S.ds_read("ds_read_b128", v(16 + 8 * w + 4, 4), base, (w % 4) * 17408 + 16)
    for w in range(1, 8):
        for i in range(8):
            S.valu("v_add_f32", v(16 + i), v(16 + i), v(16 + 8 * w + i))
    for i in range(4):
        S.valu("v_cvt_pk_bf16_f32", v(12 + i), v(16 + 2 * i), v(16 + 2 * i + 1))
    S.valu("v_lshlrev_b32", "v6", 11, "v6")
    S.valu("v_lshlrev_b32", "v7", 4, "v7")
    S.valu("v_add_u32", "v6", "v6", "v7")
    S.buf_store("buffer_store_dwordx4", "v[12:15]", "v6", "s[56:59]")
    if cfg.get("stamps", False):
        S.wait(vm=0)
        ST.stamp(); ST.stamp(real=True)
    ST.flush(1, 11)
    S.endpgm()
    txt = render(S.finalize()) + "\nK2_DONE:\n    s_endpgm\n"
    lds = max(8 * R * 2048, 8 * 17408)
    return txt, lds

def gen_k2b(cfg):
    import k2b
    P = Stream("k2bpro")
    P.salu("s_cmp_ge_u32", "s2", 256)
    P.branch("s_cbranch_scc1", "K2B_DONE")
    if cfg.get("stamps", False):
        P.add(Inst("s_memtime s[98:99]", "smem", [], ["s98", "s99"]))
    P.smem("s[24:25]", "s[0:1]", 32)
    P.smem("s[26:27]", "s[0:1]", 72)
    P.smem("s[36:37]", "s[0:1]", 80)
    P.smem("s[68:69]", "s[0:1]", 88)
    P.smem("s[38:39]", "s[0:1]", 96)
    P.salu("s_and_b32", "s44", "s2", 7)
    P.salu("s_lshr_b32", "s12", "s2", 3)
    P.salu("s_lshr_b32", "s40", "s44", 2)
    P.salu("s_and_b32", "s44", "s44", 3)
    P.salu("s_lshl_b32", "s44", "s44", 2)
    P.salu("s_and_b32", "s41", "s12", 3)
    P.salu("s_add_u32", "s41", "s41", "s44")
    P.salu("s_lshr_b32", "s42", "s12", 2)
    P.valu("v_lshrrev_b32", "v1", 6, "v0")
    P.valu("v_readfirstlane_b32", "s43", "v1")
    P.valu("v_and_b32", "v1", 63, "v0")
    P.salu("s_cmp_eq_u32", "s40", 0)
    P.salu("s_cselect_b64", "s[24:25]", "s[24:25]", "s[26:27]")
    P.salu("s_mov_b32", "s70", 256)
    P.salu("s_mov_b32", "s71", "0x20000")
    k2b.p2_srds(P)
    P.salu("s_and_b32", "s79", "s41", 3)
    P.salu("s_lshl_b32", "s79", "s79", 1)
    P.salu("s_add_u32", "s79", "s79", "s42")
    P.salu("s_and_b32", "s79", "s79", 7)
    if not cfg.get("p2_rot", True): P.salu("s_mov_b32", "s79", 0)
    P.salu("s_or_b32", "s44", "s2", "s43")
    P.salu("s_cmp_lg_u32", "s44", 0)
    P.branch("s_cbranch_scc1", "K2B_NONONCE")
    P.add(Inst("s_memrealtime s[44:45]", "smem", [], ["s44", "s45"]))
    P.wait(lgkm=0)
    P.salu("s_or_b32", "s44", "s44", 1)
    P.valu("v_mov_b32", "v2", "s44")
    P.valu("v_mov_b32", "v3", "s45")
    P.valu("v_mov_b32", "v4", 0)
    P.buf_store("buffer_store_dwordx2", "v[2:3]", "v4", "s[68:71]", flags=" sc1")
    P.label("K2B_NONONCE")
    if cfg.get("clkprobe", False):
        P.add(Inst("s_memtime s[90:91]", "smem", [], ["s90", "s91"]))
        P.add(Inst("s_memrealtime s[92:93]", "smem", [], ["s92", "s93"]))
        P.wait(lgkm=0)
    P.salu("s_cmp_ge_u32", "s43", 4)
    P.branch("s_cbranch_scc1", "K2B_LOAD")
    parts = []
    X = Stream(); ST = Stamper(X, cfg.get("stamps", False), 15)
    k2b.p2_compute(X, cfg, ST)
    if cfg.get("clkprobe", False):
        X.wait(vm=0)
        X.add(Inst("s_memtime s[94:95]", "smem", [], ["s94", "s95"]))
        X.add(Inst("s_memrealtime s[96:97]", "smem", [], ["s96", "s97"]))
        X.wait(lgkm=0)
        X.salu("s_sub_u32", "s94", "s94", "s90")
        X.salu("s_sub_u32", "s96", "s96", "s92")
        X.salu("s_or_b32", "s44", "s2", "s43")
        X.salu("s_cmp_lg_u32", "s44", 0)
        X.branch("s_cbranch_scc1", "K2B_NOPROBE")
        X.valu("v_mov_b32", "v2", "s94")
        X.valu("v_mov_b32", "v3", "s96")
        X.valu("v_mov_b32", "v4", 8)
        X.buf_store("buffer_store_dwordx2", "v[2:3]", "v4", "s[68:71]")
        X.label("K2B_NOPROBE")
    ST.flush(1, 14); X.endpgm()
    A = Stream(); A.ins = list(P.ins) + X.ins
    parts.append(render(A.finalize()))
    X = Stream(); ST = Stamper(X, cfg.get("stamps", False), 30)
    k2b.p2_loader(X, cfg, ST)
    ST.flush(1, 31); X.endpgm()
    A = Stream(); A.ins = list(P.ins) + [Inst("K2B_LOAD:", "label")] + X.ins
    f = A.finalize()
    idx = [k for k, i in enumerate(f) if i.kind == "label" and i.text == "K2B_LOAD:"][0]
    parts.append(render(f[idx:]))
    return "\n".join(parts) + "\nK2B_DONE:\n    s_endpgm\n"

def kernel_wrap(label, body):
    return f""".globl {label}
.p2align 8
.type {label},@function
{label}:
{body}
"""
def desc(label, vgpr, sgpr):
    return f""".p2align 6
.amdhsa_kernel {label}
  .amdhsa_next_free_vgpr {vgpr}
  .amdhsa_next_free_sgpr {sgpr}
  .amdhsa_accum_offset {vgpr}
  .amdhsa_group_segment_fixed_size 0
  .amdhsa_kernarg_size 104
  .amdhsa_user_sgpr_count 2
  .amdhsa_user_sgpr_kernarg_segment_ptr 1
  .amdhsa_system_sgpr_workgroup_id_x 1
.end_amdhsa_kernel
"""

def generate(cfg):
    cfg["_vslot"] = VSLOT
    Stamper.allreal = bool(cfg.get("allreal"))
    if cfg.get("launches") == ["fused"]: cfg["fused"] = True
    k1 = gen_k1(cfg)
    k2, lds2 = gen_k2(cfg)
    hdr = []
    order = cfg.get("launches", ["k1", "k2b"])
    for k in order:
        if k == "k1": hdr.append(f"; @launch kernel=attn_k1_kernel grid=(256,1,1) block=(512,1,1) lds=163840")
        if k == "k2": hdr.append(f"; @launch kernel=attn_k2_kernel grid=(256,1,1) block=(512,1,1) lds={lds2}")
        if k == "fused": hdr.append(f"; @launch kernel=attn_k1_kernel grid=(256,1,1) block=(512,1,1) lds=163840")
        if k == "nop": hdr.append(f"; @launch kernel=attn_nop_kernel grid=(256,1,1) block=(64,1,1) lds=0")
        if k == "k2b": hdr.append(f"; @launch kernel=attn_k2b_kernel grid=(256,1,1) block=(512,1,1) lds=131072")
    txt = "\n".join(hdr) + "\n"
    txt += '.amdgcn_target "amdgcn-amd-amdhsa--gfx950"\n.text\n'
    ks = []
    if "k1" in order or "fused" in order: ks.append(("attn_k1_kernel", k1, 256))
    if "k2" in order: ks.append(("attn_k2_kernel", k2, 192))
    if "k2b" in order: ks.append(("attn_k2b_kernel", gen_k2b(cfg), 256))
    if "nop" in order: ks.append(("attn_nop_kernel", "    s_endpgm\n", 8))
    for (n, b, vg) in ks: txt += kernel_wrap(n, b)
    txt += '.section .rodata,"a"\n'
    for (n, b, vg) in ks: txt += desc(n, vg, 102)
    if cfg.get("single", False):
        txt = txt.replace("; @launch kernel=attn_k1_kernel grid", "; @launch grid").replace("attn_k1_kernel", NAME + "_kernel")
    return txt

if __name__ == "__main__":
    import json
    cfg = {}
    out = f"cdna_kernels/{NAME}.s"
    for a in sys.argv[1:]:
        if a.startswith("-o"): out = a[2:]
        else:
            k, val = a.split("=", 1)
            try: val = json.loads(val)
            except Exception: pass
            cfg[k] = val
    open(out, "w").write(generate(cfg))
    print("wrote", out)
```

```python
from asmlib import *

NS2 = 4
O2 = [0, 16384, 32768, 49152]
W2 = [114688, 147456, 65536, 81920]
PB_OFF = 32 << 20
FL_OFF = 56 << 20

def interleave(S, mf, fill, per_gap, lead=0):
    fi = 0
    for _ in range(min(lead, len(fill))):
        fill[fi](); fi += 1
    for k, m in enumerate(mf):
        m()
        n = per_gap[k] if isinstance(per_gap, (list, tuple)) else per_gap
        for _ in range(n):
            if fi < len(fill):
                fill[fi](); fi += 1
    while fi < len(fill):
        fill[fi](); fi += 1

def add64(S, dlo, plo, phi, off):
    S.salu("s_add_u32", s(dlo), s(plo), off)
    S.salu("s_addc_u32", s(dlo + 1), s(phi), 0)

def srd(S, r, plo, phi, off, total):
    add64(S, r, plo, phi, off)
    if isinstance(off, int): S.salu("s_mov_b32", s(r + 2), total - off)
    else: S.salu("s_sub_u32", s(r + 2), total, off)
    S.salu("s_mov_b32", s(r + 3), "0x20000")

def p2_srds(S):
    S.salu("s_lshr_b32", "s80", "s41", 2)
    S.salu("s_and_b32", "s81", "s41", 3)
    S.salu("s_lshl_b32", "s44", "s80", 20)
    S.salu("s_lshl_b32", "s45", "s81", 8)
    S.salu("s_add_u32", "s44", "s44", "s45")
    srd(S, 48, 24, 25, "s44", 4096 * 1024)
    S.salu("s_lshl_b32", "s44", "s40", 23)
    S.salu("s_lshl_b32", "s45", "s42", 20)
    S.salu("s_add_u32", "s44", "s44", "s45")
    S.salu("s_lshl_b32", "s45", "s80", 16)
    S.salu("s_add_u32", "s44", "s44", "s45")
    srd(S, 52, 38, 39, "s44", 16 << 20)
    S.salu("s_lshl_b32", "s82", "s40", 3)
    S.salu("s_add_u32", "s82", "s82", "s42")
    S.salu("s_lshl_b32", "s82", "s82", 2)
    S.salu("s_add_u32", "s82", "s82", "s81")
    S.salu("s_lshl_b32", "s44", "s82", 18)
    S.salu("s_add_u32", "s44", "s44", PB_OFF)
    srd(S, 56, 38, 39, "s44", PB_OFF + (16 << 20))
    S.salu("s_lshl_b32", "s44", "s82", 7)
    S.salu("s_add_u32", "s44", "s44", FL_OFF)
    srd(S, 60, 38, 39, "s44", FL_OFF + (128 << 10))
    S.salu("s_lshl_b32", "s44", "s42", 18)
    S.salu("s_lshl_b32", "s45", "s40", 10)
    S.salu("s_add_u32", "s44", "s44", "s45")
    S.salu("s_lshl_b32", "s45", "s81", 8)
    S.salu("s_add_u32", "s44", "s44", "s45")
    srd(S, 64, 36, 37, "s44", 1024 * 2048)

def p2_loader_setup(S, cfg, rot_sgpr, fusedorder=False):
    L = "v1"; t0, t1, t2 = "v2", "v3", "v4"
    S.salu("s_sub_u32", "s44", "s43", 4)
    S.valu("v_lshrrev_b32", t2, 4, L)
    S.valu("v_and_b32", t1, 15, L)
    S.valu("v_lshlrev_b32", t0, 2, t2)
    S.valu("v_xor_b32", t1, t1, t0)
    S.valu("v_lshlrev_b32", t1, 4, t1)
    S.valu("v_lshlrev_b32", t0, 10, t2)
    S.valu("v_add_u32", "v10", t0, t1)
    S.salu("s_lshl_b32", "s45", "s44", 14)
    S.valu("v_add_u32", "v10", "s45", "v10")
    S.valu("v_lshlrev_b32", "v11", 4, L)
    S.salu("s_lshl_b32", "s45", "s44", 18)
    S.valu("v_add_u32", "v11", "s45", "v11")
    S.salu("s_lshl_b32", "s47", "s44", 12)
    fw0 = cfg.get("p2_wfl0", ""); fw = cfg.get("p2_wfl", "")
    fo0 = cfg.get("p2_ofl0", ""); fo = cfg.get("p2_ofl", "")
    def issue(st, part="wo"):
        j, half = st // 2, st % 2
        if fusedorder:
            add = cfg.get("order2", [0, 1, 2, 4, 6, 3, 5, 7])[j]
        else:
            add = j
        S.salu("s_add_u32", "s13", rot_sgpr, add)
        S.salu("s_and_b32", "s13", "s13", 7)
        slot = st % NS2
        if "w" in part:
            S.salu("s_lshl_b32", "s14", "s13", 17)
            for ii in range(4):
                S.salu("s_add_u32", "m0", "s47", W2[slot] + ii * 1024)
                S.salu("s_add_u32", "s46", "s14", half * 65536 + ii * 4096)
                S.buf_dma("v10", "s[48:51]", "s46", tok=f"s{st}", flags=fw0 if st < 2 else fw)
        if "o" in part:
            S.salu("s_lshl_b32", "s14", "s13", 13)
            for ii in range(4):
                S.salu("s_add_u32", "m0", "s47", O2[slot] + ii * 1024)
                S.salu("s_add_u32", "s46", "s14", half * 4096 + ii * 1024)
                S.buf_dma("v11", "s[52:55]", "s46", tok=f"s{st}", flags=fo0 if st < 4 else fo)
    return issue

def p2_loader(S, cfg, ST, rot_sgpr="s79"):
    issue = p2_loader_setup(S, cfg, rot_sgpr)
    issue(0); issue(1)
    S.wait_vm_tok("s0")
    ST.stamp()
    S.barrier()
    issue(2); issue(3)
    for st in range(16):
        if st + 1 < 16: S.wait_vm_tok(f"s{st+1}")
        ST.stamp()
        S.barrier()
        if st + NS2 < 16: issue(st + NS2)

FLO_OFF = FL_OFF + (1 << 20)

def spin_nonce(S, dbg, lab, vr=8, vz="v10"):
    S.salu("s_mov_b32", "s83", 0)
    S.label(lab)
    S.valu("v_readfirstlane_b32", "s84", v(vr))
    S.valu("v_readfirstlane_b32", "s85", v(vr + 1))
    S.nop(3)
    S.salu("s_or_b32", "s86", "s84", "s85")
    S.salu("s_cmp_lg_u32", "s86", 0)
    S.branch("s_cbranch_scc1", lab + "_OK")
    S.salu("s_add_u32", "s83", "s83", 1)
    S.salu("s_cmp_gt_u32", "s83", 200000)
    S.branch("s_cbranch_scc1", lab + "_OK")
    S.raw("s_sleep 4")
    S.buf_load("buffer_load_dwordx2", v(vr, 2), vz, dbg, flags=" sc1")
    S.wait(vm=0)
    S.branch("s_branch", lab)
    S.label(lab + "_OK")

def flag_store(S, srd_, off_sgpr, vz, vn, L="v1", fl=" sc1"):
    S.valu("v_cmp_eq_u32", "vcc", 0, L)
    S.salu("s_mov_b64", "s[86:87]", "exec")
    S.add(Inst("s_and_b64 exec, exec, vcc", "salu", ["vcc"], ["exec"]))
    S.buf_store("buffer_store_dwordx2", vn, vz, srd_, off_sgpr, flags=fl)
    S.add(Inst("s_mov_b64 exec, s[86:87]", "salu", [], ["exec"]))

def poll(S, lab, srd_, voff, soff, vtmp, vn, sleep=1, raw=False):
    S.salu("s_mov_b32", "s83", 0)
    S.label(lab)
    if raw:
        S.raw("s_nop 4")
        S.raw(f"buffer_load_dwordx2 {vtmp}, {voff}, {srd_}, {soff} offen sc1")
        S.raw("s_waitcnt vmcnt(0)")
    else:
        S.buf_load("buffer_load_dwordx2", vtmp, voff, srd_, soff, flags=" sc1")
        S.wait(vm=0)
    S.valu("v_cmp_eq_u64", "vcc", vtmp, vn)
    S.nop(4)
    S.add(Inst("s_cmp_eq_u64 vcc, exec", "salu", ["vcc"], ["scc"]))
    S.branch("s_cbranch_scc1", lab + "_OK")
    S.salu("s_add_u32", "s83", "s83", 1)
    S.salu("s_cmp_gt_u32", "s83", 200000)
    S.branch("s_cbranch_scc1", lab + "_OK")
    S.raw(f"s_sleep {sleep}")
    S.branch("s_branch", lab)
    S.label(lab + "_OK")

def raw_flag(S, off_sgpr):
    S.raw("v_cmp_eq_u32 vcc, 0, v1")
    S.raw("s_mov_b64 s[86:87], exec")
    S.raw("s_nop 3")
    S.raw("s_and_b64 exec, exec, vcc")
    S.raw(f"buffer_store_dwordx2 v[16:17], v12, s[8:11], {off_sgpr} offen sc1")
    S.raw("s_mov_b64 exec, s[86:87]")

def loader_attn_setup(S, cfg):
    import math, struct
    l = "v1"
    VS = cfg["_vslot"]
    S.salu("s_sub_u32", "s44", "s43", 4)
    S.salu("s_mov_b32", "s45", VS[0])
    for c in range(1, 4):
        S.salu("s_cmp_eq_u32", "s44", c)
        S.salu("s_cselect_b32", "s45", VS[c], "s45")
    S.valu("v_bfe_u32", "v189", l, 2, 2)
    S.valu("v_lshrrev_b32", "v190", 5, l)
    S.valu("v_lshlrev_b32", "v190", 2, "v190")
    S.valu("v_add_u32", "v190", "v190", "v189")
    S.valu("v_lshlrev_b32", "v190", 8, "v190")
    S.valu("v_add_u32", "v190", "s45", "v190")
    S.valu("v_bfe_u32", "v191", l, 4, 1)
    S.valu("v_lshlrev_b32", "v191", 5, "v191")
    S.valu("v_add_u32", "v190", "v190", "v191")
    S.valu("v_and_b32", "v191", 3, l)
    S.valu("v_lshlrev_b32", "v191", 3, "v191")
    S.valu("v_add_u32", "v190", "v190", "v191")
    S.valu("v_lshlrev_b32", "v189", 6, "v189")
    for tp in range(4):
        S.valu("v_xor_b32", v(184 + tp), tp << 6, "v189")
        S.valu("v_add_u32", v(184 + tp), v(184 + tp), "v190")
    S.valu("v_lshlrev_b32", "v188", 4, l)
    S.salu("s_lshr_b32", "s45", "s44", 1)
    S.salu("s_lshl_b32", "s45", "s45", 15)
    S.salu("s_and_b32", "s46", "s44", 1)
    S.salu("s_lshl_b32", "s46", "s46", 13)
    S.salu("s_add_u32", "s45", "s45", "s46")
    S.valu("v_add_u32", "v188", "s45", "v188")
    c = (128 ** -0.5) * math.log2(math.e)
    S.salu("s_mov_b32", "s76", hex(struct.unpack("<I", struct.pack("<f", c))[0]))

def loader_attn_vreads(S, cfg):
    VF = 144
    for u in range(2):
        for tp in range(4):
            for jj in range(2):
                S.ds_read("ds_read_b64_tr_b16", v(VF + 4 * (2 * tp + u) + 2 * jj, 2), v(184 + tp), 8192 + u * 4096 + jj * 2048)

def loader_attn(S, cfg):
    SA, VF, PB, OA, OP = 128, 144, 176, 192, 96
    a = lambda *x, **k: S.valu(*x, **k)
    S.barrier()
    for i in range(4):
        S.ds_read("ds_read_b128", v(SA + 4 * i, 4), "v188", 4096 + i * 1024)
    acc = SA
    m, m2, t, t2 = "v180", "v181", "v182", "v183"
    m, m2, t, t2 = "v189", "v190", "v191", "v9"
    a("v_max3_f32", m, v(acc), v(acc + 1), v(acc + 2))
    a("v_max3_f32", m2, v(acc + 3), v(acc + 4), v(acc + 5))
    a("v_max3_f32", t, v(acc + 6), v(acc + 7), v(acc + 8))
    a("v_max3_f32", t2, v(acc + 9), v(acc + 10), v(acc + 11))
    a("v_max3_f32", m, m, v(acc + 12), v(acc + 13))
    a("v_max3_f32", m2, m2, v(acc + 14), v(acc + 15))
    a("v_max3_f32", m, m, t, t2)
    a("v_max_f32", m, m, m2)
    a("v_mov_b32", m2, m)
    a("v_permlane32_swap_b32", m2, m)
    a("v_max_f32", m, m, m2)
    a("v_mul_f32", m, "s76", m)
    for r in range(16): a("v_fma_f32", v(acc + r), v(acc + r), "s76", "-" + m)
    for r in range(16): a("v_exp_f32", v(acc + r), v(acc + r))
    a("v_add_f32", t, v(acc), v(acc + 1))
    a("v_add_f32", t2, v(acc + 2), v(acc + 3))
    a("v_add_f32", m, v(acc + 4), v(acc + 5))
    a("v_add_f32", m2, v(acc + 6), v(acc + 7))
    for r in range(8, 16, 4):
        a("v_add_f32", t, t, v(acc + r))
        a("v_add_f32", t2, t2, v(acc + r + 1))
        a("v_add_f32", m, m, v(acc + r + 2))
        a("v_add_f32", m2, m2, v(acc + r + 3))
    a("v_add_f32", t, t, t2)
    a("v_add_f32", m, m, m2)
    a("v_add_f32", t, t, m)
    a("v_mov_b32", t2, t)
    a("v_permlane32_swap_b32", t2, t)
    a("v_add_f32", t, t, t2)
    a("v_rcp_f32", t, t)
    for r in range(8):
        a("v_mul_f32", v(acc + 2 * r), v(acc + 2 * r), t)
        a("v_mul_f32", v(acc + 2 * r + 1), v(acc + 2 * r + 1), t)
        a("v_cvt_pk_bf16_f32", v(PB + r), v(acc + 2 * r), v(acc + 2 * r + 1))
    def pv(tp, u): return lambda: S.mfma(v(OA + 16 * tp, 16), v(VF + 4 * (2 * tp + u), 4), v(PB + 4 * u, 4), 0 if u == 0 else v(OA + 16 * tp, 16))
    for f in (pv(0, 0), pv(1, 0), pv(0, 1), pv(1, 1), pv(2, 0), pv(3, 0), pv(2, 1), pv(3, 1)): f()
    for tp in range(4):
        for r2 in range(2):
            f = 2 * tp + r2
            for i in range(4):
                a("v_cvt_pk_bf16_f32", v(OP + 4 * f + i), v(OA + 16 * tp + 8 * r2 + 2 * i), v(OA + 16 * tp + 8 * r2 + 2 * i + 1))
            S.ds_write("ds_write_b128", "v188", v(OP + 4 * f, 4), (f // 4) * 16384 + 4096 + (f % 4) * 1024)
    S.wait(lgkm=0)

def loader_final(S, cfg, ST):
    l = "v1"
    S.salu("s_sub_u32", "s91", "s43", 4)
    S.valu("v_lshlrev_b32", "v11", 4, l)
    for i in range(3):
        S.salu("s_add_u32", "s45", "s80", i + 1)
        S.salu("s_and_b32", "s45", "s45", 3)
        S.salu("s_lshl_b32", "s46", "s80", 2)
        S.salu("s_add_u32", "s45", "s45", "s46")
        S.salu("s_lshl_b32", "s45", "s45", 2)
        S.salu("s_add_u32", "s45", "s45", "s91")
        S.salu("s_lshl_b32", f"s{88 + i}", "s45", 12)
    S.valu("v_and_b32", "v10", 31, l)
    S.valu("v_lshlrev_b32", "v10", 11, "v10")
    S.valu("v_lshrrev_b32", "v12", 5, l)
    S.valu("v_lshlrev_b32", "v12", 4, "v12")
    S.valu("v_add_u32", "v10", "v10", "v12")
    S.salu("s_and_b32", "s44", "s91", 1)
    S.salu("s_lshl_b32", "s44", "s44", 1)
    S.salu("s_and_b32", "s45", "s80", 1)
    S.salu("s_add_u32", "s44", "s44", "s45")
    S.salu("s_lshl_b32", "s44", "s44", 16)
    S.salu("s_lshr_b32", "s45", "s91", 1)
    S.salu("s_lshl_b32", "s45", "s45", 7)
    S.salu("s_add_u32", "s44", "s44", "s45")
    S.salu("s_lshr_b32", "s45", "s80", 1)
    S.salu("s_lshl_b32", "s45", "s45", 6)
    S.salu("s_add_u32", "s95", "s44", "s45")
    S.valu("v_lshlrev_b32", "v13", 4, l)
    S.salu("s_lshl_b32", "s45", "s91", 12)
    S.valu("v_add_u32", "v13", "s45", "v13")
    S.wait(vm=0)
    D = 128
    T = "v16"
    late_bx = cfg.get("late_bx", False)
    if not late_bx:
        S.barrier()
        for i in range(4):
            S.ds_read("ds_read_b128", v(64 + 4 * i, 4), "v13", i * 1024)
        S.raw(f"s_sleep {cfg.get('x_first', 12)}")
    ST.stamp()
    S.salu("s_mov_b32", "s83", 0)
    S.salu("s_mov_b32", "s94", 0)
    S.label("LF_XP")
    S.raw("s_nop 4")
    for i in range(3):
        S.raw(f"s_bitcmp1_b32 s94, {i}")
        S.raw(f"s_cbranch_scc1 LF_XL{i}")
        for k_ in range(3):
            S.raw(f"buffer_load_dwordx4 v[{D + 12 * i + 4 * k_}:{D + 12 * i + 4 * k_ + 3}], v11, s[56:59], s{88 + i} offen offset:{k_ * 1024} sc1")
        S.label(f"LF_XL{i}")
    S.raw("s_waitcnt vmcnt(0)")
    for i in range(3):
        S.raw(f"s_bitcmp1_b32 s94, {i}")
        S.raw(f"s_cbranch_scc1 LF_XC{i}")
        S.raw(f"v_cmp_eq_u32 vcc, {T}, v{D + 12 * i + 3}")
        S.raw(f"v_cmp_eq_u32 s[86:87], {T}, v{D + 12 * i + 7}")
        S.raw(f"v_cmp_eq_u32 s[92:93], {T}, v{D + 12 * i + 11}")
        S.raw("s_nop 4")
        S.raw("s_and_b64 vcc, vcc, s[86:87]")
        S.raw("s_and_b64 vcc, vcc, s[92:93]")
        S.raw("s_cmp_eq_u64 vcc, exec")
        S.raw(f"s_cbranch_scc0 LF_XC{i}")
        S.raw(f"s_bitset1_b32 s94, {i}")
        S.label(f"LF_XC{i}")
    S.raw("s_cmp_eq_u32 s94, 7")
    S.raw("s_cbranch_scc1 LF_DONE")
    S.raw("s_add_u32 s83, s83, 1")
    S.raw("s_cmp_gt_u32 s83, 200000")
    S.raw("s_cbranch_scc1 LF_DONE")
    S.raw(f"s_sleep {cfg.get('x_sleep', 2)}")
    S.raw("s_branch LF_XP")
    S.label("LF_DONE")
    ST.stamp()
    S.salu("s_mov_b32", "s46", "0xffff0000")
    pos = [0, 1, 2, 4, 5, 6, 8, 9]
    A = 48
    for k_ in range(8):
        src = v(D + pos[k_])
        S.valu("v_lshlrev_b32", v(A + 2 * k_), 16, src)
        S.valu("v_and_b32", v(A + 2 * k_ + 1), "s46", src)
    for i in (1, 2):
        for k_ in range(8):
            src = v(D + 12 * i + pos[k_])
            S.valu("v_lshlrev_b32", "v18", 16, src)
            S.valu("v_and_b32", "v19", "s46", src)
            S.valu("v_add_f32", v(A + 2 * k_), v(A + 2 * k_), "v18")
            S.valu("v_add_f32", v(A + 2 * k_ + 1), v(A + 2 * k_ + 1), "v19")
    if late_bx:
        S.barrier()
        for i in range(4):
            S.ds_read("ds_read_b128", v(64 + 4 * i, 4), "v13", i * 1024)
    for k_ in range(16):
        S.valu("v_add_f32", v(A + k_), v(A + k_), v(64 + k_))
    for k_ in range(8):
        S.valu("v_cvt_pk_bf16_f32", v(20 + k_), v(A + 2 * k_), v(A + 2 * k_ + 1))
    S.buf_store("buffer_store_dwordx4", "v[20:23]", "v10", "s[64:67]", "s95", 0, flags=cfg.get("outfl", ""))
    S.buf_store("buffer_store_dwordx4", "v[24:27]", "v10", "s[64:67]", "s95", 32, flags=cfg.get("outfl", ""))
    ST.stamp()

def p2_loader_fused(S, cfg, ST):
    L = "v1"
    early = cfg.get("early_bs", False)
    if early:
        if cfg.get("attn3", False): loader_attn_setup(S, cfg)
        S.wait(lgkm=0)
        S.barrier()
        if cfg.get("attn3", False): loader_attn_vreads(S, cfg)
    S.salu("s_lshl_b32", "s44", "s40", 2)
    S.salu("s_add_u32", "s44", "s44", "s80")
    S.salu("s_lshl_b32", "s44", "s44", 3)
    S.salu("s_add_u32", "s44", "s44", "s42")
    S.salu("s_lshl_b32", "s44", "s44", 8)
    S.salu("s_add_u32", "s44", "s44", FLO_OFF)
    srd(S, 8, 38, 39, "s44", FLO_OFF + (256 << 10))
    S.salu("s_lshl_b32", "s79", "s81", 1)
    issue = p2_loader_setup(S, cfg, "s79", True)
    issue(0, "w"); issue(1, "w")
    S.valu("v_mov_b32", "v12", 0)
    S.buf_load("buffer_load_dwordx2", "v[14:15]", "v12", "s[4:7]", flags=" sc1", tok="nonce")
    S.valu("v_and_b32", "v18", 15, L)
    S.valu("v_lshlrev_b32", "v18", 3, "v18")
    S.valu("v_lshlrev_b32", "v19", 4, L)
    S.salu("s_sub_u32", "s44", "s43", 4)
    S.salu("s_lshl_b32", "s45", "s44", 12)
    S.valu("v_add_u32", "v20", "s45", "v19")
    S.salu("s_lshl_b32", "s15", "s81", 14)
    S.salu("s_lshl_b32", "s45", "s44", 18)
    S.salu("s_add_u32", "s15", "s15", "s45")
    S.salu("s_lshl_b32", "s88", "s81", 2)
    S.salu("s_add_u32", "s88", "s88", "s44")
    S.salu("s_lshl_b32", "s88", "s88", 3)
    S.salu("s_add_u32", "s89", "s88", 128)
    S.salu("s_mov_b32", "s90", 128)
    S.valu("v_mov_b32", "v21", 131072)
    def wg_poll(lab, soff, val, backup=False, foff="s88", final=True):
        S.salu("s_cmp_lg_u32", "s43", 4)
        S.branch("s_cbranch_scc1", lab + "_W")
        S.salu("s_mov_b32", "s83", 0)
        S.label(lab)
        S.raw("s_nop 4")
        S.raw(f"buffer_load_dwordx2 v[14:15], v18, s[8:11], {soff} offen sc1")
        S.raw("s_waitcnt vmcnt(0)")
        S.valu("v_cmp_eq_u64", "vcc", "v[14:15]", "v[16:17]")
        S.nop(4)
        S.add(Inst("s_cmp_eq_u64 vcc, exec", "salu", ["vcc"], ["scc"]))
        S.branch("s_cbranch_scc1", lab + "_OK")
        S.salu("s_add_u32", "s83", "s83", 1)
        if backup:
            S.salu("s_cmp_lg_u32", "s83", cfg.get("backup_after", 8))
            S.branch("s_cbranch_scc1", lab + "_NB")
            raw_flag(S, foff)
            S.label(lab + "_NB")
        S.salu("s_cmp_gt_u32", "s83", 200000)
        S.branch("s_cbranch_scc1", lab + "_OK")
        S.raw(f"s_sleep {cfg.get('o_sleep', 4)}")
        S.branch("s_branch", lab)
        S.label(lab + "_OK")
        S.valu("v_mov_b32", "v22", val)
        S.ds_write("ds_write_b32", "v21", "v22")
        S.wait(lgkm=0)
        S.branch("s_branch", lab + "_D")
        S.label(lab + "_W")
        S.salu("s_mov_b32", "s83", 0)
        S.label(lab + "_L")
        S.ds_read("ds_read_b32", "v22", "v21")
        S.wait(lgkm=0)
        S.valu("v_readfirstlane_b32", "s86", "v22")
        S.nop(3)
        S.salu("s_cmp_ge_u32", "s86", val)
        S.branch("s_cbranch_scc1", lab + "_D")
        S.salu("s_add_u32", "s83", "s83", 1)
        if backup:
            S.salu("s_cmp_lg_u32", "s83", cfg.get("backup_after_l", 40))
            S.branch("s_cbranch_scc1", lab + "_NB2")
            raw_flag(S, foff)
            S.label(lab + "_NB2")
        S.salu("s_cmp_gt_u32", "s83", 4000000)
        S.branch("s_cbranch_scc1", lab + "_D")
        S.raw("s_sleep 1")
        S.branch("s_branch", lab + "_L")
        S.label(lab + "_D")
        if backup and final:
            raw_flag(S, foff)
    ST.stamp()
    if not early:
        S.wait(lgkm=0)
        if cfg.get("attn3", False):
            loader_attn_setup(S, cfg)
        S.barrier()
        if cfg.get("attn3", False): loader_attn_vreads(S, cfg)
    if cfg.get("attn3", False):
        loader_attn(S, cfg)
    S.wait(vm=0)
    spin_nonce(S, "s[4:7]", "FL_NONCE", 14, "v12")
    S.valu("v_mov_b32", "v16", "s84")
    S.valu("v_mov_b32", "v17", "s85")
    S.barrier()
    ST.stamp(real=cfg.get("realst", False))
    S.valu("v_mov_b32", "v22", 0)
    S.ds_write("ds_write_b32", "v21", "v22")
    S.ds_write("ds_write_b64", "v21", "v[16:17]", 8)
    if not (cfg.get("stfirst", False) or cfg.get("split2", False)):
        issue(2, "w"); issue(3, "w")
    stf = cfg.get("stflags", " sc1")
    for hh in range(2):
        for f in range(8):
            S.ds_read("ds_read_b128", v(32 + 32 * hh + 4 * f, 4), "v20", (2 * hh + f // 4) * 16384 + (f % 4) * 1024)
    def stores(hh, fs):
        for f in fs:
            S.salu("s_add_u32", "s46", "s15", hh * 8192 + (f // 4) * 4096)
            S.buf_store("buffer_store_dwordx4", v(32 + 32 * hh + 4 * f, 4), "v19", "s[52:55]", "s46", (f % 4) * 1024, flags=stf, tok=f"ost{hh}")
    if cfg.get("split2", False):
        fast = cfg.get("fastflag", False)
        stores(0, range(8))
        issue(2, "w"); issue(3, "w")
        for st in range(16):
            if st == 3:
                S.wait_vm_tok("ost0")
                ST.stamp(real=cfg.get("realst", False))
                flag_store(S, "s[8:11]", "s88", "v12", "v[16:17]", fl="" if fast else " sc1")
                stores(1, range(8))
                wg_poll("FL_POLL0", "0", 1, backup=fast, foff="s88", final=False)
                ST.stamp(real=cfg.get("realst", False))
                S.wait_vm_tok("ost1")
                flag_store(S, "s[8:11]", "s89", "v12", "v[16:17]", fl="" if fast else " sc1")
                issue(4); issue(5); issue(6)
                if fast:
                    raw_flag(S, "s88")
            if st + 1 < 16: S.wait_vm_tok(f"s{st+1}")
            if st == 0: S.wait(lgkm=0)
            ST.stamp()
            S.barrier()
            if st == 6:
                wg_poll("FL_POLL1", "s90", 2, backup=fast, foff="s89", final=False)
            if st >= 3 and st + NS2 < 16: issue(st + NS2)
            if st == 6 and fast: raw_flag(S, "s89")
        return
    if cfg.get("nosplit", False):
        pn = cfg.get("o_pacen", [6, 5, 5])
        allst = [(0, f) for f in range(8)] + [(1, f) for f in range(8)]
        c = 0
        for st in range(16):
            if st < 3:
                for (hh, f) in allst[c:c + pn[st]]: stores(hh, [f])
                c += pn[st]
            if st == 0 and cfg.get("stfirst", False):
                issue(2, "w"); issue(3, "w")
            if st == 3:
                S.wait_vm_tok("ost1")
                ST.stamp(real=cfg.get("realst", False))
                fast = cfg.get("fastflag", False)
                flag_store(S, "s[8:11]", "s88", "v12", "v[16:17]", fl="" if fast else " sc1")
                if fast == "late":
                    pass
                wg_poll("FL_POLL0", "0", 1, backup=fast, final=False)
                ST.stamp(real=cfg.get("realst", False))
                issue(4); issue(5); issue(6)
                if fast: raw_flag(S, "s88")
            if st + 1 < 16: S.wait_vm_tok(f"s{st+1}")
            if st == 0: S.wait(lgkm=0)
            ST.stamp()
            S.barrier()
            if st >= 3 and st + NS2 < 16: issue(st + NS2)
        if cfg.get("xload", False): loader_final(S, cfg, ST)
        return
    p0 = cfg.get("o_pace0", [3, 3, 2])
    p1 = cfg.get("o_pace1", [3, 3, 2])
    c0 = c1 = 0
    for st in range(16):
        if st < 3:
            stores(0, range(c0, c0 + p0[st])); c0 += p0[st]
        if st == 3:
            S.wait_vm_tok("ost0")
            ST.stamp()
            flag_store(S, "s[8:11]", "s88", "v12", "v[16:17]")
            wg_poll("FL_POLL0", "0", 1)
            ST.stamp()
            issue(4); issue(5); issue(6)
            stores(1, range(c1, c1 + p1[0])); c1 += p1[0]
        if st + 1 < 16: S.wait_vm_tok(f"s{st+1}")
        if st == 0: S.wait(lgkm=0)
        ST.stamp()
        S.barrier()
        if st == 5:
            S.wait_vm_tok("ost1")
            flag_store(S, "s[8:11]", "s89", "v12", "v[16:17]")
        if st == 6:
            wg_poll("FL_POLL1", "s90", 2)
            ST.stamp()
        if st >= 3 and st + NS2 < 16: issue(st + NS2)
        if st in (3, 4):
            stores(1, range(c1, c1 + p1[st - 2])); c1 += p1[st - 2]
    assert c0 == 8 and c1 == 8

def p2_compute(S, cfg, ST, dbg="s[68:71]", fused=False):
    cw = "s43"; l = "v1"
    T = [f"v{n}" for n in range(16, 24)]
    hh, gb, kx, c4, t0, t1, t2, t3 = T
    S.valu("v_lshrrev_b32", hh, 5, l)
    S.valu("v_bfe_u32", gb, l, 4, 1)
    S.valu("v_bfe_u32", kx, l, 2, 2)
    S.valu("v_and_b32", c4, 3, l)
    S.valu("v_and_b32", t0, 1, c4)
    S.valu("v_lshlrev_b32", t0, 4, t0)
    S.valu("v_lshrrev_b32", t1, 1, c4)
    S.valu("v_lshlrev_b32", t1, 3, t1)
    S.valu("v_or_b32", t0, t0, t1)
    S.valu("v_lshlrev_b32", t1, 5, gb)
    S.valu("v_or_b32", t0, t0, t1)
    S.valu("v_lshlrev_b32", t1, 2, hh)
    S.valu("v_add_u32", t1, t1, kx)
    S.valu("v_lshlrev_b32", t1, 8, t1)
    S.valu("v_add_u32", t0, t0, t1)
    S.salu("s_lshr_b32", "s44", cw, 1)
    S.salu("s_lshl_b32", "s44", "s44", 1)
    for a in range(2):
        S.valu("v_add_u32", t1, "s44", kx) if False else None
        S.salu("s_add_u32", "s45", "s44", a)
        S.valu("v_xor_b32", t1, "s45", kx)
        S.valu("v_lshlrev_b32", t1, 6, t1)
        S.valu("v_add_u32", v(2 + a), t0, t1)
        S.valu("v_add_u32", v(2 + a), 65536, v(2 + a))
        S.valu("v_add_u32", v(4 + a), 65536, v(2 + a))
    S.valu("v_lshlrev_b32", t0, 4, l)
    S.salu("s_and_b32", "s44", cw, 1)
    S.salu("s_lshl_b32", "s44", "s44", 13)
    S.valu("v_add_u32", "v6", "s44", t0)
    AB = [16, 24]; BB = [32, 40]; ACC = lambda a, b: 64 + 16 * (2 * a + b)
    def reads(ks):
        st, sk = ks // 4, ks % 4
        slot = st % NS2
        wrel = W2[slot] - 65536; hi = wrel // 65536; lo = wrel % 65536
        buf = ks % 2
        r = []
        def rb(b): return lambda: S.ds_read("ds_read_b128", v(BB[buf] + 4 * b, 4), "v6", O2[slot] + b * 4096 + sk * 1024)
        def ra(a, jj): return lambda: S.ds_read("ds_read_b64_tr_b16", v(AB[buf] + 4 * a + 2 * jj, 2), v(2 + a + 2 * hi), lo + sk * 4096 + jj * 2048)
        return [rb(0), ra(0, 0), ra(0, 1), rb(1), ra(1, 0), ra(1, 1)]
    def mf(ks):
        buf = ks % 2
        return [lambda a=a, b=b: S.mfma(v(ACC(a, b), 16), v(AB[buf] + 4 * a, 4), v(BB[buf] + 4 * b, 4), 0 if ks == 0 else v(ACC(a, b), 16))
                for (a, b) in ((0, 0), (0, 1), (1, 0), (1, 1))]
    ST.stamp()
    if fused: S.wait(lgkm=0)
    S.barrier()
    ST.stamp()
    PR = cfg.get("_probe")
    if PR: PR.mark()
    for f in reads(0): f()
    for ks in range(64):
        if ks % 4 == 3:
            S.wait(lgkm=0)
            S.barrier()
            ST.stamp()
            if PR and ks in (11, 15): PR.mark()
        fill = reads(ks + 1) if ks + 1 < 64 else []
        interleave(S, mf(ks), fill, 2)
    if PR: PR.mark()
    if cfg.get("xtag", False) and fused:
        ST.stamp()
        S.valu("v_mov_b32", "v10", 131072)
        S.ds_read("ds_read_b64", "v[8:9]", "v10", 8)
        S.valu("v_lshlrev_b32", "v11", 4, l)
        S.salu("s_lshl_b32", "s44", "s80", 2)
        S.salu("s_add_u32", "s44", "s44", cw)
        S.salu("s_lshl_b32", "s44", "s44", 12)
        S.wait(lgkm=0)
        for q in range(4):
            S.salu("s_cmp_eq_u32", "s80", q)
            S.branch("s_cbranch_scc1", f"P2_OWN{q}")
            S.salu("s_add_u32", "s45", "s44", q * 65536)
            S.nop(7)
            R = 128 + 12 * q
            pos = [0, 1, 2, 4, 5, 6, 8, 9]
            for i in range(8):
                S.valu("v_cvt_pk_bf16_f32", v(R + pos[i]), v(64 + 16 * q + 2 * i), v(64 + 16 * q + 2 * i + 1))
            for t in (3, 7, 10, 11):
                S.valu("v_mov_b32", v(R + t), "v8")
            for i in range(3):
                S.buf_store("buffer_store_dwordx4", v(R + 4 * i, 4), "v11", "s[56:59]", "s45", i * 1024, flags=" sc1")
            S.branch("s_branch", f"P2_N{q}")
            S.label(f"P2_OWN{q}")
            S.nop(15)
            for i in range(16):
                S.valu("v_mov_b32", v(48 + i), v(64 + 16 * q + i))
            S.label(f"P2_N{q}")
        ST.stamp()
        if cfg.get("xload", False):
            S.valu("v_lshlrev_b32", "v10", 4, l)
            S.salu("s_lshl_b32", "s45", cw, 12)
            S.valu("v_add_u32", "v10", "s45", "v10")
            for i in range(4):
                S.ds_write("ds_write_b128", "v10", v(48 + 4 * i, 4), i * 1024)
            S.wait(lgkm=0)
            S.barrier()
            return
        for i in range(3):
            S.salu("s_add_u32", "s45", "s80", i + 1)
            S.salu("s_and_b32", "s45", "s45", 3)
            S.salu("s_lshl_b32", "s46", "s80", 2)
            S.salu("s_add_u32", "s45", "s45", "s46")
            S.salu("s_lshl_b32", "s45", "s45", 2)
            S.salu("s_add_u32", "s45", "s45", cw)
            S.salu("s_lshl_b32", f"s{88 + i}", "s45", 12)
        D = 180
        if cfg.get("xpeer", False):
            if cfg.get("xdrain", False): S.raw("s_waitcnt vmcnt(0)")
            S.salu("s_mov_b32", "s83", 0)
            S.salu("s_mov_b32", "s94", 0)
            S.label("P2_XP")
            S.raw("s_nop 4")
            for i in range(3):
                S.raw(f"s_bitcmp1_b32 s94, {i}")
                S.raw(f"s_cbranch_scc1 P2_XL{i}")
                for k_ in range(3):
                    S.raw(f"buffer_load_dwordx4 v[{D + 12 * i + 4 * k_}:{D + 12 * i + 4 * k_ + 3}], v11, s[56:59], s{88 + i} offen offset:{k_ * 1024} sc1")
                S.label(f"P2_XL{i}")
            S.raw("s_waitcnt vmcnt(0)")
            for i in range(3):
                S.raw(f"s_bitcmp1_b32 s94, {i}")
                S.raw(f"s_cbranch_scc1 P2_XC{i}")
                S.raw(f"v_cmp_eq_u32 vcc, v8, v{D + 12 * i + 3}")
                S.raw(f"v_cmp_eq_u32 s[86:87], v8, v{D + 12 * i + 7}")
                S.raw(f"v_cmp_eq_u32 s[92:93], v8, v{D + 12 * i + 11}")
                S.raw("s_nop 4")
                S.raw("s_and_b64 vcc, vcc, s[86:87]")
                S.raw("s_and_b64 vcc, vcc, s[92:93]")
                S.raw("s_cmp_eq_u64 vcc, exec")
                S.raw(f"s_cbranch_scc0 P2_XC{i}")
                S.raw(f"s_bitset1_b32 s94, {i}")
                S.label(f"P2_XC{i}")
            S.raw("s_cmp_eq_u32 s94, 7")
            S.raw("s_cbranch_scc1 P2_XDONE")
            S.raw("s_add_u32 s83, s83, 1")
            S.raw("s_cmp_gt_u32 s83, 200000")
            S.raw("s_cbranch_scc1 P2_XDONE")
            S.raw(f"s_sleep {cfg.get('x_sleep', 2)}")
            S.raw("s_branch P2_XP")
            S.label("P2_XDONE")
            S.branch("s_branch", "P2_TQ_OK")
        if not cfg.get("xfull", False):
            S.salu("s_mov_b32", "s83", 0)
            S.label("P2_TP")
            S.raw("s_nop 4")
            for i in range(3):
                S.raw(f"buffer_load_dwordx4 v[{D + 12 * i + 8}:{D + 12 * i + 11}], v11, s[56:59], s{88 + i} offen offset:2048 sc1")
            S.raw("s_waitcnt vmcnt(0)")
            S.raw(f"v_cmp_eq_u32 vcc, v8, v{D + 11}")
            S.raw(f"v_cmp_eq_u32 s[86:87], v8, v{D + 12 + 11}")
            S.raw(f"v_cmp_eq_u32 s[92:93], v8, v{D + 24 + 11}")
            S.raw("s_nop 4")
            S.raw("s_and_b64 vcc, vcc, s[86:87]")
            S.raw("s_and_b64 vcc, vcc, s[92:93]")
            S.raw("s_cmp_eq_u64 vcc, exec")
            S.raw("s_cbranch_scc1 P2_TP_OK")
            S.raw("s_add_u32 s83, s83, 1")
            S.raw("s_cmp_gt_u32 s83, 200000")
            S.raw("s_cbranch_scc1 P2_TP_OK")
            S.raw(f"s_sleep {cfg.get('x_sleep', 2)}")
            S.raw("s_branch P2_TP")
            S.label("P2_TP_OK")
            ST.stamp()
        S.salu("s_mov_b32", "s83", 0)
        S.label("P2_TQ")
        S.raw("s_nop 4")
        NQ = 3 if cfg.get("xfull", False) else 2
        for i in range(3):
            for k_ in range(NQ):
                S.raw(f"buffer_load_dwordx4 v[{D + 12 * i + 4 * k_}:{D + 12 * i + 4 * k_ + 3}], v11, s[56:59], s{88 + i} offen offset:{k_ * 1024} sc1")
        S.raw("s_waitcnt vmcnt(0)")
        S.raw("s_mov_b64 s[94:95], exec")
        for i in range(3):
            for k_ in range(NQ):
                S.raw(f"v_cmp_eq_u32 vcc, v8, v{D + 12 * i + 4 * k_ + 3}")
                S.raw("s_nop 4")
                S.raw("s_and_b64 s[94:95], s[94:95], vcc")
        S.raw("s_cmp_eq_u64 s[94:95], exec")
        S.raw("s_cbranch_scc1 P2_TQ_OK")
        S.raw("s_add_u32 s83, s83, 1")
        S.raw("s_cmp_gt_u32 s83, 200000")
        S.raw("s_cbranch_scc1 P2_TQ_OK")
        S.raw(f"s_sleep {cfg.get('x_sleep2', 1)}")
        S.raw("s_branch P2_TQ")
        S.label("P2_TQ_OK")
        S.salu("s_mov_b32", "s46", "0xffff0000")
        pos = [0, 1, 2, 4, 5, 6, 8, 9]
        for i in range(3):
            for k_ in range(8):
                src = v(D + 12 * i + pos[k_])
                S.valu("v_lshlrev_b32", "v16", 16, src)
                S.valu("v_and_b32", "v17", "s46", src)
                S.valu("v_add_f32", v(48 + 2 * k_), v(48 + 2 * k_), "v16")
                S.valu("v_add_f32", v(48 + 2 * k_ + 1), v(48 + 2 * k_ + 1), "v17")
        for k_ in range(8):
            S.valu("v_cvt_pk_bf16_f32", v(16 + k_), v(48 + 2 * k_), v(48 + 2 * k_ + 1))
    else:
        ST.stamp()
        xbf = cfg.get("xbf16", False)
        TB = 2048 if xbf else 4096
        S.valu("v_mov_b32", "v10", 0)
        S.buf_load("buffer_load_dwordx2", "v[8:9]", "v10", dbg, flags=" sc1")
        S.valu("v_lshlrev_b32", "v11", 4, l)
        S.salu("s_lshl_b32", "s44", "s80", 2)
        S.salu("s_add_u32", "s44", "s44", cw)
        S.salu("s_lshl_b32", "s44", "s44", 12)
        stf = cfg.get("p2_stfl", " sc1")
        for q in range(4):
            S.salu("s_cmp_eq_u32", "s80", q)
            S.branch("s_cbranch_scc1", f"P2_OWN{q}")
            S.salu("s_add_u32", "s45", "s44", q * 65536)
            if xbf:
                S.nop(7)
                for i in range(8):
                    S.valu("v_cvt_pk_bf16_f32", v(128 + 8 * q + i), v(64 + 16 * q + 2 * i), v(64 + 16 * q + 2 * i + 1))
                for i in range(2):
                    S.buf_store("buffer_store_dwordx4", v(128 + 8 * q + 4 * i, 4), "v11", "s[56:59]", "s45", i * 1024, flags=stf)
            else:
                for i in range(4):
                    S.buf_store("buffer_store_dwordx4", v(64 + 16 * q + 4 * i, 4), "v11", "s[56:59]", "s45", i * 1024, flags=stf)
            S.branch("s_branch", f"P2_N{q}")
            S.label(f"P2_OWN{q}")
            S.nop(15)
            for i in range(16):
                S.valu("v_mov_b32", v(48 + i), v(64 + 16 * q + i))
            S.label(f"P2_N{q}")
        S.wait(vm=0)
        ST.stamp()
        spin_nonce(S, dbg, "P2_NONCE", 8, "v10")
        S.salu("s_lshl_b32", "s45", "s80", 2)
        S.salu("s_add_u32", "s45", "s45", cw)
        S.salu("s_lshl_b32", "s45", "s45", 3)
        S.valu("v_mov_b32", "v12", "s84")
        S.valu("v_mov_b32", "v13", "s85")
        flag_store(S, "s[60:63]", "s45", "v10", "v[12:13]")
        S.valu("v_and_b32", "v14", 3, l)
        S.valu("v_lshlrev_b32", "v14", 5, "v14")
        S.salu("s_lshl_b32", "s45", cw, 3)
        poll(S, "P2_POLL", "s[60:63]", "v14", "s45", "v[8:9]", "v[12:13]", sleep=cfg.get("x_sleep", 4))
        ST.stamp()
        ldf = cfg.get("p2_ldfl", " sc1")
        for i in range(3):
            S.salu("s_add_u32", "s45", "s80", i + 1)
            S.salu("s_and_b32", "s45", "s45", 3)
            S.salu("s_lshl_b32", "s46", "s80", 2)
            S.salu("s_add_u32", "s45", "s45", "s46")
            S.salu("s_lshl_b32", "s45", "s45", 2)
            S.salu("s_add_u32", "s45", "s45", cw)
            S.salu("s_lshl_b32", "s45", "s45", 12)
            if xbf:
                for k in range(2):
                    S.buf_load("buffer_load_dwordx4", v(128 + 8 * i + 4 * k, 4), "v11", "s[56:59]", "s45", k * 1024, flags=ldf)
            else:
                for k in range(4):
                    S.buf_load("buffer_load_dwordx4", v(128 + 16 * i + 4 * k, 4), "v11", "s[56:59]", "s45", k * 1024, flags=ldf)
        if xbf:
            S.salu("s_mov_b32", "s46", "0xffff0000")
            for i in range(3):
                for k in range(8):
                    S.valu("v_lshlrev_b32", "v16", 16, v(128 + 8 * i + k))
                    S.valu("v_and_b32", "v17", "s46", v(128 + 8 * i + k))
                    S.valu("v_add_f32", v(48 + 2 * k), v(48 + 2 * k), "v16")
                    S.valu("v_add_f32", v(48 + 2 * k + 1), v(48 + 2 * k + 1), "v17")
        else:
            for i in range(3):
                for k in range(16):
                    S.valu("v_add_f32", v(48 + k), v(48 + k), v(128 + 16 * i + k))
        for k in range(8):
            S.valu("v_cvt_pk_bf16_f32", v(16 + k), v(48 + 2 * k), v(48 + 2 * k + 1))

    S.valu("v_and_b32", "v10", 31, l)
    S.valu("v_lshlrev_b32", "v10", 11, "v10")
    S.valu("v_lshrrev_b32", "v12", 5, l)
    S.valu("v_lshlrev_b32", "v12", 4, "v12")
    S.valu("v_add_u32", "v10", "v10", "v12")
    S.salu("s_and_b32", "s44", cw, 1)
    S.salu("s_lshl_b32", "s44", "s44", 1)
    S.salu("s_and_b32", "s45", "s80", 1)
    S.salu("s_add_u32", "s44", "s44", "s45")
    S.salu("s_lshl_b32", "s44", "s44", 16)
    S.salu("s_lshr_b32", "s45", cw, 1)
    S.salu("s_lshl_b32", "s45", "s45", 7)
    S.salu("s_add_u32", "s44", "s44", "s45")
    S.salu("s_lshr_b32", "s45", "s80", 1)
    S.salu("s_lshl_b32", "s45", "s45", 6)
    S.salu("s_add_u32", "s44", "s44", "s45")
    S.buf_store("buffer_store_dwordx4", "v[16:19]", "v10", "s[64:67]", "s44", 0, flags=cfg.get("outfl", ""))
    S.buf_store("buffer_store_dwordx4", "v[20:23]", "v10", "s[64:67]", "s44", 32, flags=cfg.get("outfl", ""))
    ST.stamp()
```

```python
import sys, argparse
from asmlib import *

NAME = "concat_heads__mha_block_cached__gqa_block_cached__near_ridge"

def interleave(S, mf, fill, per_gap, lead=0):
    fi = 0
    for _ in range(min(lead, len(fill))):
        fill[fi](); fi += 1
    for k, m in enumerate(mf):
        m()
        n = per_gap[k] if isinstance(per_gap, (list, tuple)) else per_gap
        for _ in range(n):
            if fi < len(fill):
                fill[fi](); fi += 1
    while fi < len(fill):
        fill[fi](); fi += 1

STAMP_BASE = 80
class Probe:
    regs = list(range(26, 36))
    def __init__(self, S, on):
        self.S = S; self.on = on; self.n = 0
    def mark(self):
        if not self.on or self.n >= len(self.regs): return
        S = self.S
        S.add(Inst("s_memrealtime s[92:93]", "smem", [], ["s92", "s93"]))
        S.wait(lgkm=0)
        S.salu("s_sub_u32", f"s{self.regs[self.n]}", "s92", "s96")
        self.n += 1
PROBE = [None]

class Stamper:
    allreal = False
    def __init__(self, S, on, vreg=None):
        self.S = S; self.on = on; self.n = 1; self.vreg = vreg
        if on:
            S.wait(lgkm=0)
            S.add(Inst(f"v_writelane_b32 v{vreg}, s98, 0", "valu", ["s98"], [f"v{vreg}"]))
    def stamp(self, real=False):
        if not self.on: return
        S = self.S
        op = "s_memrealtime" if (real or Stamper.allreal) else "s_memtime"
        S.add(Inst(f"{op} s[100:101]", "smem", [], ["s100", "s101"]))
        S.wait(lgkm=0)
        S.add(Inst(f"v_writelane_b32 v{self.vreg}, s100, {self.n}", "valu", ["s100"], [f"v{self.vreg}"]))
        self.n += 1
    def flush(self, region, vtmp=250):
        if not self.on: return
        S = self.S
        S.wait(vm=0, lgkm=0)
        S.smem("s[78:79]", "s[0:1]", 96)
        S.wait(lgkm=0)
        S.salu("s_add_u32", "s76", "s78", (64 << 20) + region * (1 << 20))
        S.salu("s_addc_u32", "s77", "s79", 0)
        S.salu("s_mov_b32", "s78", 1 << 20)
        S.salu("s_mov_b32", "s79", "0x20000")
        S.salu("s_lshl_b32", "s74", "s2", 11)
        S.salu("s_lshl_b32", "s75", "s43", 8)
        S.salu("s_add_u32", "s74", "s74", "s75")
        S.add(Inst("s_getreg_b32 s73, hwreg(HW_REG_XCC_ID)", "salu", [], ["s73"]))
        S.salu("s_add_u32", "s73", "s73", 1000)
        S.add(Inst(f"v_writelane_b32 v{self.vreg}, s73, 63", "valu", ["s73"], [f"v{self.vreg}"]))
        a = f"v{vtmp}"
        S.valu("v_mbcnt_lo_u32_b32", a, -1, 0)
        S.valu("v_mbcnt_hi_u32_b32", a, -1, a)
        S.valu("v_lshlrev_b32", a, 2, a)
        S.buf_store("buffer_store_dword", f"v{self.vreg}", a, "s[76:79]", "s74")
        S.wait(vm=0)

def load_ptrs(S, sel_sgpr_p):
    S.smem("s[16:31]", "s[0:1]", 0)
    S.smem("s[32:35]", "s[0:1]", 64)
    S.smem("s[36:37]", "s[0:1]", 80)
    S.smem("s[38:39]", "s[0:1]", 96)

def make_srd(S, srd, ptr_lo, ptr_hi, off_sgpr, total, off_hi=None):
    if isinstance(off_sgpr, int):
        S.salu("s_add_u32", s(srd), s(ptr_lo), off_sgpr)
        S.salu("s_addc_u32", s(srd + 1), s(ptr_hi), 0)
        S.salu("s_mov_b32", s(srd + 2), total - off_sgpr)
    else:
        S.salu("s_add_u32", s(srd), s(ptr_lo), off_sgpr)
        S.salu("s_addc_u32", s(srd + 1), s(ptr_hi), 0)
        S.salu("s_sub_u32", s(srd + 2), total, off_sgpr)
    S.salu("s_mov_b32", s(srd + 3), "0x20000")

NW = 4
NX = 2
WBASE = 65536
XBASE = WBASE + NW * 16384
KSLOT = [0, 16384, 32768, 49152]
VSLOT = [WBASE + 0 * 16384, WBASE + 1 * 16384, XBASE + 0 * 16384, WBASE + 2 * 16384]

def k1_prologue(S, cfg):
    S.salu("s_cmp_ge_u32", "s2", 256)
    S.branch("s_cbranch_scc1", "K1_DONE")
    if cfg.get("stamps", False):
        S.add(Inst(("s_memrealtime" if cfg.get("allreal") else "s_memtime") + " s[98:99]", "smem", [], ["s98", "s99"]))
    if cfg.get("probe", False):
        S.add(Inst("s_memrealtime s[96:97]", "smem", [], ["s96", "s97"]))
    load_ptrs(S, None)
    if cfg.get("fused", False):
        S.smem("s[4:5]", "s[0:1]", 88)
        S.salu("s_mov_b32", "s6", 256)
        S.salu("s_mov_b32", "s7", "0x20000")
    S.salu("s_and_b32", "s44", "s2", 7)
    S.salu("s_lshr_b32", "s45", "s2", 3)
    S.salu("s_lshr_b32", "s40", "s44", 2)
    S.salu("s_and_b32", "s44", "s44", 3)
    S.salu("s_lshl_b32", "s44", "s44", 2)
    S.salu("s_and_b32", "s41", "s45", 3)
    S.salu("s_add_u32", "s41", "s41", "s44")
    S.salu("s_lshr_b32", "s42", "s45", 2)
    S.salu("s_lshr_b32", "s12", "s2", 3)
    S.valu("v_lshrrev_b32", "v1", 6, "v0")
    S.valu("v_readfirstlane_b32", "s43", "v1")
    S.valu("v_and_b32", "v1", 63, "v0")
    if not cfg.get("fused", False):
        k1_ptrs(S, cfg, 1); k1_ptrs(S, cfg, 2)

def k1_ptrs(S, cfg, part):
    if part == 1:
        S.salu("s_cmp_eq_u32", "s40", 0)
        S.salu("s_cselect_b64", "s[16:17]", "s[16:17]", "s[26:27]")
        S.salu("s_cselect_b64", "s[22:23]", "s[22:23]", "s[32:33]")
        S.salu("s_cselect_b64", "s[18:19]", "s[18:19]", "s[28:29]")
        S.salu("s_cselect_b64", "s[20:21]", "s[20:21]", "s[30:31]")
        S.salu("s_cselect_b64", "s[24:25]", "s[24:25]", "s[34:35]")
        S.salu("s_lshl_b32", "s44", "s41", 9)
        make_srd(S, 48, 22, 23, "s44", 512 * 8192)
        S.salu("s_lshl_b32", "s44", "s42", 17)
        make_srd(S, 52, 16, 17, "s44", 1024 * 1024)
    else:
        S.salu("s_lshl_b32", "s44", "s42", 20)
        S.salu("s_lshl_b32", "s45", "s41", 14)
        S.salu("s_add_u32", "s44", "s44", "s45")
        make_srd(S, 56, 18, 19, "s44", 32 * 262144)
        make_srd(S, 60, 20, 21, "s44", 32 * 262144)
        S.salu("s_lshl_b32", "s45", "s40", 23)
        S.salu("s_add_u32", "s44", "s44", "s45")
        make_srd(S, 64, 38, 39, "s44", 2 * 32 * 262144)

def nonce_store(S):
    S.salu("s_or_b32", "s44", "s2", "s43")
    S.salu("s_cmp_lg_u32", "s44", 0)
    S.branch("s_cbranch_scc1", "F_NONONCE")
    S.add(Inst("s_memrealtime s[44:45]", "smem", [], ["s44", "s45"]))
    S.wait(lgkm=0)
    S.salu("s_or_b32", "s44", "s44", 1)
    S.valu("v_mov_b32", "v2", "s44")
    S.valu("v_mov_b32", "v3", "s45")
    S.valu("v_mov_b32", "v4", 0)
    S.buf_store("buffer_store_dwordx2", "v[2:3]", "v4", "s[4:7]", flags=" sc1")
    S.label("F_NONONCE")
    S.raw("s_waitcnt lgkmcnt(0)")

def k1_fast(S, cfg):
    if cfg.get("ldprio"): S.setprio(cfg["ldprio"])
    S.salu("s_sub_u32", "s44", "s43", 4)
    L = "v1"
    t0, t1, t2 = "v2", "v3", "v4"
    S.valu("v_lshrrev_b32", t0, 5, L)
    S.valu("v_and_b32", t1, 31, L)
    S.valu("v_lshlrev_b32", t2, 2, t0)
    S.valu("v_xor_b32", "v10", t1, t2)
    S.valu("v_lshlrev_b32", "v10", 4, "v10")
    S.valu("v_xor_b32", "v11", 128, "v10")
    S.valu("v_lshlrev_b32", t2, 13, t0)
    S.salu("s_lshl_b32", "s45", "s44", 16)
    S.valu("v_add_u32", t2, "s45", t2)
    S.valu("v_add_u32", "v10", "v10", t2)
    S.valu("v_add_u32", "v11", "v11", t2)
    S.valu("v_lshrrev_b32", t0, 3, L)
    S.valu("v_and_b32", t1, 7, L)
    S.valu("v_lshrrev_b32", t2, 4, L)
    S.valu("v_xor_b32", "v12", t1, t2)
    S.valu("v_lshlrev_b32", "v12", 4, "v12")
    S.valu("v_xor_b32", "v13", 64, "v12")
    S.valu("v_lshlrev_b32", t0, 10, t0)
    S.salu("s_lshl_b32", "s45", "s44", 15)
    S.valu("v_add_u32", t0, "s45", t0)
    S.valu("v_add_u32", "v12", "v12", t0)
    S.valu("v_add_u32", "v13", "v13", t0)
    S.salu("s_lshl_b32", "s47", "s44", 12)
    if cfg.get("rot", True):
        S.salu("s_and_b32", "s79", "s41", 3)
        S.salu("s_lshl_b32", "s79", "s79", 1)
        S.salu("s_add_u32", "s79", "s79", "s42")
        S.salu("s_and_b32", "s79", "s79", 7)
    else:
        S.salu("s_mov_b32", "s79", 0)
    if cfg.get("fused", False):
        k1_ptrs(S, cfg, 1)
    ldflags = cfg.get("ldflags", " nt")
    kvflags = cfg.get("kvflags", " nt")
    skip = cfg.get("skip", "")
    def dma(voff, srd, base, off, ldsbase, tok, flags):
        S.salu("s_add_u32", "m0", "s47", ldsbase)
        S.salu("s_add_u32", "s46", base, off)
        S.buf_dma(voff, srd, "s46", tok=tok, flags=flags)
    def issue_w(st):
        S.salu("s_add_u32", "s13", "s79", st // 2)
        S.salu("s_and_b32", "s13", "s13", 7)
        S.salu("s_lshl_b32", "s13", "s13", 19)
        for ii in range(4):
            dma("v10" if ii % 2 == 0 else "v11", "s[48:51]", "s13", (st % 2) * 262144 + ii * 16384,
                WBASE + (st % NW) * 16384 + ii * 1024, f"w{st}", cfg.get("ldflags0", ldflags) if st < 2 else ldflags)
    def issue_x(j):
        S.salu("s_add_u32", "s13", "s79", j)
        S.salu("s_and_b32", "s13", "s13", 7)
        S.salu("s_lshl_b32", "s13", "s13", 7)
        for ii in range(4):
            dma("v12" if ii % 2 == 0 else "v13", "s[52:55]", "s13", ii * 8192,
                XBASE + (j % NX) * 16384 + ii * 1024, f"x{j}", cfg.get("ldflags0", ldflags) if j < 2 else ldflags)
    if cfg.get("fused", False):
        issue_w(0); issue_x(0)
        k1_ptrs(S, cfg, 2)
        S.salu("s_sub_u32", "s44", "s43", 4)
    S.valu("v_lshrrev_b32", t2, 4, L)
    S.valu("v_and_b32", t1, 15, L)
    S.valu("v_lshlrev_b32", t0, 8, t2)
    S.salu("s_and_b32", "s45", "s44", 1)
    S.salu("s_lshl_b32", "s45", "s45", 12)
    S.salu("s_lshr_b32", "s46", "s44", 1)
    S.salu("s_lshl_b32", "s46", "s46", 18)
    S.salu("s_add_u32", "s45", "s45", "s46")
    S.valu("v_add_u32", t0, "s45", t0)
    S.valu("v_xor_b32", "v5", t1, t2)
    for ii in range(4):
        S.valu("v_xor_b32", v(14 + ii), 4 * ii, "v5")
        S.valu("v_lshlrev_b32", v(14 + ii), 4, v(14 + ii))
        S.valu("v_add_u32", v(14 + ii), v(14 + ii), t0)
        if ii: S.valu("v_add_u32", v(14 + ii), ii * 1024, v(14 + ii))
    S.valu("v_lshlrev_b32", "v5", 2, t2)
    S.valu("v_xor_b32", "v18", t1, "v5")
    S.valu("v_lshlrev_b32", "v18", 4, "v18")
    S.valu("v_add_u32", "v18", "v18", t0)
    S.salu("s_mov_b32", "s14", 0)
    def issue_k(cw):
        for ii in range(4):
            dma(v(14 + ii), "s[56:59]", "s14", 2 * (cw % 2) * 262144 + (cw // 2) * 8192, KSLOT[cw] + ii * 1024, "k", kvflags)
    VR = 32
    def issue_v(cw):
        for ii in range(4):
            S.salu("s_mov_b32", "s46", 2 * (cw % 2) * 262144 + (cw // 2) * 8192 + ii * 1024)
            S.buf_load("buffer_load_dwordx4", v(VR + 16 * cw + 4 * ii, 4), "v18", "s[60:63]", "s46", tok="v", flags=kvflags)
    S.valu("v_lshlrev_b32", "v19", 4, L)
    S.valu("v_add_u32", "v19", "s47", "v19")
    S.valu("v_add_u32", "v20", 65536, "v19")
    S.valu("v_add_u32", "v21", 131072, "v19")
    def write_v(cw):
        sb = VSLOT[cw]; areg = 19 + sb // 65536
        for ii in range(4):
            S.ds_write("ds_write_b128", v(areg), v(VR + 16 * cw + 4 * ii, 4), sb % 65536 + ii * 1024)

    def body(S, phase, ST):
        def issue(items):
            for it in items:
                if it[0] in skip: continue
                {"w": issue_w, "x": issue_x, "k": issue_k, "v": issue_v}[it[0]](it[1])
        sched = {b: [] for b in range(-2, 17)}
        sched[-2] = [("w", 0), ("x", 0), ("w", 1)] if not cfg.get("fused", False) else [("w", 1)]
        sched[-1] = [("w", 2), ("x", 1), ("w", 3)]
        for st in range(0, 16):
            if st + NW < 16: sched[st].append(("w", st + NW))
            if st % 2 == 1 and (st - 1) // 2 + NX < 8: sched[st].append(("x", (st - 1) // 2 + NX))
        items = [[("k", 0), ("k", 1)], [("k", 2), ("k", 3)], [("v", 0), ("v", 1)], [("v", 2), ("v", 3)]]
        if "btab8" in cfg:
            items8 = [("k", 0), ("k", 1), ("k", 2), ("k", 3), ("v", 0), ("v", 1), ("v", 2), ("v", 3)]
            b8 = cfg["btab8"]
            if isinstance(b8[0], list): b8 = b8[phase]
            for bt, it in zip(b8, items8): sched[bt].append(it)
            bursts = [b8[0], b8[3], b8[5], b8[7]]
        elif "btab" in cfg:
            bursts = cfg["btab"][phase]
            for bt, its in zip(bursts, items):
                sched[bt] += its
        else:
            bursts = cfg.get("bursts", [0, 3, 6, 9])
            for bt, its in zip(bursts, items):
                sched[min(bt + phase, 11)] += its
        wr = {12: [0], 13: [1, 2], 14: [3]}
        lastv = max(bursts[2:]) if ("btab" in cfg or "btab8" in cfg) else 0
        if lastv >= 11:
            wr = {15: [0, 1, 2, 3]}
        issue(sched[-2])
        ST.stamp()
        S.wait_vm_tok("w0"); S.wait_vm_tok("x0")
        ST.stamp()
        S.barrier()
        issue(sched[-1])
        for st in range(16):
            if st + 1 < 16:
                S.wait_vm_tok(f"w{st+1}")
                S.wait_vm_tok(f"x{(st+1)//2}")
            else:
                S.wait_vm_tok("k")
            if st >= 13: S.wait(lgkm=0)
            ST.stamp()
            S.barrier()
            ST.stamp()
            issue(sched[st])
            for cw in wr.get(st, []):
                if "v" not in skip: write_v(cw)
            if cfg.get("fused", False) and st == cfg.get("wopf_at", 12):
                import k2b
                k2b.p2_srds(S)
                if cfg.get("wopf", True):
                    S.valu("v_lshrrev_b32", "v2", 1, L)
                    S.valu("v_lshlrev_b32", "v2", 10, "v2")
                    S.valu("v_and_b32", "v3", 1, L)
                    S.valu("v_lshlrev_b32", "v3", 7, "v3")
                    S.valu("v_add_u32", "v2", "v2", "v3")
                    S.salu("s_sub_u32", "s44", "s43", 4)
                    S.salu("s_lshl_b32", "s44", "s44", 15)
                    S.salu("s_lshl_b32", "s45", "s42", 17)
                    S.salu("s_add_u32", "s44", "s44", "s45")
                    S.buf_load("buffer_load_dword", "v24", "v2", "s[48:51]", "s44", flags=cfg.get("wopf_fl", ""))
        if cfg.get("b16", False):
            S.wait(lgkm=0)
            S.barrier()
        if cfg.get("fused", False):
            import k2b
            k2b.p2_loader_fused(S, cfg, ST)
        ST.stamp(real=True)
        ST.flush(0, 31)
        S.endpgm()
    return body

def k1_consumer(S, cfg):
    cw = "s43"
    l = "v1"
    if cfg.get("cprio"): S.setprio(cfg["cprio"])
    if cfg.get("fused", False): nonce_store(S)
    if cfg.get("codepf", False):
        S.salu("s_cmp_ge_u32", "s12", cfg.get("codepf_wgs", 1))
        S.branch("s_cbranch_scc1", "C_NOPF")
        S.add(Inst("s_getpc_b64 s[92:93]", "salu", [], ["s92", "s93"]))
        S.label("C_PFBASE")
        S.valu("v_lshlrev_b32", "v14", 7, l)
        S.salu("s_lshl_b32", "s44", cw, 13)
        S.valu("v_add_u32", "v14", "s44", "v14")
        S.raw("s_mov_b32 s44, K1_DONE-C_PFBASE-4")
        S.raw("v_min_u32 v14, s44, v14")
        S.raw("s_nop 1")
        S.glob_load("v14", "v14", "s[92:93]")
        S.label("C_NOPF")
    T = [f"v{n}" for n in range(16, 32)]
    i_, hh, gb, kx, c4, t0, t1, t2 = T[:8]
    S.valu("v_and_b32", i_, 15, l)
    S.valu("v_lshrrev_b32", hh, 5, l)
    S.valu("v_bfe_u32", gb, l, 4, 1)
    S.valu("v_lshrrev_b32", kx, 2, i_)
    S.valu("v_and_b32", c4, 3, l)
    S.valu("v_and_b32", t0, 1, c4)
    S.valu("v_lshlrev_b32", t0, 4, t0)
    S.valu("v_lshrrev_b32", t1, 1, c4)
    S.valu("v_lshlrev_b32", t1, 3, t1)
    S.valu("v_or_b32", t0, t0, t1)
    S.valu("v_lshlrev_b32", t1, 5, gb)
    S.valu("v_or_b32", t0, t0, t1)
    S.valu("v_lshlrev_b32", t1, 3, hh)
    S.valu("v_add_u32", t1, t1, kx)
    S.valu("v_lshlrev_b32", t1, 9, t1)
    S.valu("v_add_u32", t0, t0, t1)
    S.salu("s_lshr_b32", "s44", cw, 1)
    S.salu("s_lshl_b32", "s44", "s44", 8)
    S.valu("v_add_u32", t0, "s44", t0)
    for t in range(4):
        S.valu("v_xor_b32", t1, t, kx)
        S.valu("v_lshlrev_b32", t1, 6, t1)
        S.valu("v_add_u32", v(2 + t), t0, t1)
        S.valu("v_add_u32", v(2 + t), WBASE, v(2 + t))
    S.valu("v_and_b32", t0, 31, l)
    S.valu("v_bfe_u32", t1, l, 1, 3)
    S.valu("v_xor_b32", t1, t1, hh)
    S.valu("v_lshlrev_b32", t0, 7, t0)
    S.salu("s_and_b32", "s44", cw, 1)
    S.salu("s_lshl_b32", "s44", "s44", 13)
    S.salu("s_add_u32", "s44", "s44", XBASE)
    S.valu("v_add_u32", t0, "s44", t0)
    for s4 in range(4):
        S.valu("v_xor_b32", t2, 2 * s4, t1)
        S.valu("v_lshlrev_b32", t2, 4, t2)
        S.valu("v_add_u32", v(10 + s4), t0, t2)
    S.salu("s_and_b32", "s44", cw, 1)
    S.salu("s_lshl_b32", "s44", "s44", 19)
    S.salu("s_lshr_b32", "s45", cw, 1)
    S.salu("s_lshl_b32", "s45", "s45", 13)
    S.salu("s_add_u32", "s70", "s44", "s45")
    S.salu("s_add_u32", "s71", "s70", 262144)
    S.salu("s_add_u32", "s72", "s70", 4096)
    S.salu("s_add_u32", "s73", "s71", 4096)
    def sel4(dst, vals):
        S.salu("s_mov_b32", dst, vals[0])
        for c in range(1, 4):
            S.salu("s_cmp_eq_u32", cw, c)
            S.salu("s_cselect_b32", dst, vals[c], dst)
    sel4("s74", KSLOT); sel4("s75", VSLOT)
    import math, struct
    c = (128 ** -0.5) * math.log2(math.e)
    S.salu("s_mov_b32", "s76", hex(struct.unpack("<I", struct.pack("<f", c))[0]))

    ABUF = [16, 32]; BBUF = [48, 56]
    ACC = lambda ib, t: 128 + 64 * ib + 16 * t
    def reads(ks):
        st, sub = ks // 2, ks % 2
        j, s4 = ks // 4, ks % 4
        slot = st % NW
        buf = ks % 2
        r = []
        def rb(ib):
            return lambda: S.ds_read("ds_read_b128", v(BBUF[buf] + 4 * ib, 4), v(10 + s4), (j % NX) * 16384 + ib * 4096)
        def ra(t, jj):
            base = 2 + t
            return lambda: S.ds_read("ds_read_b64_tr_b16", v(ABUF[buf] + 4 * t + 2 * jj, 2), v(base),
                                     (slot % 4) * 16384 + sub * 8192 + jj * 2048)
        r += [rb(0), ra(0, 0), ra(0, 1), rb(1), ra(1, 0), ra(1, 1), ra(2, 0), ra(2, 1), ra(3, 0), ra(3, 1)]
        return r
    def mfmas(ks, order):
        buf = ks % 2
        m = []
        for (t, ib) in order:
            first = (ks == 0)
            def f(t=t, ib=ib, first=first):
                S.mfma(v(ACC(ib, t), 16), v(ABUF[buf] + 4 * t, 4), v(BBUF[buf] + 4 * ib, 4), 0 if first else v(ACC(ib, t), 16))
            m.append(f)
        return m
    if cfg.get("fused", False) and cfg.get("early_srd", True):
        import k2b
        k2b.p2_srds(S)
    ST = Stamper(S, cfg.get("stamps", False), 15)
    PR = Probe(S, cfg.get("probe2", False)); PROBE[0] = PR
    ST.stamp()
    PR.mark()
    S.barrier()
    PR.mark()
    ST.stamp()
    for f in reads(0): f()
    std = [(0, 0), (0, 1), (1, 0), (1, 1), (2, 0), (2, 1), (3, 0), (3, 1)]
    last = [(0, 0), (1, 0), (2, 0), (3, 0), (0, 1), (1, 1), (2, 1), (3, 1)]
    def kv_addr_code():
        c = []
        a = lambda *x, **k: c.append(lambda: S.valu(*x, **k))
        a("v_and_b32", "v0", 15, l)
        a("v_lshrrev_b32", "v14", 5, l)
        a("v_xor_b32", "v0", "v0", "v14")
        a("v_lshlrev_b32", "v0", 4, "v0")
        a("v_and_b32", "v2", 31, l)
        a("v_lshlrev_b32", "v2", 8, "v2")
        a("v_add_u32", "v2", "s74", "v2")
        a("v_or_b32", "v2", "v2", "v0")
        for cidx in range(1, 8):
            a("v_xor_b32", v(2 + cidx), (2 * cidx) << 4, "v2")
        return c
    def v_addr_code():
        c = []
        a = lambda *x, **k: c.append(lambda: S.valu(*x, **k))
        a("v_bfe_u32", "v0", l, 2, 2)
        a("v_lshrrev_b32", "v14", 5, l)
        a("v_lshlrev_b32", "v14", 2, "v14")
        a("v_add_u32", "v14", "v14", "v0")
        a("v_lshlrev_b32", "v14", 8, "v14")
        a("v_add_u32", "v14", "s75", "v14")
        a("v_bfe_u32", "v10", l, 4, 1)
        a("v_lshlrev_b32", "v10", 5, "v10")
        a("v_add_u32", "v14", "v14", "v10")
        a("v_and_b32", "v10", 3, l)
        a("v_lshlrev_b32", "v10", 3, "v10")
        a("v_add_u32", "v14", "v14", "v10")
        a("v_lshlrev_b32", "v0", 6, "v0")
        for tp in range(4):
            a("v_xor_b32", v(10 + tp), tp << 6, "v0")
            a("v_add_u32", v(10 + tp), v(10 + tp), "v14")
        return c

    K0, QB0, QB1, K1 = 96, 64, 16, 144
    S0, S1 = 128, 176
    P0, P1 = 48, 56
    V0, V1 = 96, 144
    def kreads(ib, base):
        r = []
        for t in range(4):
            for u in range(2):
                cidx = 2 * t + u
                r.append(lambda cidx=cidx: S.ds_read("ds_read_b128", v(base + 4 * cidx, 4), v(2 + cidx), ib * 8192))
        return r
    def vreads(ib, base):
        r = []
        for u in range(2):
            for tp in range(4):
                for jj in range(2):
                    r.append(lambda tp=tp, u=u, jj=jj: S.ds_read("ds_read_b64_tr_b16", v(base + 4 * (2 * tp + u) + 2 * jj, 2),
                                                                v(10 + tp), ib * 8192 + u * 4096 + jj * 2048))
        return r

    for ks in range(32):
        sub = ks % 2
        if ks % 2 == 0: ST.stamp()
        if sub == 1:
            S.wait(lgkm=0)
            S.barrier()
        fill = []
        if cfg.get("nocompute", False) and ks + 1 < 32:
            continue
        if ks + 1 < 32:
            fill += reads(ks + 1)
            interleave(S, mfmas(ks, std), fill, 2)
        else:
            fill += kv_addr_code() + kreads(0, K0) + v_addr_code()
            interleave(S, mfmas(ks, last), fill, [8, 8, 4, 4, 6, 6, 6, 6])

    def cvt(dst, src, n):
        return [lambda i=i: S.valu("v_cvt_pk_bf16_f32", v(dst + i), v(src + 2 * i), v(src + 2 * i + 1)) for i in range(n)]
    def smf(acc, kb, qb):
        m = []
        for cidx in range(8):
            m.append(lambda cidx=cidx: S.mfma(v(acc, 16), v(kb + 4 * cidx, 4), v(qb + 4 * cidx, 4), 0 if cidx == 0 else v(acc, 16)))
        return m
    def softmax(acc, pdst, tm):
        c = []
        a = lambda *x, **k: c.append(lambda: S.valu(*x, **k))
        m, m2, t, t2 = [v(tm + i) for i in range(4)]
        a("v_max3_f32", m, v(acc), v(acc + 1), v(acc + 2))
        a("v_max3_f32", m2, v(acc + 3), v(acc + 4), v(acc + 5))
        a("v_max3_f32", m, m, v(acc + 6), v(acc + 7))
        a("v_max3_f32", m2, m2, v(acc + 8), v(acc + 9))
        a("v_max3_f32", m, m, v(acc + 10), v(acc + 11))
        a("v_max3_f32", m2, m2, v(acc + 12), v(acc + 13))
        a("v_max3_f32", m, m, v(acc + 14), v(acc + 15))
        a("v_max_f32", m, m, m2)
        a("v_mov_b32", m2, m)
        a("v_permlane32_swap_b32", m2, m)
        a("v_max_f32", m, m, m2)
        a("v_mul_f32", m, "s76", m)
        for r in range(16):
            a("v_fma_f32", v(acc + r), v(acc + r), "s76", "-" + m)
        for r in range(16):
            a("v_exp_f32", v(acc + r), v(acc + r))
        a("v_add_f32", t, v(acc), v(acc + 1))
        a("v_add_f32", t2, v(acc + 2), v(acc + 3))
        for r in range(4, 16, 2):
            a("v_add_f32", t, t, v(acc + r))
            a("v_add_f32", t2, t2, v(acc + r + 1))
        a("v_add_f32", t, t, t2)
        a("v_mov_b32", t2, t)
        a("v_permlane32_swap_b32", t2, t)
        a("v_add_f32", t, t, t2)
        a("v_rcp_f32", t, t)
        for r in range(16):
            a("v_mul_f32", v(acc + r), v(acc + r), t)
        for r in range(8):
            a("v_cvt_pk_bf16_f32", v(pdst + r), v(acc + 2 * r), v(acc + 2 * r + 1))
        return c
    def pvmf(otiles, vb, pb):
        m = []
        for u in range(2):
            for tp in range(4):
                m.append(lambda tp=tp, u=u: S.mfma(v(otiles[tp], 16), v(vb + 4 * (2 * tp + u), 4), v(pb + 4 * u, 4),
                                                   0 if u == 0 else v(otiles[tp], 16)))
        return m
    stflags = cfg.get("stflags", "")
    def ostore(otiles, tmp, so_lo, so_hi):
        c = []
        for tp in range(4):
            for r2 in range(2):
                f = 2 * tp + r2
                d = tmp + 4 * f
                for i in range(4):
                    c.append(lambda d=d, i=i, tp=tp, r2=r2: S.valu("v_cvt_pk_bf16_f32", v(d + i), v(otiles[tp] + 8 * r2 + 2 * i),
                                                                 v(otiles[tp] + 8 * r2 + 2 * i + 1)))
                c.append(lambda d=d, f=f: S.buf_store("buffer_store_dwordx4", v(d, 4), "v0", "s[64:67]",
                                                      so_lo if f < 4 else so_hi, (f % 4) * 1024, flags=stflags))
        return c
    ST.stamp()
    PR.mark()
    O0 = [192, 208, 224, 240]
    O1 = [64, 80, 16, 32]
    if cfg.get("attn3", False):
        c0 = cvt(QB0, ACC(0, 0), 32); c1 = cvt(QB1, ACC(1, 0), 32)
        s0 = smf(S0, K0, QB0); s1 = smf(S1, K1, QB1)
        for f in c0[:8]: f()
        interleave(S, s0, c0[8:] + kreads(1, K1) + c1, [8, 1, 8, 1, 8, 6, 6, 6])
        S.wait(lgkm=0)
        S.barrier()
        ST.stamp()
        sm0 = softmax(S0, P0, 2)
        v0r = vreads(0, V0)
        S.valu("v_lshlrev_b32", "v0", 4, l)
        S.salu("s_lshr_b32", "s44", cw, 1)
        S.salu("s_lshl_b32", "s44", "s44", 15)
        S.salu("s_and_b32", "s45", cw, 1)
        S.salu("s_lshl_b32", "s45", "s45", 13)
        S.salu("s_add_u32", "s44", "s44", "s45")
        S.valu("v_add_u32", "v0", "s44", "v0")
        interleave(S, s1, v0r + sm0[:34], [4, 4, 4, 6, 8, 8, 8, 8])
        for i in range(4):
            S.ds_write("ds_write_b128", "v0", v(S1 + 4 * i, 4), 4096 + i * 1024)
        for f in sm0[34:50]: f()
        S.wait(lgkm=0)
        S.barrier()
        ST.stamp()
        for f in sm0[50:]: f()
        def owrite3(otiles, tmp, ib, tps):
            c = []
            for tp in tps:
                for r2 in range(2):
                    f = 2 * tp + r2
                    d = tmp + 4 * f
                    for i in range(4):
                        c.append(lambda d=d, i=i, tp=tp, r2=r2: S.valu("v_cvt_pk_bf16_f32", v(d + i), v(otiles[tp] + 8 * r2 + 2 * i), v(otiles[tp] + 8 * r2 + 2 * i + 1)))
                    c.append(lambda d=d, f=f: S.ds_write("ds_write_b128", "v0", v(d, 4), (f // 4) * 16384 + ib * 4096 + (f % 4) * 1024))
            return c
        def pv(tp, u): return lambda: S.mfma(v(O0[tp], 16), v(V0 + 4 * (2 * tp + u), 4), v(P0 + 4 * u, 4), 0 if u == 0 else v(O0[tp], 16))
        for f in (pv(0, 0), pv(1, 0), pv(0, 1), pv(1, 1)): f()
        interleave(S, [pv(2, 0), pv(3, 0), pv(2, 1), pv(3, 1)], owrite3(O0, 64, 0, [0]), [0, 3, 3, 4])
        for f in owrite3(O0, 64, 0, [1, 2, 3]): f()
        ST.stamp()
        import k2b
        if not cfg.get("early_srd", True): k2b.p2_srds(S)
        cfg["_probe"] = PR if cfg.get("probe2", False) else None
        k2b.p2_compute(S, cfg, ST, dbg="s[4:7]", fused=True)
        ST.flush(0, 14)
        S.endpgm()
        return
    if cfg.get("attn2", False):
        c0 = cvt(QB0, ACC(0, 0), 32); c1 = cvt(QB1, ACC(1, 0), 32)
        s0 = smf(S0, K0, QB0); s1 = smf(S1, K1, QB1)
        for f in c0[:8]: f()
        k1r = kreads(1, K1)
        fill = c0[8:] + k1r + c1
        interleave(S, s0, fill, [8, 1, 8, 1, 8, 6, 6, 6])
        if cfg.get("fused", False):
            S.wait(lgkm=0)
            S.barrier()
        ST.stamp()
        sm0 = softmax(S0, P0, 2); sm1 = softmax(S1, P1, 6)
        v0r = vreads(0, V0); v1r = vreads(1, V1)
        interleave(S, s1, v0r + sm0[:30], [4, 4, 4, 4, 6, 8, 8, 8])
        a_, b_ = sm0[30:], sm1
        for f in v1r[:0]: f()
        i = j = 0
        while i < len(a_) or j < len(b_):
            if i < len(a_): a_[i](); i += 1
            if j < len(b_) and (i >= 10 or i >= len(a_)): b_[j](); j += 1
            if i >= len(a_): break
        interleave(S, pvmf(O0, V0, P0), v1r + b_[j:], 8)
    else:
        for f in cvt(QB0, ACC(0, 0), 32): f()
        interleave(S, smf(S0, K0, QB0), kreads(1, K1) + cvt(QB1, ACC(1, 0), 32), 5)
        if cfg.get("b16", False): S.barrier()
        if cfg.get("fused", False):
            S.wait(lgkm=0)
            S.barrier()
        ST.stamp()
        sm0 = softmax(S0, P0, 2)
        interleave(S, smf(S1, K1, QB1), vreads(0, V0) + sm0[:40], [2, 2, 2, 2, 2, 2, 2, 2])
        for f in sm0[40:]: f()
        sm1 = softmax(S1, P1, 6)
        interleave(S, pvmf(O0, V0, P0), vreads(1, V1) + sm1, 8)
    S.valu("v_lshlrev_b32", "v0", 4, l)
    if cfg.get("fused", False):
        import k2b
        S.salu("s_lshr_b32", "s44", cw, 1)
        S.salu("s_lshl_b32", "s44", "s44", 15)
        S.salu("s_and_b32", "s45", cw, 1)
        S.salu("s_lshl_b32", "s45", "s45", 13)
        S.salu("s_add_u32", "s44", "s44", "s45")
        S.valu("v_add_u32", "v0", "s44", "v0")
        def owrite(otiles, tmp, ib):
            c = []
            for tp in range(4):
                for r2 in range(2):
                    f = 2 * tp + r2
                    d = tmp + 4 * f
                    for i in range(4):
                        c.append(lambda d=d, i=i, tp=tp, r2=r2: S.valu("v_cvt_pk_bf16_f32", v(d + i), v(otiles[tp] + 8 * r2 + 2 * i),
                                                                     v(otiles[tp] + 8 * r2 + 2 * i + 1)))
                    c.append(lambda d=d, f=f: S.ds_write("ds_write_b128", "v0", v(d, 4), (f // 4) * 16384 + ib * 4096 + (f % 4) * 1024))
            return c
        interleave(S, pvmf(O1, V1, P1), owrite(O0, 96, 0), 5)
        for f in owrite(O1, 128, 1): f()
        ST.stamp()
        if not cfg.get("early_srd", True): k2b.p2_srds(S)
        cfg["_probe"] = PR if cfg.get("probe2", False) else None
        k2b.p2_compute(S, cfg, ST, dbg="s[4:7]", fused=True)
        if cfg.get("probe", False):
            S.wait(vm=0)
            S.add(Inst("s_memrealtime s[92:93]", "smem", [], ["s92", "s93"]))
            S.add(Inst("s_getreg_b32 s94, hwreg(HW_REG_XCC_ID)", "salu", [], ["s94"]))
            S.wait(lgkm=0)
            S.salu("s_sub_u32", "s93", "s92", "s96")
            if cfg.get("probe2", False):
                S.salu("s_cmp_lg_u32", "s2", cfg.get("probe_wg", 0))
                S.branch("s_cbranch_scc1", "PRB_N")
                S.salu("s_cmp_lg_u32", "s43", 0)
                S.branch("s_cbranch_scc1", "PRB_N")
                S.valu("v_mov_b32", "v4", 0)
                for i in range(PR.n):
                    S.valu("v_mov_b32", "v2", f"s{PR.regs[i]}")
                    S.buf_store("buffer_store_dword", "v2", "v4", "s[4:7]", "0", 8 + 4 * i)
                    S.nop(2)
                S.valu("v_mov_b32", "v2", "s93")
                S.buf_store("buffer_store_dword", "v2", "v4", "s[4:7]", "0", 8 + 4 * PR.n)
                S.branch("s_branch", "PRB_N")
            S.salu("s_mul_i32", "s44", "s2", 7282)
            S.salu("s_lshr_b32", "s44", "s44", 16)
            S.salu("s_mul_i32", "s45", "s44", 9)
            S.salu("s_cmp_lg_u32", "s45", "s2")
            S.branch("s_cbranch_scc1", "PRB_N")
            S.salu("s_cmp_lg_u32", "s43", 0)
            S.branch("s_cbranch_scc1", "PRB_N")
            S.salu("s_cmp_gt_u32", "s44", 5)
            S.branch("s_cbranch_scc1", "PRB_N")
            S.salu("s_lshl_b32", "s44", "s44", 3)
            S.salu("s_add_u32", "s44", "s44", 8)
            S.valu("v_mov_b32", "v2", "s93")
            S.valu("v_mov_b32", "v3", "s94")
            S.valu("v_mov_b32", "v4", 0)
            S.buf_store("buffer_store_dwordx2", "v[2:3]", "v4", "s[4:7]", "s44")
            S.label("PRB_N")
        ST.flush(0, 14)
        S.endpgm()
        return
    interleave(S, pvmf(O1, V1, P1), ostore(O0, 96, "s70", "s72"), 5)
    for f in ostore(O1, 128, "s71", "s73"): f()
    ST.stamp()
    if cfg.get("stamps", False):
        S.wait(vm=0)
        ST.stamp()
    ST.flush(0, 14)
    S.endpgm()

def gen_k1(cfg):
    P = Stream("k1pro"); k1_prologue(P, cfg)
    P.salu("s_cmp_ge_u32", "s43", 4)
    P.branch("s_cbranch_scc1", "K1_FAST")
    parts = []
    X = Stream(); k1_consumer(X, cfg)
    A = Stream(); A.ins = list(P.ins) + X.ins
    fin = A.finalize()
    if cfg.get("audit"):
        for w in audit(fin): print("AUDIT compute:", w)
    parts.append(render(fin))
    nph = cfg.get("nphase", 1)
    Lc = Stream()
    body = k1_fast(Lc, cfg)
    setup = list(Lc.ins)
    if nph > 1:
        if cfg.get("phase_src", "idx") == "p":
            Lc.salu("s_mov_b32", "s15", "s40")
        elif cfg.get("phase_src") == "xcd":
            Lc.salu("s_and_b32", "s15", "s2", nph - 1)
        else:
            Lc.salu("s_lshr_b32", "s15", "s12", cfg.get("phase_shift", 0))
            Lc.salu("s_and_b32", "s15", "s15", nph - 1)
        for ph in range(1, nph):
            Lc.salu("s_cmp_eq_u32", "s15", ph)
            Lc.branch("s_cbranch_scc1", f"K1_PH{ph}")
    head = list(Lc.ins)
    for ph in range(nph):
        Lc.ins = []
        Stream.sfx = f"_p{ph}"
        ST = Stamper(Lc, cfg.get("stamps", False), 30)
        ST.stamp(); ST.stamp(real=True)
        body(Lc, ph, ST)
        lab = f"K1_PH{ph}"
        A = Stream(); A.ins = list(P.ins) + [Inst("K1_FAST:", "label")] + head + [Inst(lab + ":", "label")] + list(Lc.ins)
        f = A.finalize()
        if cfg.get("audit"):
            i0 = [k for k, i in enumerate(f) if i.kind == "label" and i.text == "K1_FAST:"][0]
            for w in audit(f[i0:]): print("AUDIT loader:", w)
        key = "K1_FAST:" if ph == 0 else lab + ":"
        idx = [k for k, i in enumerate(f) if i.kind == "label" and i.text == key][0]
        parts.append(render(f[idx:]))
    return "\n".join(parts) + "\nK1_DONE:\n    s_endpgm\n"

def gen_k2(cfg):
    S = Stream("k2")
    D = cfg.get("k2_depth", 4)
    R = D + 1
    S.salu("s_cmp_ge_u32", "s2", 256)
    S.branch("s_cbranch_scc1", "K2_DONE")
    if cfg.get("stamps", False):
        S.add(Inst(("s_memrealtime" if cfg.get("allreal") else "s_memtime") + " s[98:99]", "smem", [], ["s98", "s99"]))
    S.smem("s[16:17]", "s[0:1]", 32)
    S.smem("s[18:19]", "s[0:1]", 72)
    S.smem("s[36:37]", "s[0:1]", 80)
    S.smem("s[38:39]", "s[0:1]", 96)
    S.salu("s_and_b32", "s44", "s2", 7)
    S.salu("s_lshr_b32", "s45", "s2", 3)
    S.salu("s_lshr_b32", "s40", "s44", 2)
    S.salu("s_and_b32", "s44", "s44", 3)
    S.salu("s_lshl_b32", "s44", "s44", 2)
    S.salu("s_lshr_b32", "s41", "s45", 3)
    S.salu("s_add_u32", "s41", "s41", "s44")
    S.salu("s_and_b32", "s42", "s45", 7)
    S.valu("v_lshrrev_b32", "v1", 6, "v0")
    S.valu("v_readfirstlane_b32", "s43", "v1")
    S.valu("v_and_b32", "v1", 63, "v0")
    S.salu("s_cmp_eq_u32", "s40", 0)
    S.salu("s_cselect_b64", "s[16:17]", "s[16:17]", "s[18:19]")
    S.salu("s_lshl_b32", "s44", "s42", 7)
    S.salu("s_lshl_b32", "s45", "s43", 19)
    S.salu("s_add_u32", "s44", "s44", "s45")
    make_srd(S, 48, 16, 17, "s44", 4096 * 1024)
    S.salu("s_lshl_b32", "s44", "s40", 23)
    S.salu("s_lshl_b32", "s45", "s41", 19)
    S.salu("s_add_u32", "s44", "s44", "s45")
    S.salu("s_lshl_b32", "s45", "s43", 15)
    S.salu("s_add_u32", "s44", "s44", "s45")
    make_srd(S, 52, 38, 39, "s44", 2 * 32 * 262144)
    S.salu("s_lshl_b32", "s44", "s41", 17)
    S.salu("s_lshl_b32", "s45", "s40", 10)
    S.salu("s_add_u32", "s44", "s44", "s45")
    S.salu("s_lshl_b32", "s45", "s42", 7)
    S.salu("s_add_u32", "s44", "s44", "s45")
    make_srd(S, 56, 36, 37, "s44", 1024 * 2048)
    l = "v1"
    S.valu("v_lshrrev_b32", "v3", 3, l)
    S.valu("v_bfe_u32", "v4", l, 4, 1)
    S.valu("v_lshlrev_b32", "v4", 2, "v4")
    S.valu("v_and_b32", "v5", 7, l)
    S.valu("v_xor_b32", "v4", "v4", "v5")
    S.valu("v_lshlrev_b32", "v4", 4, "v4")
    S.valu("v_lshlrev_b32", "v3", 10, "v3")
    S.valu("v_add_u32", "v2", "v3", "v4")
    S.valu("v_lshlrev_b32", "v3", 4, l)
    S.salu("s_mul_i32", "s46", "s43", R * 2048)
    S.valu("v_bfe_u32", "v6", l, 2, 2)
    S.valu("v_lshrrev_b32", "v7", 5, l)
    S.valu("v_lshlrev_b32", "v7", 2, "v7")
    S.valu("v_add_u32", "v7", "v7", "v6")
    S.valu("v_lshlrev_b32", "v7", 7, "v7")
    S.valu("v_add_u32", "v7", "s46", "v7")
    S.valu("v_bfe_u32", "v8", l, 4, 1)
    S.valu("v_lshlrev_b32", "v8", 5, "v8")
    S.valu("v_add_u32", "v7", "v7", "v8")
    S.valu("v_and_b32", "v8", 3, l)
    S.valu("v_lshlrev_b32", "v8", 3, "v8")
    S.valu("v_add_u32", "v7", "v7", "v8")
    S.valu("v_bfe_u32", "v6", l, 3, 1)
    S.valu("v_lshlrev_b32", "v6", 6, "v6")
    S.valu("v_add_u32", "v4", "v7", "v6")
    S.valu("v_xor_b32", "v6", 64, "v6")
    S.valu("v_add_u32", "v5", "v7", "v6")
    if cfg.get("k2_rot", True):
        S.salu("s_lshl_b32", "s60", "s42", 2)
        S.salu("s_and_b32", "s61", "s41", 3)
        S.salu("s_lshl_b32", "s61", "s61", 3)
        S.salu("s_add_u32", "s60", "s60", "s61")
    else:
        S.salu("s_mov_b32", "s60", 0)
    OB = 16
    NOB = D + 1
    AB = OB + 8 * NOB
    ACC = 128
    assert AB + 16 <= ACC
    ldflags = cfg.get("k2_ldflags", "")
    def issue(n):
        slot = n % R
        fw = cfg.get("k2_wfl0", " nt") if n < 8 else ldflags
        fo = cfg.get("k2_ofl0", "") if n < 4 else ldflags
        S.salu("s_add_u32", "s62", "s60", n)
        S.salu("s_and_b32", "s62", "s62", 31)
        S.salu("s_lshl_b32", "s63", "s62", 14)
        for e in range(2):
            S.salu("s_add_u32", "m0", "s46", slot * 2048 + e * 1024)
            S.salu("s_add_u32", "s47", "s63", e * 8192)
            S.buf_dma("v2", "s[48:51]", "s47", tok=f"w{n}", flags=fw)
        ob = OB + 8 * (n % NOB)
        S.salu("s_lshl_b32", "s63", "s62", 10)
        for ib in range(2):
            S.salu("s_add_u32", "s47", "s63", ib * 262144)
            S.buf_load("buffer_load_dwordx4", v(ob + 4 * ib, 4), "v3", "s[52:55]", "s47", tok=f"o{n}", flags=fo)
    def areads(n):
        slot = n % R
        ab = AB + 8 * (n % 2)
        S.wait_vm_tok(f"w{n}")
        for nt2 in range(2):
            for jj in range(2):
                S.ds_read("ds_read_b64_tr_b16", v(ab + 4 * nt2 + 2 * jj, 2), v(4 + nt2), slot * 2048 + jj * 1024)
    NS = 32
    ST = Stamper(S, cfg.get("stamps", False), 10)
    ST.stamp(); ST.stamp(real=True)
    for n in range(D): issue(n)
    areads(0)
    ST.stamp()
    for n in range(NS):
        ab = AB + 8 * (n % 2); ob = OB + 8 * (n % NOB)
        def mf(nt2, ib):
            S.mfma(v(ACC + 32 * nt2 + 16 * ib, 16), v(ab + 4 * nt2, 4), v(ob + 4 * ib, 4),
                   0 if n == 0 else v(ACC + 32 * nt2 + 16 * ib, 16))
        if n % 4 == 0: ST.stamp()
        mf(0, 0)
        if n + D < NS: issue(n + D)
        mf(0, 1)
        if n + 1 < NS: areads(n + 1)
        mf(1, 0)
        mf(1, 1)
    ST.stamp()
    S.barrier()
    ST.stamp()
    S.salu("s_mul_i32", "s46", "s43", 17408)
    S.valu("v_and_b32", "v6", 31, l)
    S.valu("v_mul_u32_u24", "v6", 272, "v6")
    S.valu("v_lshrrev_b32", "v7", 5, l)
    S.valu("v_lshlrev_b32", "v7", 4, "v7")
    S.valu("v_add_u32", "v6", "v6", "v7")
    S.valu("v_add_u32", "v6", "s46", "v6")
    for nt2 in range(2):
        for ib in range(2):
            for q in range(4):
                S.ds_write("ds_write_b128", "v6", v(ACC + 32 * nt2 + 16 * ib + 4 * q, 4), ib * 32 * 272 + (32 * nt2 + 8 * q) * 4)
    S.wait(lgkm=0)
    S.barrier()
    S.valu("v_lshrrev_b32", "v6", 3, "v0")
    S.valu("v_and_b32", "v7", 7, "v0")
    S.valu("v_mul_u32_u24", "v8", 272, "v6")
    S.valu("v_lshlrev_b32", "v9", 5, "v7")
    S.valu("v_add_u32", "v8", "v8", "v9")
    S.valu("v_add_u32", "v9", 69632, "v8")
    for w in range(8):
        base = "v8" if w < 4 else "v9"
        S.ds_read("ds_read_b128", v(16 + 8 * w, 4), base, (w % 4) * 17408)
        S.ds_read("ds_read_b128", v(16 + 8 * w + 4, 4), base, (w % 4) * 17408 + 16)
    for w in range(1, 8):
        for i in range(8):
            S.valu("v_add_f32", v(16 + i), v(16 + i), v(16 + 8 * w + i))
    for i in range(4):
        S.valu("v_cvt_pk_bf16_f32", v(12 + i), v(16 + 2 * i), v(16 + 2 * i + 1))
    S.valu("v_lshlrev_b32", "v6", 11, "v6")
    S.valu("v_lshlrev_b32", "v7", 4, "v7")
    S.valu("v_add_u32", "v6", "v6", "v7")
    S.buf_store("buffer_store_dwordx4", "v[12:15]", "v6", "s[56:59]")
    if cfg.get("stamps", False):
        S.wait(vm=0)
        ST.stamp(); ST.stamp(real=True)
    ST.flush(1, 11)
    S.endpgm()
    txt = render(S.finalize()) + "\nK2_DONE:\n    s_endpgm\n"
    lds = max(8 * R * 2048, 8 * 17408)
    return txt, lds

def gen_k2b(cfg):
    import k2b
    P = Stream("k2bpro")
    P.salu("s_cmp_ge_u32", "s2", 256)
    P.branch("s_cbranch_scc1", "K2B_DONE")
    if cfg.get("stamps", False):
        P.add(Inst("s_memtime s[98:99]", "smem", [], ["s98", "s99"]))
    P.smem("s[24:25]", "s[0:1]", 32)
    P.smem("s[26:27]", "s[0:1]", 72)
    P.smem("s[36:37]", "s[0:1]", 80)
    P.smem("s[68:69]", "s[0:1]", 88)
    P.smem("s[38:39]", "s[0:1]", 96)
    P.salu("s_and_b32", "s44", "s2", 7)
    P.salu("s_lshr_b32", "s12", "s2", 3)
    P.salu("s_lshr_b32", "s40", "s44", 2)
    P.salu("s_and_b32", "s44", "s44", 3)
    P.salu("s_lshl_b32", "s44", "s44", 2)
    P.salu("s_and_b32", "s41", "s12", 3)
    P.salu("s_add_u32", "s41", "s41", "s44")
    P.salu("s_lshr_b32", "s42", "s12", 2)
    P.valu("v_lshrrev_b32", "v1", 6, "v0")
    P.valu("v_readfirstlane_b32", "s43", "v1")
    P.valu("v_and_b32", "v1", 63, "v0")
    P.salu("s_cmp_eq_u32", "s40", 0)
    P.salu("s_cselect_b64", "s[24:25]", "s[24:25]", "s[26:27]")
    P.salu("s_mov_b32", "s70", 256)
    P.salu("s_mov_b32", "s71", "0x20000")
    k2b.p2_srds(P)
    P.salu("s_and_b32", "s79", "s41", 3)
    P.salu("s_lshl_b32", "s79", "s79", 1)
    P.salu("s_add_u32", "s79", "s79", "s42")
    P.salu("s_and_b32", "s79", "s79", 7)
    if not cfg.get("p2_rot", True): P.salu("s_mov_b32", "s79", 0)
    P.salu("s_or_b32", "s44", "s2", "s43")
    P.salu("s_cmp_lg_u32", "s44", 0)
    P.branch("s_cbranch_scc1", "K2B_NONONCE")
    P.add(Inst("s_memrealtime s[44:45]", "smem", [], ["s44", "s45"]))
    P.wait(lgkm=0)
    P.salu("s_or_b32", "s44", "s44", 1)
    P.valu("v_mov_b32", "v2", "s44")
    P.valu("v_mov_b32", "v3", "s45")
    P.valu("v_mov_b32", "v4", 0)
    P.buf_store("buffer_store_dwordx2", "v[2:3]", "v4", "s[68:71]", flags=" sc1")
    P.label("K2B_NONONCE")
    if cfg.get("clkprobe", False):
        P.add(Inst("s_memtime s[90:91]", "smem", [], ["s90", "s91"]))
        P.add(Inst("s_memrealtime s[92:93]", "smem", [], ["s92", "s93"]))
        P.wait(lgkm=0)
    P.salu("s_cmp_ge_u32", "s43", 4)
    P.branch("s_cbranch_scc1", "K2B_LOAD")
    parts = []
    X = Stream(); ST = Stamper(X, cfg.get("stamps", False), 15)
    k2b.p2_compute(X, cfg, ST)
    if cfg.get("clkprobe", False):
        X.wait(vm=0)
        X.add(Inst("s_memtime s[94:95]", "smem", [], ["s94", "s95"]))
        X.add(Inst("s_memrealtime s[96:97]", "smem", [], ["s96", "s97"]))
        X.wait(lgkm=0)
        X.salu("s_sub_u32", "s94", "s94", "s90")
        X.salu("s_sub_u32", "s96", "s96", "s92")
        X.salu("s_or_b32", "s44", "s2", "s43")
        X.salu("s_cmp_lg_u32", "s44", 0)
        X.branch("s_cbranch_scc1", "K2B_NOPROBE")
        X.valu("v_mov_b32", "v2", "s94")
        X.valu("v_mov_b32", "v3", "s96")
        X.valu("v_mov_b32", "v4", 8)
        X.buf_store("buffer_store_dwordx2", "v[2:3]", "v4", "s[68:71]")
        X.label("K2B_NOPROBE")
    ST.flush(1, 14); X.endpgm()
    A = Stream(); A.ins = list(P.ins) + X.ins
    parts.append(render(A.finalize()))
    X = Stream(); ST = Stamper(X, cfg.get("stamps", False), 30)
    k2b.p2_loader(X, cfg, ST)
    ST.flush(1, 31); X.endpgm()
    A = Stream(); A.ins = list(P.ins) + [Inst("K2B_LOAD:", "label")] + X.ins
    f = A.finalize()
    idx = [k for k, i in enumerate(f) if i.kind == "label" and i.text == "K2B_LOAD:"][0]
    parts.append(render(f[idx:]))
    return "\n".join(parts) + "\nK2B_DONE:\n    s_endpgm\n"

def kernel_wrap(label, body):
    return f""".globl {label}
.p2align 8
.type {label},@function
{label}:
{body}
"""
def desc(label, vgpr, sgpr):
    return f""".p2align 6
.amdhsa_kernel {label}
  .amdhsa_next_free_vgpr {vgpr}
  .amdhsa_next_free_sgpr {sgpr}
  .amdhsa_accum_offset {vgpr}
  .amdhsa_group_segment_fixed_size 0
  .amdhsa_kernarg_size 104
  .amdhsa_user_sgpr_count 2
  .amdhsa_user_sgpr_kernarg_segment_ptr 1
  .amdhsa_system_sgpr_workgroup_id_x 1
.end_amdhsa_kernel
"""

def generate(cfg):
    cfg["_vslot"] = VSLOT
    Stamper.allreal = bool(cfg.get("allreal"))
    if cfg.get("launches") == ["fused"]: cfg["fused"] = True
    k1 = gen_k1(cfg)
    k2, lds2 = gen_k2(cfg)
    hdr = []
    order = cfg.get("launches", ["k1", "k2b"])
    for k in order:
        if k == "k1": hdr.append(f"; @launch kernel=attn_k1_kernel grid=(256,1,1) block=(512,1,1) lds=163840")
        if k == "k2": hdr.append(f"; @launch kernel=attn_k2_kernel grid=(256,1,1) block=(512,1,1) lds={lds2}")
        if k == "fused": hdr.append(f"; @launch kernel=attn_k1_kernel grid=(256,1,1) block=(512,1,1) lds=163840")
        if k == "nop": hdr.append(f"; @launch kernel=attn_nop_kernel grid=(256,1,1) block=(64,1,1) lds=0")
        if k == "k2b": hdr.append(f"; @launch kernel=attn_k2b_kernel grid=(256,1,1) block=(512,1,1) lds=131072")
    txt = "\n".join(hdr) + "\n"
    txt += '.amdgcn_target "amdgcn-amd-amdhsa--gfx950"\n.text\n'
    ks = []
    if "k1" in order or "fused" in order: ks.append(("attn_k1_kernel", k1, 256))
    if "k2" in order: ks.append(("attn_k2_kernel", k2, 192))
    if "k2b" in order: ks.append(("attn_k2b_kernel", gen_k2b(cfg), 256))
    if "nop" in order: ks.append(("attn_nop_kernel", "    s_endpgm\n", 8))
    for (n, b, vg) in ks: txt += kernel_wrap(n, b)
    txt += '.section .rodata,"a"\n'
    for (n, b, vg) in ks: txt += desc(n, vg, 102)
    if cfg.get("single", False):
        txt = txt.replace("; @launch kernel=attn_k1_kernel grid", "; @launch grid").replace("attn_k1_kernel", NAME + "_kernel")
    return txt

if __name__ == "__main__":
    import json
    cfg = {}
    out = f"cdna_kernels/{NAME}.s"
    for a in sys.argv[1:]:
        if a.startswith("-o"): out = a[2:]
        else:
            k, val = a.split("=", 1)
            try: val = json.loads(val)
            except Exception: pass
            cfg[k] = val
    open(out, "w").write(generate(cfg))
    print("wrote", out)
```

```python
import sys, argparse
from asmlib import *

NAME = "concat_heads__mha_block_cached__gqa_block_cached__near_ridge"

def interleave(S, mf, fill, per_gap, lead=0):
    fi = 0
    for _ in range(min(lead, len(fill))):
        fill[fi](); fi += 1
    for k, m in enumerate(mf):
        m()
        n = per_gap[k] if isinstance(per_gap, (list, tuple)) else per_gap
        for _ in range(n):
            if fi < len(fill):
                fill[fi](); fi += 1
    while fi < len(fill):
        fill[fi](); fi += 1

STAMP_BASE = 80
class Probe:
    regs = list(range(26, 36))
    def __init__(self, S, on):
        self.S = S; self.on = on; self.n = 0
    def mark(self):
        if not self.on or self.n >= len(self.regs): return
        S = self.S
        S.add(Inst("s_memrealtime s[92:93]", "smem", [], ["s92", "s93"]))
        S.wait(lgkm=0)
        S.salu("s_sub_u32", f"s{self.regs[self.n]}", "s92", "s96")
        self.n += 1
PROBE = [None]

class Stamper:
    allreal = False
    def __init__(self, S, on, vreg=None):
        self.S = S; self.on = on; self.n = 1; self.vreg = vreg
        if on:
            S.wait(lgkm=0)
            S.add(Inst(f"v_writelane_b32 v{vreg}, s98, 0", "valu", ["s98"], [f"v{vreg}"]))
    def stamp(self, real=False):
        if not self.on: return
        S = self.S
        op = "s_memrealtime" if (real or Stamper.allreal) else "s_memtime"
        S.add(Inst(f"{op} s[100:101]", "smem", [], ["s100", "s101"]))
        S.wait(lgkm=0)
        S.add(Inst(f"v_writelane_b32 v{self.vreg}, s100, {self.n}", "valu", ["s100"], [f"v{self.vreg}"]))
        self.n += 1
    def flush(self, region, vtmp=250):
        if not self.on: return
        S = self.S
        S.wait(vm=0, lgkm=0)
        S.smem("s[78:79]", "s[0:1]", 96)
        S.wait(lgkm=0)
        S.salu("s_add_u32", "s76", "s78", (64 << 20) + region * (1 << 20))
        S.salu("s_addc_u32", "s77", "s79", 0)
        S.salu("s_mov_b32", "s78", 1 << 20)
        S.salu("s_mov_b32", "s79", "0x20000")
        S.salu("s_lshl_b32", "s74", "s2", 11)
        S.salu("s_lshl_b32", "s75", "s43", 8)
        S.salu("s_add_u32", "s74", "s74", "s75")
        S.add(Inst("s_getreg_b32 s73, hwreg(HW_REG_XCC_ID)", "salu", [], ["s73"]))
        S.salu("s_add_u32", "s73", "s73", 1000)
        S.add(Inst(f"v_writelane_b32 v{self.vreg}, s73, 63", "valu", ["s73"], [f"v{self.vreg}"]))
        a = f"v{vtmp}"
        S.valu("v_mbcnt_lo_u32_b32", a, -1, 0)
        S.valu("v_mbcnt_hi_u32_b32", a, -1, a)
        S.valu("v_lshlrev_b32", a, 2, a)
        S.buf_store("buffer_store_dword", f"v{self.vreg}", a, "s[76:79]", "s74")
        S.wait(vm=0)

def load_ptrs(S, sel_sgpr_p):
    S.smem("s[16:31]", "s[0:1]", 0)
    S.smem("s[32:35]", "s[0:1]", 64)
    S.smem("s[36:37]", "s[0:1]", 80)
    S.smem("s[38:39]", "s[0:1]", 96)

def make_srd(S, srd, ptr_lo, ptr_hi, off_sgpr, total, off_hi=None):
    if isinstance(off_sgpr, int):
        S.salu("s_add_u32", s(srd), s(ptr_lo), off_sgpr)
        S.salu("s_addc_u32", s(srd + 1), s(ptr_hi), 0)
        S.salu("s_mov_b32", s(srd + 2), total - off_sgpr)
    else:
        S.salu("s_add_u32", s(srd), s(ptr_lo), off_sgpr)
        S.salu("s_addc_u32", s(srd + 1), s(ptr_hi), 0)
        S.salu("s_sub_u32", s(srd + 2), total, off_sgpr)
    S.salu("s_mov_b32", s(srd + 3), "0x20000")

NW = 4
NX = 2
WBASE = 65536
XBASE = WBASE + NW * 16384
KSLOT = [0, 16384, 32768, 49152]
VSLOT = [WBASE + 0 * 16384, WBASE + 1 * 16384, XBASE + 0 * 16384, WBASE + 2 * 16384]

def k1_prologue(S, cfg):
    S.salu("s_cmp_ge_u32", "s2", 256)
    S.branch("s_cbranch_scc1", "K1_DONE")
    if cfg.get("stamps", False):
        S.add(Inst(("s_memrealtime" if cfg.get("allreal") else "s_memtime") + " s[98:99]", "smem", [], ["s98", "s99"]))
    if cfg.get("probe", False):
        S.add(Inst("s_memrealtime s[96:97]", "smem", [], ["s96", "s97"]))
    load_ptrs(S, None)
    if cfg.get("fused", False):
        S.smem("s[4:5]", "s[0:1]", 88)
        S.salu("s_mov_b32", "s6", 256)
        S.salu("s_mov_b32", "s7", "0x20000")
    S.salu("s_and_b32", "s44", "s2", 7)
    S.salu("s_lshr_b32", "s45", "s2", 3)
    S.salu("s_lshr_b32", "s40", "s44", 2)
    S.salu("s_and_b32", "s44", "s44", 3)
    S.salu("s_lshl_b32", "s44", "s44", 2)
    S.salu("s_and_b32", "s41", "s45", 3)
    S.salu("s_add_u32", "s41", "s41", "s44")
    S.salu("s_lshr_b32", "s42", "s45", 2)
    S.salu("s_lshr_b32", "s12", "s2", 3)
    S.valu("v_lshrrev_b32", "v1", 6, "v0")
    S.valu("v_readfirstlane_b32", "s43", "v1")
    S.valu("v_and_b32", "v1", 63, "v0")
    if not cfg.get("fused", False):
        k1_ptrs(S, cfg, 1); k1_ptrs(S, cfg, 2)

def k1_ptrs(S, cfg, part):
    if part == 1:
        S.salu("s_cmp_eq_u32", "s40", 0)
        S.salu("s_cselect_b64", "s[16:17]", "s[16:17]", "s[26:27]")
        S.salu("s_cselect_b64", "s[22:23]", "s[22:23]", "s[32:33]")
        S.salu("s_cselect_b64", "s[18:19]", "s[18:19]", "s[28:29]")
        S.salu("s_cselect_b64", "s[20:21]", "s[20:21]", "s[30:31]")
        S.salu("s_cselect_b64", "s[24:25]", "s[24:25]", "s[34:35]")
        S.salu("s_lshl_b32", "s44", "s41", 9)
        make_srd(S, 48, 22, 23, "s44", 512 * 8192)
        S.salu("s_lshl_b32", "s44", "s42", 17)
        make_srd(S, 52, 16, 17, "s44", 1024 * 1024)
    else:
        S.salu("s_lshl_b32", "s44", "s42", 20)
        S.salu("s_lshl_b32", "s45", "s41", 14)
        S.salu("s_add_u32", "s44", "s44", "s45")
        make_srd(S, 56, 18, 19, "s44", 32 * 262144)
        make_srd(S, 60, 20, 21, "s44", 32 * 262144)
        S.salu("s_lshl_b32", "s45", "s40", 23)
        S.salu("s_add_u32", "s44", "s44", "s45")
        make_srd(S, 64, 38, 39, "s44", 2 * 32 * 262144)

def nonce_store(S):
    S.salu("s_or_b32", "s44", "s2", "s43")
    S.salu("s_cmp_lg_u32", "s44", 0)
    S.branch("s_cbranch_scc1", "F_NONONCE")
    S.add(Inst("s_memrealtime s[44:45]", "smem", [], ["s44", "s45"]))
    S.wait(lgkm=0)
    S.salu("s_or_b32", "s44", "s44", 1)
    S.valu("v_mov_b32", "v2", "s44")
    S.valu("v_mov_b32", "v3", "s45")
    S.valu("v_mov_b32", "v4", 0)
    S.buf_store("buffer_store_dwordx2", "v[2:3]", "v4", "s[4:7]", flags=" sc1")
    S.label("F_NONONCE")
    S.raw("s_waitcnt lgkmcnt(0)")

def k1_fast(S, cfg):
    if cfg.get("ldprio"): S.setprio(cfg["ldprio"])
    S.salu("s_sub_u32", "s44", "s43", 4)
    L = "v1"
    t0, t1, t2 = "v2", "v3", "v4"
    S.valu("v_lshrrev_b32", t0, 5, L)
    S.valu("v_and_b32", t1, 31, L)
    S.valu("v_lshlrev_b32", t2, 2, t0)
    S.valu("v_xor_b32", "v10", t1, t2)
    S.valu("v_lshlrev_b32", "v10", 4, "v10")
    S.valu("v_xor_b32", "v11", 128, "v10")
    S.valu("v_lshlrev_b32", t2, 13, t0)
    S.salu("s_lshl_b32", "s45", "s44", 16)
    S.valu("v_add_u32", t2, "s45", t2)
    S.valu("v_add_u32", "v10", "v10", t2)
    S.valu("v_add_u32", "v11", "v11", t2)
    S.valu("v_lshrrev_b32", t0, 3, L)
    S.valu("v_and_b32", t1, 7, L)
    S.valu("v_lshrrev_b32", t2, 4, L)
    S.valu("v_xor_b32", "v12", t1, t2)
    S.valu("v_lshlrev_b32", "v12", 4, "v12")
    S.valu("v_xor_b32", "v13", 64, "v12")
    S.valu("v_lshlrev_b32", t0, 10, t0)
    S.salu("s_lshl_b32", "s45", "s44", 15)
    S.valu("v_add_u32", t0, "s45", t0)
    S.valu("v_add_u32", "v12", "v12", t0)
    S.valu("v_add_u32", "v13", "v13", t0)
    S.salu("s_lshl_b32", "s47", "s44", 12)
    if cfg.get("rot", True):
        S.salu("s_and_b32", "s79", "s41", 3)
        S.salu("s_lshl_b32", "s79", "s79", 1)
        if cfg.get("rotmode", 0) in (8, 9, 10, 11):
            m = cfg["rotmode"]
            S.salu("s_and_b32", "s79", "s41", 3)
            if m == 10: S.salu("s_mov_b32", "s79", 0)
            if m == 11: S.salu("s_lshr_b32", "s79", "s79", 1); S.salu("s_lshl_b32", "s79", "s79", 1)
            if m != 9:
                S.salu("s_and_b32", "s45", "s42", 1)
                S.salu("s_add_u32", "s79", "s79", "s45")
        elif cfg.get("rotmode", 0) == 1:
            S.salu("s_and_b32", "s45", "s42", 6)
            S.salu("s_add_u32", "s79", "s79", "s45")
        elif cfg.get("rotmode", 0) == 3:
            pass
        elif cfg.get("rotmode", 0) == 4:
            S.salu("s_and_b32", "s45", "s42", 1)
            S.salu("s_add_u32", "s79", "s79", "s45")
        elif cfg.get("rotmode", 0) == 5:
            S.salu("s_lshr_b32", "s45", "s42", 2)
            S.salu("s_add_u32", "s79", "s79", "s45")
        elif cfg.get("rotmode", 0) == 6:
            S.salu("s_and_b32", "s45", "s42", 3)
            S.salu("s_add_u32", "s79", "s79", "s45")
        elif cfg.get("rotmode", 0) == 7:
            S.salu("s_and_b32", "s45", "s42", 1)
            S.salu("s_lshl_b32", "s45", "s45", 2)
            S.salu("s_add_u32", "s79", "s79", "s45")
            S.salu("s_lshr_b32", "s45", "s42", 2)
            S.salu("s_add_u32", "s79", "s79", "s45")
        elif cfg.get("rotmode", 0) == 2:
            S.salu("s_and_b32", "s45", "s42", 4)
            S.salu("s_add_u32", "s79", "s79", "s45")
        else:
            S.salu("s_add_u32", "s79", "s79", "s42")
        S.salu("s_and_b32", "s79", "s79", 7)
    else:
        S.salu("s_mov_b32", "s79", 0)
    if cfg.get("fused", False):
        k1_ptrs(S, cfg, 1)
    ldflags = cfg.get("ldflags", " nt")
    kvflags = cfg.get("kvflags", " nt")
    skip = cfg.get("skip", "")
    def dma(voff, srd, base, off, ldsbase, tok, flags):
        S.salu("s_add_u32", "m0", "s47", ldsbase)
        S.salu("s_add_u32", "s46", base, off)
        S.buf_dma(voff, srd, "s46", tok=tok, flags=flags)
    def issue_w(st):
        S.salu("s_add_u32", "s13", "s79", st // 2)
        S.salu("s_and_b32", "s13", "s13", 7)
        S.salu("s_lshl_b32", "s13", "s13", 19)
        for ii in range(4):
            dma("v10" if ii % 2 == 0 else "v11", "s[48:51]", "s13", (st % 2) * 262144 + ii * 16384,
                WBASE + (st % NW) * 16384 + ii * 1024, f"w{st}", cfg.get("ldflags0", ldflags) if st < 2 else ldflags)
    def issue_x(j):
        S.salu("s_add_u32", "s13", "s79", j)
        S.salu("s_and_b32", "s13", "s13", 7)
        S.salu("s_lshl_b32", "s13", "s13", 7)
        for ii in range(4):
            dma("v12" if ii % 2 == 0 else "v13", "s[52:55]", "s13", ii * 8192,
                XBASE + (j % NX) * 16384 + ii * 1024, f"x{j}", cfg.get("ldflags0", ldflags) if j < 2 else ldflags)
    if cfg.get("fused", False):
        issue_w(0); issue_x(0)
        k1_ptrs(S, cfg, 2)
        if cfg.get("tlbpf", False):
            S.salu("s_cmp_lg_u32", "s43", 4)
            S.branch("s_cbranch_scc1", "L_NOTLB")
            S.raw("v_mov_b32 v26, 0")
            S.raw("s_mov_b64 s[86:87], exec")
            S.raw("s_mov_b64 exec, 1")
            def touch(lo, hi, off):
                S.raw(f"s_add_u32 s92, s{lo}, {off}")
                S.raw(f"s_addc_u32 s93, s{hi}, 0")
                S.raw("global_load_dword v27, v26, s[92:93]")
            touch(56, 57, 0); touch(60, 61, 0); touch(64, 65, 0)
            S.raw("s_lshr_b32 s45, s41, 2")
            S.raw("s_lshl_b32 s45, s45, 20")
            touch(24, 25, "s45")
            S.raw("s_lshl_b32 s45, s40, 3")
            S.raw("s_add_u32 s45, s45, s42")
            S.raw("s_lshl_b32 s45, s45, 2")
            S.raw("s_and_b32 s46, s41, 3")
            S.raw("s_add_u32 s45, s45, s46")
            S.raw("s_lshl_b32 s45, s45, 18")
            S.raw(f"s_add_u32 s45, s45, {32 << 20}")
            touch(38, 39, "s45")
            touch(38, 39, 56 << 20)
            S.raw("s_lshl_b32 s45, s42, 18")
            touch(36, 37, "s45")
            S.raw("s_mov_b64 exec, s[86:87]")
            S.label("L_NOTLB")
        S.salu("s_sub_u32", "s44", "s43", 4)
    S.valu("v_lshrrev_b32", t2, 4, L)
    S.valu("v_and_b32", t1, 15, L)
    S.valu("v_lshlrev_b32", t0, 8, t2)
    S.salu("s_and_b32", "s45", "s44", 1)
    S.salu("s_lshl_b32", "s45", "s45", 12)
    S.salu("s_lshr_b32", "s46", "s44", 1)
    S.salu("s_lshl_b32", "s46", "s46", 18)
    S.salu("s_add_u32", "s45", "s45", "s46")
    S.valu("v_add_u32", t0, "s45", t0)
    S.valu("v_xor_b32", "v5", t1, t2)
    for ii in range(4):
        S.valu("v_xor_b32", v(14 + ii), 4 * ii, "v5")
        S.valu("v_lshlrev_b32", v(14 + ii), 4, v(14 + ii))
        S.valu("v_add_u32", v(14 + ii), v(14 + ii), t0)
        if ii: S.valu("v_add_u32", v(14 + ii), ii * 1024, v(14 + ii))
    S.valu("v_lshlrev_b32", "v5", 2, t2)
    S.valu("v_xor_b32", "v18", t1, "v5")
    S.valu("v_lshlrev_b32", "v18", 4, "v18")
    S.valu("v_add_u32", "v18", "v18", t0)
    S.salu("s_mov_b32", "s14", 0)
    def issue_k(cw):
        for ii in range(4):
            dma(v(14 + ii), "s[56:59]", "s14", 2 * (cw % 2) * 262144 + (cw // 2) * 8192, KSLOT[cw] + ii * 1024, "k", kvflags)
    VR = 32
    def issue_v(cw):
        for ii in range(4):
            S.salu("s_mov_b32", "s46", 2 * (cw % 2) * 262144 + (cw // 2) * 8192 + ii * 1024)
            S.buf_load("buffer_load_dwordx4", v(VR + 16 * cw + 4 * ii, 4), "v18", "s[60:63]", "s46", tok="v", flags=kvflags)
    S.valu("v_lshlrev_b32", "v19", 4, L)
    S.valu("v_add_u32", "v19", "s47", "v19")
    S.valu("v_add_u32", "v20", 65536, "v19")
    S.valu("v_add_u32", "v21", 131072, "v19")
    def write_v(cw):
        sb = VSLOT[cw]; areg = 19 + sb // 65536
        for ii in range(4):
            S.ds_write("ds_write_b128", v(areg), v(VR + 16 * cw + 4 * ii, 4), sb % 65536 + ii * 1024)

    def body(S, phase, ST):
        def issue(items):
            for it in items:
                if it[0] in skip: continue
                {"w": issue_w, "x": issue_x, "k": issue_k, "v": issue_v}[it[0]](it[1])
        sched = {b: [] for b in range(-2, 17)}
        sched[-2] = [("w", 0), ("x", 0), ("w", 1)] if not cfg.get("fused", False) else [("w", 1)]
        sched[-1] = [("w", 2), ("x", 1), ("w", 3)]
        for st in range(0, 16):
            if st + NW < 16: sched[st].append(("w", st + NW))
            if st % 2 == 1 and (st - 1) // 2 + NX < 8: sched[st].append(("x", (st - 1) // 2 + NX))
        items = [[("k", 0), ("k", 1)], [("k", 2), ("k", 3)], [("v", 0), ("v", 1)], [("v", 2), ("v", 3)]]
        if "btab8" in cfg:
            items8 = [("k", 0), ("k", 1), ("k", 2), ("k", 3), ("v", 0), ("v", 1), ("v", 2), ("v", 3)]
            b8 = cfg["btab8"]
            if isinstance(b8[0], list): b8 = b8[phase]
            for bt, it in zip(b8, items8): sched[bt].append(it)
            bursts = [b8[0], b8[3], b8[5], b8[7]]
        elif "btab" in cfg:
            bursts = cfg["btab"][phase]
            for bt, its in zip(bursts, items):
                sched[bt] += its
        else:
            bursts = cfg.get("bursts", [0, 3, 6, 9])
            for bt, its in zip(bursts, items):
                sched[min(bt + phase, 11)] += its
        wr = {12: [0], 13: [1, 2], 14: [3]}
        lastv = max(bursts[2:]) if ("btab" in cfg or "btab8" in cfg) else 0
        if lastv >= 11:
            wr = {15: [0, 1, 2, 3]}
        issue(sched[-2])
        ST.stamp()
        S.wait_vm_tok("w0"); S.wait_vm_tok("x0")
        ST.stamp()
        S.barrier()
        issue(sched[-1])
        for st in range(16):
            if st + 1 < 16:
                S.wait_vm_tok(f"w{st+1}")
                S.wait_vm_tok(f"x{(st+1)//2}")
            else:
                S.wait_vm_tok("k")
            if st >= 13: S.wait(lgkm=0)
            ST.stamp()
            S.barrier()
            ST.stamp()
            issue(sched[st])
            for cw in wr.get(st, []):
                if "v" not in skip: write_v(cw)
            if cfg.get("fused", False) and st == cfg.get("wopf_at", 12):
                import k2b
                k2b.p2_srds(S)
                if cfg.get("wopf", True):
                    S.valu("v_lshrrev_b32", "v2", 1, L)
                    S.valu("v_lshlrev_b32", "v2", 10, "v2")
                    S.valu("v_and_b32", "v3", 1, L)
                    S.valu("v_lshlrev_b32", "v3", 7, "v3")
                    S.valu("v_add_u32", "v2", "v2", "v3")
                    S.salu("s_sub_u32", "s44", "s43", 4)
                    S.salu("s_lshl_b32", "s44", "s44", 15)
                    S.salu("s_lshl_b32", "s45", "s42", 17)
                    S.salu("s_add_u32", "s44", "s44", "s45")
                    S.buf_load("buffer_load_dword", "v24", "v2", "s[48:51]", "s44", flags=cfg.get("wopf_fl", ""))
        if cfg.get("b16", False):
            S.wait(lgkm=0)
            S.barrier()
        if cfg.get("fused", False):
            import k2b
            k2b.p2_loader_fused(S, cfg, ST)
        ST.stamp(real=True)
        ST.flush(0, 31)
        S.endpgm()
    return body

def k1_consumer(S, cfg):
    cw = "s43"
    l = "v1"
    if cfg.get("cprio"): S.setprio(cfg["cprio"])
    if cfg.get("fused", False): nonce_store(S)
    if cfg.get("codepf", False):
        S.salu("s_cmp_ge_u32", "s12", cfg.get("codepf_wgs", 1))
        S.branch("s_cbranch_scc1", "C_NOPF")
        S.add(Inst("s_getpc_b64 s[92:93]", "salu", [], ["s92", "s93"]))
        S.label("C_PFBASE")
        S.valu("v_lshlrev_b32", "v14", 7, l)
        S.salu("s_lshl_b32", "s44", cw, 13)
        S.valu("v_add_u32", "v14", "s44", "v14")
        if cfg.get("loader_first", False):
            S.raw("s_sub_u32 s92, s92, C_PFBASE-K1_FAST")
            S.raw("s_subb_u32 s93, s93, 0")
            S.raw("s_mov_b32 s44, K1_DONE-K1_FAST-4")
        else:
            S.raw("s_mov_b32 s44, K1_DONE-C_PFBASE-4")
        S.raw("v_min_u32 v14, s44, v14")
        S.raw("s_nop 1")
        S.glob_load("v14", "v14", "s[92:93]")
        S.label("C_NOPF")
    T = [f"v{n}" for n in range(16, 32)]
    i_, hh, gb, kx, c4, t0, t1, t2 = T[:8]
    S.valu("v_and_b32", i_, 15, l)
    S.valu("v_lshrrev_b32", hh, 5, l)
    S.valu("v_bfe_u32", gb, l, 4, 1)
    S.valu("v_lshrrev_b32", kx, 2, i_)
    S.valu("v_and_b32", c4, 3, l)
    S.valu("v_and_b32", t0, 1, c4)
    S.valu("v_lshlrev_b32", t0, 4, t0)
    S.valu("v_lshrrev_b32", t1, 1, c4)
    S.valu("v_lshlrev_b32", t1, 3, t1)
    S.valu("v_or_b32", t0, t0, t1)
    S.valu("v_lshlrev_b32", t1, 5, gb)
    S.valu("v_or_b32", t0, t0, t1)
    S.valu("v_lshlrev_b32", t1, 3, hh)
    S.valu("v_add_u32", t1, t1, kx)
    S.valu("v_lshlrev_b32", t1, 9, t1)
    S.valu("v_add_u32", t0, t0, t1)
    S.salu("s_lshr_b32", "s44", cw, 1)
    S.salu("s_lshl_b32", "s44", "s44", 8)
    S.valu("v_add_u32", t0, "s44", t0)
    for t in range(4):
        S.valu("v_xor_b32", t1, t, kx)
        S.valu("v_lshlrev_b32", t1, 6, t1)
        S.valu("v_add_u32", v(2 + t), t0, t1)
        S.valu("v_add_u32", v(2 + t), WBASE, v(2 + t))
    S.valu("v_and_b32", t0, 31, l)
    S.valu("v_bfe_u32", t1, l, 1, 3)
    S.valu("v_xor_b32", t1, t1, hh)
    S.valu("v_lshlrev_b32", t0, 7, t0)
    S.salu("s_and_b32", "s44", cw, 1)
    S.salu("s_lshl_b32", "s44", "s44", 13)
    S.salu("s_add_u32", "s44", "s44", XBASE)
    S.valu("v_add_u32", t0, "s44", t0)
    for s4 in range(4):
        S.valu("v_xor_b32", t2, 2 * s4, t1)
        S.valu("v_lshlrev_b32", t2, 4, t2)
        S.valu("v_add_u32", v(10 + s4), t0, t2)
    S.salu("s_and_b32", "s44", cw, 1)
    S.salu("s_lshl_b32", "s44", "s44", 19)
    S.salu("s_lshr_b32", "s45", cw, 1)
    S.salu("s_lshl_b32", "s45", "s45", 13)
    S.salu("s_add_u32", "s70", "s44", "s45")
    S.salu("s_add_u32", "s71", "s70", 262144)
    S.salu("s_add_u32", "s72", "s70", 4096)
    S.salu("s_add_u32", "s73", "s71", 4096)
    def sel4(dst, vals):
        S.salu("s_mov_b32", dst, vals[0])
        for c in range(1, 4):
            S.salu("s_cmp_eq_u32", cw, c)
            S.salu("s_cselect_b32", dst, vals[c], dst)
    sel4("s74", KSLOT); sel4("s75", VSLOT)
    import math, struct
    c = (128 ** -0.5) * math.log2(math.e)
    S.salu("s_mov_b32", "s76", hex(struct.unpack("<I", struct.pack("<f", c))[0]))

    ABUF = [16, 32]; BBUF = [48, 56]
    ACC = lambda ib, t: 128 + 64 * ib + 16 * t
    def reads(ks):
        st, sub = ks // 2, ks % 2
        j, s4 = ks // 4, ks % 4
        slot = st % NW
        buf = ks % 2
        r = []
        def rb(ib):
            return lambda: S.ds_read("ds_read_b128", v(BBUF[buf] + 4 * ib, 4), v(10 + s4), (j % NX) * 16384 + ib * 4096)
        def ra(t, jj):
            base = 2 + t
            return lambda: S.ds_read("ds_read_b64_tr_b16", v(ABUF[buf] + 4 * t + 2 * jj, 2), v(base),
                                     (slot % 4) * 16384 + sub * 8192 + jj * 2048)
        r += [rb(0), ra(0, 0), ra(0, 1), rb(1), ra(1, 0), ra(1, 1), ra(2, 0), ra(2, 1), ra(3, 0), ra(3, 1)]
        return r
    def mfmas(ks, order):
        buf = ks % 2
        m = []
        for (t, ib) in order:
            first = (ks == 0)
            def f(t=t, ib=ib, first=first):
                S.mfma(v(ACC(ib, t), 16), v(ABUF[buf] + 4 * t, 4), v(BBUF[buf] + 4 * ib, 4), 0 if first else v(ACC(ib, t), 16))
            m.append(f)
        return m
    if cfg.get("fused", False) and cfg.get("early_srd", True):
        import k2b
        k2b.p2_srds(S)
    ST = Stamper(S, cfg.get("stamps", False), 15)
    PR = Probe(S, cfg.get("probe2", False)); PROBE[0] = PR
    ST.stamp()
    PR.mark()
    S.barrier()
    PR.mark()
    ST.stamp()
    for f in reads(0): f()
    std = [(0, 0), (0, 1), (1, 0), (1, 1), (2, 0), (2, 1), (3, 0), (3, 1)]
    last = [(0, 0), (1, 0), (2, 0), (3, 0), (0, 1), (1, 1), (2, 1), (3, 1)]
    def kv_addr_code():
        c = []
        a = lambda *x, **k: c.append(lambda: S.valu(*x, **k))
        a("v_and_b32", "v0", 15, l)
        a("v_lshrrev_b32", "v14", 5, l)
        a("v_xor_b32", "v0", "v0", "v14")
        a("v_lshlrev_b32", "v0", 4, "v0")
        a("v_and_b32", "v2", 31, l)
        a("v_lshlrev_b32", "v2", 8, "v2")
        a("v_add_u32", "v2", "s74", "v2")
        a("v_or_b32", "v2", "v2", "v0")
        for cidx in range(1, 8):
            a("v_xor_b32", v(2 + cidx), (2 * cidx) << 4, "v2")
        return c
    def v_addr_code():
        c = []
        a = lambda *x, **k: c.append(lambda: S.valu(*x, **k))
        a("v_bfe_u32", "v0", l, 2, 2)
        a("v_lshrrev_b32", "v14", 5, l)
        a("v_lshlrev_b32", "v14", 2, "v14")
        a("v_add_u32", "v14", "v14", "v0")
        a("v_lshlrev_b32", "v14", 8, "v14")
        a("v_add_u32", "v14", "s75", "v14")
        a("v_bfe_u32", "v10", l, 4, 1)
        a("v_lshlrev_b32", "v10", 5, "v10")
        a("v_add_u32", "v14", "v14", "v10")
        a("v_and_b32", "v10", 3, l)
        a("v_lshlrev_b32", "v10", 3, "v10")
        a("v_add_u32", "v14", "v14", "v10")
        a("v_lshlrev_b32", "v0", 6, "v0")
        for tp in range(4):
            a("v_xor_b32", v(10 + tp), tp << 6, "v0")
            a("v_add_u32", v(10 + tp), v(10 + tp), "v14")
        return c

    K0, QB0, QB1, K1 = 96, 64, 16, 144
    S0, S1 = 128, 176
    P0, P1 = 48, 56
    V0, V1 = 96, 144
    def kreads(ib, base):
        r = []
        for t in range(4):
            for u in range(2):
                cidx = 2 * t + u
                r.append(lambda cidx=cidx: S.ds_read("ds_read_b128", v(base + 4 * cidx, 4), v(2 + cidx), ib * 8192))
        return r
    def vreads(ib, base):
        r = []
        for u in range(2):
            for tp in range(4):
                for jj in range(2):
                    r.append(lambda tp=tp, u=u, jj=jj: S.ds_read("ds_read_b64_tr_b16", v(base + 4 * (2 * tp + u) + 2 * jj, 2),
                                                                v(10 + tp), ib * 8192 + u * 4096 + jj * 2048))
        return r

    for ks in range(32):
        sub = ks % 2
        if ks % 2 == 0: ST.stamp()
        if sub == 1:
            S.wait(lgkm=0)
            S.barrier()
        fill = []
        if cfg.get("nocompute", False) and ks + 1 < 32:
            continue
        if ks + 1 < 32:
            fill += reads(ks + 1)
            interleave(S, mfmas(ks, std), fill, 2)
        else:
            fill += kv_addr_code() + kreads(0, K0) + v_addr_code()
            interleave(S, mfmas(ks, last), fill, [8, 8, 4, 4, 6, 6, 6, 6])

    def cvt(dst, src, n):
        return [lambda i=i: S.valu("v_cvt_pk_bf16_f32", v(dst + i), v(src + 2 * i), v(src + 2 * i + 1)) for i in range(n)]
    def smf(acc, kb, qb):
        m = []
        for cidx in range(8):
            m.append(lambda cidx=cidx: S.mfma(v(acc, 16), v(kb + 4 * cidx, 4), v(qb + 4 * cidx, 4), 0 if cidx == 0 else v(acc, 16)))
        return m
    def softmax(acc, pdst, tm):
        c = []
        a = lambda *x, **k: c.append(lambda: S.valu(*x, **k))
        m, m2, t, t2 = [v(tm + i) for i in range(4)]
        a("v_max3_f32", m, v(acc), v(acc + 1), v(acc + 2))
        a("v_max3_f32", m2, v(acc + 3), v(acc + 4), v(acc + 5))
        a("v_max3_f32", m, m, v(acc + 6), v(acc + 7))
        a("v_max3_f32", m2, m2, v(acc + 8), v(acc + 9))
        a("v_max3_f32", m, m, v(acc + 10), v(acc + 11))
        a("v_max3_f32", m2, m2, v(acc + 12), v(acc + 13))
        a("v_max3_f32", m, m, v(acc + 14), v(acc + 15))
        a("v_max_f32", m, m, m2)
        a("v_mov_b32", m2, m)
        a("v_permlane32_swap_b32", m2, m)
        a("v_max_f32", m, m, m2)
        a("v_mul_f32", m, "s76", m)
        for r in range(16):
            a("v_fma_f32", v(acc + r), v(acc + r), "s76", "-" + m)
        for r in range(16):
            a("v_exp_f32", v(acc + r), v(acc + r))
        a("v_add_f32", t, v(acc), v(acc + 1))
        a("v_add_f32", t2, v(acc + 2), v(acc + 3))
        for r in range(4, 16, 2):
            a("v_add_f32", t, t, v(acc + r))
            a("v_add_f32", t2, t2, v(acc + r + 1))
        a("v_add_f32", t, t, t2)
        a("v_mov_b32", t2, t)
        a("v_permlane32_swap_b32", t2, t)
        a("v_add_f32", t, t, t2)
        a("v_rcp_f32", t, t)
        for r in range(16):
            a("v_mul_f32", v(acc + r), v(acc + r), t)
        for r in range(8):
            a("v_cvt_pk_bf16_f32", v(pdst + r), v(acc + 2 * r), v(acc + 2 * r + 1))
        return c
    def pvmf(otiles, vb, pb):
        m = []
        for u in range(2):
            for tp in range(4):
                m.append(lambda tp=tp, u=u: S.mfma(v(otiles[tp], 16), v(vb + 4 * (2 * tp + u), 4), v(pb + 4 * u, 4),
                                                   0 if u == 0 else v(otiles[tp], 16)))
        return m
    stflags = cfg.get("stflags", "")
    def ostore(otiles, tmp, so_lo, so_hi):
        c = []
        for tp in range(4):
            for r2 in range(2):
                f = 2 * tp + r2
                d = tmp + 4 * f
                for i in range(4):
                    c.append(lambda d=d, i=i, tp=tp, r2=r2: S.valu("v_cvt_pk_bf16_f32", v(d + i), v(otiles[tp] + 8 * r2 + 2 * i),
                                                                 v(otiles[tp] + 8 * r2 + 2 * i + 1)))
                c.append(lambda d=d, f=f: S.buf_store("buffer_store_dwordx4", v(d, 4), "v0", "s[64:67]",
                                                      so_lo if f < 4 else so_hi, (f % 4) * 1024, flags=stflags))
        return c
    ST.stamp()
    PR.mark()
    O0 = [192, 208, 224, 240]
    O1 = [64, 80, 16, 32]
    if cfg.get("attn3", False):
        c0 = cvt(QB0, ACC(0, 0), 32); c1 = cvt(QB1, ACC(1, 0), 32)
        s0 = smf(S0, K0, QB0); s1 = smf(S1, K1, QB1)
        for f in c0[:8]: f()
        interleave(S, s0, c0[8:] + kreads(1, K1) + c1, [8, 1, 8, 1, 8, 6, 6, 6])
        S.wait(lgkm=0)
        S.barrier()
        ST.stamp()
        sm0 = softmax(S0, P0, 2)
        v0r = vreads(0, V0)
        S.valu("v_lshlrev_b32", "v0", 4, l)
        S.salu("s_lshr_b32", "s44", cw, 1)
        S.salu("s_lshl_b32", "s44", "s44", 15)
        S.salu("s_and_b32", "s45", cw, 1)
        S.salu("s_lshl_b32", "s45", "s45", 13)
        S.salu("s_add_u32", "s44", "s44", "s45")
        S.valu("v_add_u32", "v0", "s44", "v0")
        interleave(S, s1, v0r + sm0[:34], [4, 4, 4, 6, 8, 8, 8, 8])
        for i in range(4):
            S.ds_write("ds_write_b128", "v0", v(S1 + 4 * i, 4), 4096 + i * 1024)
        for f in sm0[34:50]: f()
        S.wait(lgkm=0)
        S.barrier()
        ST.stamp()
        for f in sm0[50:]: f()
        def owrite3(otiles, tmp, ib, tps):
            c = []
            for tp in tps:
                for r2 in range(2):
                    f = 2 * tp + r2
                    d = tmp + 4 * f
                    for i in range(4):
                        c.append(lambda d=d, i=i, tp=tp, r2=r2: S.valu("v_cvt_pk_bf16_f32", v(d + i), v(otiles[tp] + 8 * r2 + 2 * i), v(otiles[tp] + 8 * r2 + 2 * i + 1)))
                    c.append(lambda d=d, f=f: S.ds_write("ds_write_b128", "v0", v(d, 4), (f // 4) * 16384 + ib * 4096 + (f % 4) * 1024))
            return c
        def pv(tp, u): return lambda: S.mfma(v(O0[tp], 16), v(V0 + 4 * (2 * tp + u), 4), v(P0 + 4 * u, 4), 0 if u == 0 else v(O0[tp], 16))
        for f in (pv(0, 0), pv(1, 0), pv(0, 1), pv(1, 1)): f()
        interleave(S, [pv(2, 0), pv(3, 0), pv(2, 1), pv(3, 1)], owrite3(O0, 64, 0, [0]), [0, 3, 3, 4])
        for f in owrite3(O0, 64, 0, [1, 2, 3]): f()
        ST.stamp()
        import k2b
        if not cfg.get("early_srd", True): k2b.p2_srds(S)
        cfg["_probe"] = PR if cfg.get("probe2", False) else None
        k2b.p2_compute(S, cfg, ST, dbg="s[4:7]", fused=True)
        ST.flush(0, 14)
        S.endpgm()
        return
    if cfg.get("attn2", False):
        c0 = cvt(QB0, ACC(0, 0), 32); c1 = cvt(QB1, ACC(1, 0), 32)
        s0 = smf(S0, K0, QB0); s1 = smf(S1, K1, QB1)
        for f in c0[:8]: f()
        k1r = kreads(1, K1)
        fill = c0[8:] + k1r + c1
        interleave(S, s0, fill, [8, 1, 8, 1, 8, 6, 6, 6])
        if cfg.get("fused", False):
            S.wait(lgkm=0)
            S.barrier()
        ST.stamp()
        sm0 = softmax(S0, P0, 2); sm1 = softmax(S1, P1, 6)
        v0r = vreads(0, V0); v1r = vreads(1, V1)
        interleave(S, s1, v0r + sm0[:30], [4, 4, 4, 4, 6, 8, 8, 8])
        a_, b_ = sm0[30:], sm1
        for f in v1r[:0]: f()
        i = j = 0
        while i < len(a_) or j < len(b_):
            if i < len(a_): a_[i](); i += 1
            if j < len(b_) and (i >= 10 or i >= len(a_)): b_[j](); j += 1
            if i >= len(a_): break
        interleave(S, pvmf(O0, V0, P0), v1r + b_[j:], 8)
    else:
        for f in cvt(QB0, ACC(0, 0), 32): f()
        interleave(S, smf(S0, K0, QB0), kreads(1, K1) + cvt(QB1, ACC(1, 0), 32), 5)
        if cfg.get("b16", False): S.barrier()
        if cfg.get("fused", False):
            S.wait(lgkm=0)
            S.barrier()
        ST.stamp()
        sm0 = softmax(S0, P0, 2)
        interleave(S, smf(S1, K1, QB1), vreads(0, V0) + sm0[:40], [2, 2, 2, 2, 2, 2, 2, 2])
        for f in sm0[40:]: f()
        sm1 = softmax(S1, P1, 6)
        interleave(S, pvmf(O0, V0, P0), vreads(1, V1) + sm1, 8)
    S.valu("v_lshlrev_b32", "v0", 4, l)
    if cfg.get("fused", False):
        import k2b
        S.salu("s_lshr_b32", "s44", cw, 1)
        S.salu("s_lshl_b32", "s44", "s44", 15)
        S.salu("s_and_b32", "s45", cw, 1)
        S.salu("s_lshl_b32", "s45", "s45", 13)
        S.salu("s_add_u32", "s44", "s44", "s45")
        S.valu("v_add_u32", "v0", "s44", "v0")
        def owrite(otiles, tmp, ib):
            c = []
            for tp in range(4):
                for r2 in range(2):
                    f = 2 * tp + r2
                    d = tmp + 4 * f
                    for i in range(4):
                        c.append(lambda d=d, i=i, tp=tp, r2=r2: S.valu("v_cvt_pk_bf16_f32", v(d + i), v(otiles[tp] + 8 * r2 + 2 * i),
                                                                     v(otiles[tp] + 8 * r2 + 2 * i + 1)))
                    c.append(lambda d=d, f=f: S.ds_write("ds_write_b128", "v0", v(d, 4), (f // 4) * 16384 + ib * 4096 + (f % 4) * 1024))
            return c
        interleave(S, pvmf(O1, V1, P1), owrite(O0, 96, 0), 5)
        for f in owrite(O1, 128, 1): f()
        ST.stamp()
        if not cfg.get("early_srd", True): k2b.p2_srds(S)
        cfg["_probe"] = PR if cfg.get("probe2", False) else None
        k2b.p2_compute(S, cfg, ST, dbg="s[4:7]", fused=True)
        if cfg.get("probe", False):
            S.wait(vm=0)
            S.add(Inst("s_memrealtime s[92:93]", "smem", [], ["s92", "s93"]))
            S.add(Inst("s_getreg_b32 s94, hwreg(HW_REG_XCC_ID)", "salu", [], ["s94"]))
            S.wait(lgkm=0)
            S.salu("s_sub_u32", "s93", "s92", "s96")
            if cfg.get("probe2", False):
                S.salu("s_cmp_lg_u32", "s2", cfg.get("probe_wg", 0))
                S.branch("s_cbranch_scc1", "PRB_N")
                S.salu("s_cmp_lg_u32", "s43", 0)
                S.branch("s_cbranch_scc1", "PRB_N")
                S.valu("v_mov_b32", "v4", 0)
                for i in range(PR.n):
                    S.valu("v_mov_b32", "v2", f"s{PR.regs[i]}")
                    S.buf_store("buffer_store_dword", "v2", "v4", "s[4:7]", "0", 8 + 4 * i)
                    S.nop(2)
                S.valu("v_mov_b32", "v2", "s93")
                S.buf_store("buffer_store_dword", "v2", "v4", "s[4:7]", "0", 8 + 4 * PR.n)
                S.branch("s_branch", "PRB_N")
            S.salu("s_mul_i32", "s44", "s2", 7282)
            S.salu("s_lshr_b32", "s44", "s44", 16)
            S.salu("s_mul_i32", "s45", "s44", 9)
            S.salu("s_cmp_lg_u32", "s45", "s2")
            S.branch("s_cbranch_scc1", "PRB_N")
            S.salu("s_cmp_lg_u32", "s43", 0)
            S.branch("s_cbranch_scc1", "PRB_N")
            S.salu("s_cmp_gt_u32", "s44", 5)
            S.branch("s_cbranch_scc1", "PRB_N")
            S.salu("s_lshl_b32", "s44", "s44", 3)
            S.salu("s_add_u32", "s44", "s44", 8)
            S.valu("v_mov_b32", "v2", "s93")
            S.valu("v_mov_b32", "v3", "s94")
            S.valu("v_mov_b32", "v4", 0)
            S.buf_store("buffer_store_dwordx2", "v[2:3]", "v4", "s[4:7]", "s44")
            S.label("PRB_N")
        ST.flush(0, 14)
        S.endpgm()
        return
    interleave(S, pvmf(O1, V1, P1), ostore(O0, 96, "s70", "s72"), 5)
    for f in ostore(O1, 128, "s71", "s73"): f()
    ST.stamp()
    if cfg.get("stamps", False):
        S.wait(vm=0)
        ST.stamp()
    ST.flush(0, 14)
    S.endpgm()

def gen_k1(cfg):
    P = Stream("k1pro"); k1_prologue(P, cfg)
    P.salu("s_cmp_ge_u32", "s43", 4)
    P.branch("s_cbranch_scc1", "K1_FAST")
    parts = []
    X = Stream(); k1_consumer(X, cfg)
    A = Stream(); A.ins = list(P.ins) + X.ins
    fin = A.finalize()
    if cfg.get("audit"):
        for w in audit(fin): print("AUDIT compute:", w)
    parts.append(render(fin))
    nph = cfg.get("nphase", 1)
    Lc = Stream()
    body = k1_fast(Lc, cfg)
    setup = list(Lc.ins)
    if nph > 1:
        if cfg.get("phase_src", "idx") == "p":
            Lc.salu("s_mov_b32", "s15", "s40")
        elif cfg.get("phase_src") == "xcd":
            Lc.salu("s_and_b32", "s15", "s2", nph - 1)
        else:
            Lc.salu("s_lshr_b32", "s15", "s12", cfg.get("phase_shift", 0))
            Lc.salu("s_and_b32", "s15", "s15", nph - 1)
        for ph in range(1, nph):
            Lc.salu("s_cmp_eq_u32", "s15", ph)
            Lc.branch("s_cbranch_scc1", f"K1_PH{ph}")
    head = list(Lc.ins)
    for ph in range(nph):
        Lc.ins = []
        Stream.sfx = f"_p{ph}"
        ST = Stamper(Lc, cfg.get("stamps", False), 30)
        ST.stamp(); ST.stamp(real=True)
        body(Lc, ph, ST)
        lab = f"K1_PH{ph}"
        A = Stream(); A.ins = list(P.ins) + [Inst("K1_FAST:", "label")] + head + [Inst(lab + ":", "label")] + list(Lc.ins)
        f = A.finalize()
        if cfg.get("audit"):
            i0 = [k for k, i in enumerate(f) if i.kind == "label" and i.text == "K1_FAST:"][0]
            for w in audit(f[i0:]): print("AUDIT loader:", w)
        key = "K1_FAST:" if ph == 0 else lab + ":"
        idx = [k for k, i in enumerate(f) if i.kind == "label" and i.text == key][0]
        parts.append(render(f[idx:]))
    if cfg.get("loader_first", False) and nph == 1:
        comp = parts[0]; load = parts[1]
        marker = "    s_cbranch_scc1 K1_FAST\n"
        i = comp.index(marker)
        pro, rest = comp[:i], comp[i + len(marker):]
        txt = pro + "    s_cbranch_scc0 K1_COMP\n" + load + "\nK1_COMP:\n" + rest
        return txt + "\nK1_DONE:\n    s_endpgm\n"
    return "\n".join(parts) + "\nK1_DONE:\n    s_endpgm\n"

def gen_k2(cfg):
    S = Stream("k2")
    D = cfg.get("k2_depth", 4)
    R = D + 1
    S.salu("s_cmp_ge_u32", "s2", 256)
    S.branch("s_cbranch_scc1", "K2_DONE")
    if cfg.get("stamps", False):
        S.add(Inst(("s_memrealtime" if cfg.get("allreal") else "s_memtime") + " s[98:99]", "smem", [], ["s98", "s99"]))
    S.smem("s[16:17]", "s[0:1]", 32)
    S.smem("s[18:19]", "s[0:1]", 72)
    S.smem("s[36:37]", "s[0:1]", 80)
    S.smem("s[38:39]", "s[0:1]", 96)
    S.salu("s_and_b32", "s44", "s2", 7)
    S.salu("s_lshr_b32", "s45", "s2", 3)
    S.salu("s_lshr_b32", "s40", "s44", 2)
    S.salu("s_and_b32", "s44", "s44", 3)
    S.salu("s_lshl_b32", "s44", "s44", 2)
    S.salu("s_lshr_b32", "s41", "s45", 3)
    S.salu("s_add_u32", "s41", "s41", "s44")
    S.salu("s_and_b32", "s42", "s45", 7)
    S.valu("v_lshrrev_b32", "v1", 6, "v0")
    S.valu("v_readfirstlane_b32", "s43", "v1")
    S.valu("v_and_b32", "v1", 63, "v0")
    S.salu("s_cmp_eq_u32", "s40", 0)
    S.salu("s_cselect_b64", "s[16:17]", "s[16:17]", "s[18:19]")
    S.salu("s_lshl_b32", "s44", "s42", 7)
    S.salu("s_lshl_b32", "s45", "s43", 19)
    S.salu("s_add_u32", "s44", "s44", "s45")
    make_srd(S, 48, 16, 17, "s44", 4096 * 1024)
    S.salu("s_lshl_b32", "s44", "s40", 23)
    S.salu("s_lshl_b32", "s45", "s41", 19)
    S.salu("s_add_u32", "s44", "s44", "s45")
    S.salu("s_lshl_b32", "s45", "s43", 15)
    S.salu("s_add_u32", "s44", "s44", "s45")
    make_srd(S, 52, 38, 39, "s44", 2 * 32 * 262144)
    S.salu("s_lshl_b32", "s44", "s41", 17)
    S.salu("s_lshl_b32", "s45", "s40", 10)
    S.salu("s_add_u32", "s44", "s44", "s45")
    S.salu("s_lshl_b32", "s45", "s42", 7)
    S.salu("s_add_u32", "s44", "s44", "s45")
    make_srd(S, 56, 36, 37, "s44", 1024 * 2048)
    l = "v1"
    S.valu("v_lshrrev_b32", "v3", 3, l)
    S.valu("v_bfe_u32", "v4", l, 4, 1)
    S.valu("v_lshlrev_b32", "v4", 2, "v4")
    S.valu("v_and_b32", "v5", 7, l)
    S.valu("v_xor_b32", "v4", "v4", "v5")
    S.valu("v_lshlrev_b32", "v4", 4, "v4")
    S.valu("v_lshlrev_b32", "v3", 10, "v3")
    S.valu("v_add_u32", "v2", "v3", "v4")
    S.valu("v_lshlrev_b32", "v3", 4, l)
    S.salu("s_mul_i32", "s46", "s43", R * 2048)
    S.valu("v_bfe_u32", "v6", l, 2, 2)
    S.valu("v_lshrrev_b32", "v7", 5, l)
    S.valu("v_lshlrev_b32", "v7", 2, "v7")
    S.valu("v_add_u32", "v7", "v7", "v6")
    S.valu("v_lshlrev_b32", "v7", 7, "v7")
    S.valu("v_add_u32", "v7", "s46", "v7")
    S.valu("v_bfe_u32", "v8", l, 4, 1)
    S.valu("v_lshlrev_b32", "v8", 5, "v8")
    S.valu("v_add_u32", "v7", "v7", "v8")
    S.valu("v_and_b32", "v8", 3, l)
    S.valu("v_lshlrev_b32", "v8", 3, "v8")
    S.valu("v_add_u32", "v7", "v7", "v8")
    S.valu("v_bfe_u32", "v6", l, 3, 1)
    S.valu("v_lshlrev_b32", "v6", 6, "v6")
    S.valu("v_add_u32", "v4", "v7", "v6")
    S.valu("v_xor_b32", "v6", 64, "v6")
    S.valu("v_add_u32", "v5", "v7", "v6")
    if cfg.get("k2_rot", True):
        S.salu("s_lshl_b32", "s60", "s42", 2)
        S.salu("s_and_b32", "s61", "s41", 3)
        S.salu("s_lshl_b32", "s61", "s61", 3)
        S.salu("s_add_u32", "s60", "s60", "s61")
    else:
        S.salu("s_mov_b32", "s60", 0)
    OB = 16
    NOB = D + 1
    AB = OB + 8 * NOB
    ACC = 128
    assert AB + 16 <= ACC
    ldflags = cfg.get("k2_ldflags", "")
    def issue(n):
        slot = n % R
        fw = cfg.get("k2_wfl0", " nt") if n < 8 else ldflags
        fo = cfg.get("k2_ofl0", "") if n < 4 else ldflags
        S.salu("s_add_u32", "s62", "s60", n)
        S.salu("s_and_b32", "s62", "s62", 31)
        S.salu("s_lshl_b32", "s63", "s62", 14)
        for e in range(2):
            S.salu("s_add_u32", "m0", "s46", slot * 2048 + e * 1024)
            S.salu("s_add_u32", "s47", "s63", e * 8192)
            S.buf_dma("v2", "s[48:51]", "s47", tok=f"w{n}", flags=fw)
        ob = OB + 8 * (n % NOB)
        S.salu("s_lshl_b32", "s63", "s62", 10)
        for ib in range(2):
            S.salu("s_add_u32", "s47", "s63", ib * 262144)
            S.buf_load("buffer_load_dwordx4", v(ob + 4 * ib, 4), "v3", "s[52:55]", "s47", tok=f"o{n}", flags=fo)
    def areads(n):
        slot = n % R
        ab = AB + 8 * (n % 2)
        S.wait_vm_tok(f"w{n}")
        for nt2 in range(2):
            for jj in range(2):
                S.ds_read("ds_read_b64_tr_b16", v(ab + 4 * nt2 + 2 * jj, 2), v(4 + nt2), slot * 2048 + jj * 1024)
    NS = 32
    ST = Stamper(S, cfg.get("stamps", False), 10)
    ST.stamp(); ST.stamp(real=True)
    for n in range(D): issue(n)
    areads(0)
    ST.stamp()
    for n in range(NS):
        ab = AB + 8 * (n % 2); ob = OB + 8 * (n % NOB)
        def mf(nt2, ib):
            S.mfma(v(ACC + 32 * nt2 + 16 * ib, 16), v(ab + 4 * nt2, 4), v(ob + 4 * ib, 4),
                   0 if n == 0 else v(ACC + 32 * nt2 + 16 * ib, 16))
        if n % 4 == 0: ST.stamp()
        mf(0, 0)
        if n + D < NS: issue(n + D)
        mf(0, 1)
        if n + 1 < NS: areads(n + 1)
        mf(1, 0)
        mf(1, 1)
    ST.stamp()
    S.barrier()
    ST.stamp()
    S.salu("s_mul_i32", "s46", "s43", 17408)
    S.valu("v_and_b32", "v6", 31, l)
    S.valu("v_mul_u32_u24", "v6", 272, "v6")
    S.valu("v_lshrrev_b32", "v7", 5, l)
    S.valu("v_lshlrev_b32", "v7", 4, "v7")
    S.valu("v_add_u32", "v6", "v6", "v7")
    S.valu("v_add_u32", "v6", "s46", "v6")
    for nt2 in range(2):
        for ib in range(2):
            for q in range(4):
                S.ds_write("ds_write_b128", "v6", v(ACC + 32 * nt2 + 16 * ib + 4 * q, 4), ib * 32 * 272 + (32 * nt2 + 8 * q) * 4)
    S.wait(lgkm=0)
    S.barrier()
    S.valu("v_lshrrev_b32", "v6", 3, "v0")
    S.valu("v_and_b32", "v7", 7, "v0")
    S.valu("v_mul_u32_u24", "v8", 272, "v6")
    S.valu("v_lshlrev_b32", "v9", 5, "v7")
    S.valu("v_add_u32", "v8", "v8", "v9")
    S.valu("v_add_u32", "v9", 69632, "v8")
    for w in range(8):
        base = "v8" if w < 4 else "v9"
        S.ds_read("ds_read_b128", v(16 + 8 * w, 4), base, (w % 4) * 17408)
        S.ds_read("ds_read_b128", v(16 + 8 * w + 4, 4), base, (w % 4) * 17408 + 16)
    for w in range(1, 8):
        for i in range(8):
            S.valu("v_add_f32", v(16 + i), v(16 + i), v(16 + 8 * w + i))
    for i in range(4):
        S.valu("v_cvt_pk_bf16_f32", v(12 + i), v(16 + 2 * i), v(16 + 2 * i + 1))
    S.valu("v_lshlrev_b32", "v6", 11, "v6")
    S.valu("v_lshlrev_b32", "v7", 4, "v7")
    S.valu("v_add_u32", "v6", "v6", "v7")
    S.buf_store("buffer_store_dwordx4", "v[12:15]", "v6", "s[56:59]")
    if cfg.get("stamps", False):
        S.wait(vm=0)
        ST.stamp(); ST.stamp(real=True)
    ST.flush(1, 11)
    S.endpgm()
    txt = render(S.finalize()) + "\nK2_DONE:\n    s_endpgm\n"
    lds = max(8 * R * 2048, 8 * 17408)
    return txt, lds

def gen_k2b(cfg):
    import k2b
    P = Stream("k2bpro")
    P.salu("s_cmp_ge_u32", "s2", 256)
    P.branch("s_cbranch_scc1", "K2B_DONE")
    if cfg.get("stamps", False):
        P.add(Inst("s_memtime s[98:99]", "smem", [], ["s98", "s99"]))
    P.smem("s[24:25]", "s[0:1]", 32)
    P.smem("s[26:27]", "s[0:1]", 72)
    P.smem("s[36:37]", "s[0:1]", 80)
    P.smem("s[68:69]", "s[0:1]", 88)
    P.smem("s[38:39]", "s[0:1]", 96)
    P.salu("s_and_b32", "s44", "s2", 7)
    P.salu("s_lshr_b32", "s12", "s2", 3)
    P.salu("s_lshr_b32", "s40", "s44", 2)
    P.salu("s_and_b32", "s44", "s44", 3)
    P.salu("s_lshl_b32", "s44", "s44", 2)
    P.salu("s_and_b32", "s41", "s12", 3)
    P.salu("s_add_u32", "s41", "s41", "s44")
    P.salu("s_lshr_b32", "s42", "s12", 2)
    P.valu("v_lshrrev_b32", "v1", 6, "v0")
    P.valu("v_readfirstlane_b32", "s43", "v1")
    P.valu("v_and_b32", "v1", 63, "v0")
    P.salu("s_cmp_eq_u32", "s40", 0)
    P.salu("s_cselect_b64", "s[24:25]", "s[24:25]", "s[26:27]")
    P.salu("s_mov_b32", "s70", 256)
    P.salu("s_mov_b32", "s71", "0x20000")
    k2b.p2_srds(P)
    P.salu("s_and_b32", "s79", "s41", 3)
    P.salu("s_lshl_b32", "s79", "s79", 1)
    P.salu("s_add_u32", "s79", "s79", "s42")
    P.salu("s_and_b32", "s79", "s79", 7)
    if not cfg.get("p2_rot", True): P.salu("s_mov_b32", "s79", 0)
    P.salu("s_or_b32", "s44", "s2", "s43")
    P.salu("s_cmp_lg_u32", "s44", 0)
    P.branch("s_cbranch_scc1", "K2B_NONONCE")
    P.add(Inst("s_memrealtime s[44:45]", "smem", [], ["s44", "s45"]))
    P.wait(lgkm=0)
    P.salu("s_or_b32", "s44", "s44", 1)
    P.valu("v_mov_b32", "v2", "s44")
    P.valu("v_mov_b32", "v3", "s45")
    P.valu("v_mov_b32", "v4", 0)
    P.buf_store("buffer_store_dwordx2", "v[2:3]", "v4", "s[68:71]", flags=" sc1")
    P.label("K2B_NONONCE")
    if cfg.get("clkprobe", False):
        P.add(Inst("s_memtime s[90:91]", "smem", [], ["s90", "s91"]))
        P.add(Inst("s_memrealtime s[92:93]", "smem", [], ["s92", "s93"]))
        P.wait(lgkm=0)
    P.salu("s_cmp_ge_u32", "s43", 4)
    P.branch("s_cbranch_scc1", "K2B_LOAD")
    parts = []
    X = Stream(); ST = Stamper(X, cfg.get("stamps", False), 15)
    k2b.p2_compute(X, cfg, ST)
    if cfg.get("clkprobe", False):
        X.wait(vm=0)
        X.add(Inst("s_memtime s[94:95]", "smem", [], ["s94", "s95"]))
        X.add(Inst("s_memrealtime s[96:97]", "smem", [], ["s96", "s97"]))
        X.wait(lgkm=0)
        X.salu("s_sub_u32", "s94", "s94", "s90")
        X.salu("s_sub_u32", "s96", "s96", "s92")
        X.salu("s_or_b32", "s44", "s2", "s43")
        X.salu("s_cmp_lg_u32", "s44", 0)
        X.branch("s_cbranch_scc1", "K2B_NOPROBE")
        X.valu("v_mov_b32", "v2", "s94")
        X.valu("v_mov_b32", "v3", "s96")
        X.valu("v_mov_b32", "v4", 8)
        X.buf_store("buffer_store_dwordx2", "v[2:3]", "v4", "s[68:71]")
        X.label("K2B_NOPROBE")
    ST.flush(1, 14); X.endpgm()
    A = Stream(); A.ins = list(P.ins) + X.ins
    parts.append(render(A.finalize()))
    X = Stream(); ST = Stamper(X, cfg.get("stamps", False), 30)
    k2b.p2_loader(X, cfg, ST)
    ST.flush(1, 31); X.endpgm()
    A = Stream(); A.ins = list(P.ins) + [Inst("K2B_LOAD:", "label")] + X.ins
    f = A.finalize()
    idx = [k for k, i in enumerate(f) if i.kind == "label" and i.text == "K2B_LOAD:"][0]
    parts.append(render(f[idx:]))
    return "\n".join(parts) + "\nK2B_DONE:\n    s_endpgm\n"

def kernel_wrap(label, body):
    return f""".globl {label}
.p2align 8
.type {label},@function
{label}:
{body}
"""
def desc(label, vgpr, sgpr):
    return f""".p2align 6
.amdhsa_kernel {label}
  .amdhsa_next_free_vgpr {vgpr}
  .amdhsa_next_free_sgpr {sgpr}
  .amdhsa_accum_offset {vgpr}
  .amdhsa_group_segment_fixed_size 0
  .amdhsa_kernarg_size 104
  .amdhsa_user_sgpr_count 2
  .amdhsa_user_sgpr_kernarg_segment_ptr 1
  .amdhsa_system_sgpr_workgroup_id_x 1
.end_amdhsa_kernel
"""

def generate(cfg):
    cfg["_vslot"] = VSLOT
    Stamper.allreal = bool(cfg.get("allreal"))
    if cfg.get("launches") == ["fused"]: cfg["fused"] = True
    k1 = gen_k1(cfg)
    k2, lds2 = gen_k2(cfg)
    hdr = []
    order = cfg.get("launches", ["k1", "k2b"])
    for k in order:
        if k == "k1": hdr.append(f"; @launch kernel=attn_k1_kernel grid=(256,1,1) block=(512,1,1) lds=163840")
        if k == "k2": hdr.append(f"; @launch kernel=attn_k2_kernel grid=(256,1,1) block=(512,1,1) lds={lds2}")
        if k == "fused": hdr.append(f"; @launch kernel=attn_k1_kernel grid=(256,1,1) block=(512,1,1) lds=163840")
        if k == "nop": hdr.append(f"; @launch kernel=attn_nop_kernel grid=(256,1,1) block=(64,1,1) lds=0")
        if k == "k2b": hdr.append(f"; @launch kernel=attn_k2b_kernel grid=(256,1,1) block=(512,1,1) lds=131072")
    txt = "\n".join(hdr) + "\n"
    txt += """; Fused double attention block (problems A and B), one persistent workgroup per CU (256 WGs x 8 waves).
; Hand-off: o tiles go through d_ws (write-through stores + per-launch nonce flags taken from d_debug).
"""
    txt += '.amdgcn_target "amdgcn-amd-amdhsa--gfx950"\n.text\n'
    ks = []
    if "k1" in order or "fused" in order: ks.append(("attn_k1_kernel", k1, 256))
    if "k2" in order: ks.append(("attn_k2_kernel", k2, 192))
    if "k2b" in order: ks.append(("attn_k2b_kernel", gen_k2b(cfg), 256))
    if "nop" in order: ks.append(("attn_nop_kernel", "    s_endpgm\n", 8))
    for (n, b, vg) in ks: txt += kernel_wrap(n, b)
    txt += '.section .rodata,"a"\n'
    for (n, b, vg) in ks: txt += desc(n, vg, 102)
    if cfg.get("single", False):
        txt = txt.replace("; @launch kernel=attn_k1_kernel grid", "; @launch grid").replace("attn_k1_kernel", NAME + "_kernel")
    return txt

if __name__ == "__main__":
    import json
    cfg = {}
    out = f"cdna_kernels/{NAME}.s"
    for a in sys.argv[1:]:
        if a.startswith("-o"): out = a[2:]
        else:
            k, val = a.split("=", 1)
            try: val = json.loads(val)
            except Exception: pass
            cfg[k] = val
    open(out, "w").write(generate(cfg))
    print("wrote", out)
```
